```python
import torch

def _softmax(x, axis=-1):
    return torch.softmax(x, dim=axis)
def _gelu(x):
    return torch.nn.functional.gelu(x, approximate="tanh")
def _silu(x):
    return torch.nn.functional.silu(x)
def _sigmoid(x):
    return torch.sigmoid(x)
def _layernorm(x, axis=-1, eps=1e-5):
    m = x.mean(dim=axis, keepdim=True)
    v = x.var(dim=axis, keepdim=True, unbiased=False)
    return (x - m) / torch.sqrt(v + eps)
def _scatter_add(tgt, idx, src, axis=0):
    return tgt.clone().index_add_(axis, idx, src)
def _segment_sum(src, seg, n):
    out = torch.zeros((n,) + src.shape[1:], dtype=src.dtype)
    return out.index_add_(0, seg, src)
def _pad(x, pw):
    flat = tuple(v for pair in reversed(pw) for v in pair)
    return torch.nn.functional.pad(x, flat)

kernel_name = 'sequential_preLN__sliding_local_dilated__glu_gated_geglu__prompt'

def setup_inputs():

    _w = (lambda a: (lambda t: t.to(torch.bfloat16) if t.is_floating_point() else t)(torch.as_tensor(a)))
    def _A_setup():
        B, S, D = 1, 2048, 576
        return {
            "x": _w((lambda *s: torch.randn(*s, dtype=torch.bfloat16) * 0.05)(B, S, D)),
            "wqkv": _w((lambda *s: torch.randn(*s, dtype=torch.bfloat16) * 0.05)(D, 3 * D)),
            "wo": _w((lambda *s: torch.randn(*s, dtype=torch.bfloat16) * 0.05)(D, D)),
        }
    _A_in = _A_setup()

    def _B_setup():
        B, S, Dm, Df = 1, 2048, 576, 4608
        return {
            "x": _w((lambda *s: torch.randn(*s, dtype=torch.bfloat16) * 0.05)(B, S, Dm)),
            "w_gate": _w((lambda *s: torch.randn(*s, dtype=torch.bfloat16) * 0.8)(Dm, Df) * (Dm ** -0.5)),
            "w_up": _w((lambda *s: torch.randn(*s, dtype=torch.bfloat16) * 0.8)(Dm, Df) * (Dm ** -0.5)),
            "w_down": _w((lambda *s: torch.randn(*s, dtype=torch.bfloat16) * 0.8)(Df, Dm) * (Df ** -0.5)),
        }
    _B_in = _B_setup()

    return {
        "A_x": _A_in["x"],
        "A_wqkv": _A_in["wqkv"],
        "A_wo": _A_in["wo"],
        "B_x": _B_in["x"],
        "B_w_gate": _B_in["w_gate"],
        "B_w_up": _B_in["w_up"],
        "B_w_down": _B_in["w_down"],
    }

def reference(A_x, A_wqkv, A_wo, B_x, B_w_gate, B_w_up, B_w_down):
    def _A_ref(x, wqkv, wo):
        B, S, D = x.shape
        H = 32; Dh = D // H
        W, dil = 8, 2
        qkv = (lambda x, *d: x.permute(*d))((x @ wqkv).reshape(B, S, 3, H, Dh), 2, 0, 3, 1, 4)
        q, k, v = qkv[0], qkv[1], qkv[2]
        scale = Dh ** -0.5
        pos = torch.arange(S)
        off = torch.arange(W) * dil
        idx = pos[:, None] - off[None, :]
        mask = idx >= 0
        idx_c = torch.where(mask, idx, 0).reshape(-1)
        kg = k[:, :, idx_c, :].reshape(B, H, S, W, Dh)
        vg = v[:, :, idx_c, :].reshape(B, H, S, W, Dh)
        logits = torch.einsum("bhsd,bhswd->bhsw", q, kg) * scale
        logits = torch.where(mask[None, None, :, :], logits, -1e9)
        attn = _softmax(logits, axis=-1)
        o = torch.einsum("bhsw,bhswd->bhsd", attn, vg)
        return (lambda x, *d: x.permute(*d))(o, 0, 2, 1, 3).reshape(B, S, D) @ wo

    def _B_ref(x, w_gate, w_up, w_down):
        g = torch.einsum("bsd,df->bsf", x, w_gate)
        u = torch.einsum("bsd,df->bsf", x, w_up)
        h = _gelu(g) * u
        return torch.einsum("bsf,fd->bsd", h, w_down)

    x = A_x
    h = x + _A_ref(_layernorm(x, axis=-1), A_wqkv, A_wo)
    h2 = h + _B_ref(_layernorm(h, axis=-1), B_w_gate, B_w_up, B_w_down)
    return h2
```

```python
S = 2048; D = 576; F = 4608
WS_O  = 0x000000
WS_HC = 0x240000
WS_SS = 0x480000
WS_XM = 0x4A0000
WS_HM = 0x4A2000
WS_WB = 0x4A4000
WS_TS = 0x4B0000
WS_P  = 0x600000
MAT_BYTES = 0x240000
ARG_X, ARG_WQKV, ARG_WO, ARG_BX, ARG_WG, ARG_WU, ARG_WD, ARG_OUT, ARG_DBG, ARG_WS = [8*i for i in range(10)]

def srd(e, s, lo, hi, off, size):
    if off:
        e.i(f's_add_u32 s{s}, s{lo}, {off}')
        e.i(f's_addc_u32 s{s+1}, s{hi}, 0')
    else:
        e.i(f's_mov_b32 s{s}, s{lo}')
        e.i(f's_mov_b32 s{s+1}, s{hi}')
    e.i(f's_mov_b32 s{s+2}, {size}')
    e.i(f's_mov_b32 s{s+3}, 0x20000')

def stamp_begin(e, s):
    e.i(f's_memrealtime s[{s}:{s+1}]')

def stamp_end(e, kidx, sbeg, send, ws_lo, ws_hi, ssrd, vtmp, wgid='s2', nw=8):
    e.i(f's_memrealtime s[{send}:{send+1}]')
    e.i('s_waitcnt lgkmcnt(0)')
    srd(e, ssrd, ws_lo, ws_hi, WS_TS + kidx*0x10000, 0x10000)
    return
```

```python
import re

REG_RE = re.compile(r'^(-|abs\()?\|?([vsa])(\d+)\|?\)?$')
RNG_RE = re.compile(r'^(-)?([vsa])\[(\d+):(\d+)\]$')

def regs_of(tok):
    tok = tok.strip()
    m = RNG_RE.match(tok)
    if m:
        return [m.group(2) + str(i) for i in range(int(m.group(3)), int(m.group(4)) + 1)]
    m = REG_RE.match(tok)
    if m:
        return [m.group(2) + m.group(3)]
    if tok in ('vcc', 'vcc_lo', 'vcc_hi'): return ['vcc']
    if tok in ('exec', 'exec_lo', 'exec_hi'): return ['exec']
    if tok == 'm0': return ['m0']
    if tok == 'scc': return ['scc']
    return []

TRANS = ('v_exp_f32', 'v_log_f32', 'v_rcp_f32', 'v_rsq_f32', 'v_sqrt_f32', 'v_sin_f32', 'v_cos_f32', 'v_rcp_iflag_f32')

class Ins:
    __slots__ = ('text', 'op', 'kind', 'rd', 'wr', 'tag', 'mods', 'ops')
    def __init__(self, text, tag=None):
        self.text = text; self.tag = tag
        t = text.split(';')[0].strip()
        self.rd = []; self.wr = []; self.mods = ''; self.ops = []
        if not t:
            self.op = ''; self.kind = 'comment'; return
        if t.endswith(':'):
            self.op = t; self.kind = 'label'; return
        if t.startswith('.'):
            self.op = t; self.kind = 'directive'; return
        sp = t.split(None, 1)
        op = sp[0]; self.op = op
        rest = sp[1] if len(sp) > 1 else ''
        rest = re.sub(r'\s+(op_sel|op_sel_hi|neg_lo|neg_hi):\[[^\]]*\]', '', rest)
        parts = [p.strip() for p in rest.split(',')] if rest else []
        ops = []
        for i, p in enumerate(parts):
            if i == len(parts) - 1:
                q = p.split()
                if q:
                    ops.append(q[0]); self.mods = ' '.join(q[1:])
            else:
                ops.append(p)
        self.ops = ops
        R = regs_of
        base = op.replace('_e32', '').replace('_e64', '')
        if op.startswith('v_mfma'):
            self.kind = 'mfma'; self.wr = R(ops[0]); self.rd = R(ops[1]) + R(ops[2]) + R(ops[3])
        elif op.startswith('v_permlane') and 'swap' in op:
            self.kind = 'permlane'; self.wr = R(ops[0]) + R(ops[1]); self.rd = R(ops[0]) + R(ops[1])
        elif op.startswith('v_readfirstlane') or op.startswith('v_readlane'):
            self.kind = 'readlane'; self.wr = R(ops[0]); self.rd = sum((R(o) for o in ops[1:]), [])
        elif op.startswith('v_cmp'):
            self.kind = 'valu'; self.wr = R(ops[0]); self.rd = sum((R(o) for o in ops[1:]), [])
            if op.startswith('v_cmpx'): self.wr += ['exec']
        elif op.startswith('v_'):
            self.kind = 'trans' if base in TRANS else 'valu'
            self.wr = R(ops[0]); self.rd = sum((R(o) for o in ops[1:]), [])
            if base in ('v_add_co_u32', 'v_sub_co_u32', 'v_addc_co_u32', 'v_subb_co_u32'):
                self.wr += R(ops[1]); self.rd = sum((R(o) for o in ops[2:]), [])
            if base.startswith('v_fmac') or base.startswith('v_dot2c') or base.startswith('v_accvgpr_mov') is True and False:
                self.rd += R(ops[0])
            if base.startswith('v_cndmask') and len(ops) == 3: self.rd += ['vcc']
            if 'dpp' in op or 'row_' in self.mods or 'quad_perm' in self.mods:
                self.kind = 'dpp'
                if 'bound_ctrl' not in self.mods: self.rd += R(ops[0])
            if 'sdwa' in op and 'UNUSED_PRESERVE' in self.mods: self.rd += R(ops[0])
        elif op.startswith('ds_read') or op.startswith('ds_bpermute') or op.startswith('ds_swizzle') or op.startswith('ds_permute'):
            self.kind = 'ds_read'; self.wr = R(ops[0]); self.rd = sum((R(o) for o in ops[1:]), [])
        elif op.startswith('ds_'):
            self.kind = 'ds_write'; self.rd = sum((R(o) for o in ops), [])
        elif op.startswith('buffer_load') or op.startswith('global_load'):
            if 'lds' in self.mods.split() or '_lds_' in op:
                self.kind = 'dma'; self.rd = sum((R(o) for o in ops), []) + ['m0']
            else:
                self.kind = 'vload'; self.wr = R(ops[0]); self.rd = sum((R(o) for o in ops[1:]), [])
        elif op.startswith('buffer_store') or op.startswith('global_store'):
            self.kind = 'vstore'; self.rd = sum((R(o) for o in ops), [])
        elif op.startswith('buffer_atomic') or op.startswith('global_atomic'):
            self.kind = 'vstore'; self.rd = sum((R(o) for o in ops), [])
            if 'sc0' in self.mods: self.kind = 'vload'; self.wr = R(ops[0])
        elif op.startswith('buffer_wbl2') or op.startswith('buffer_inv'):
            self.kind = 'vstore'
        elif op == 's_getpc_b64':
            self.kind = 'salu'; self.wr = R(ops[0])
        elif op.startswith('s_load') or op.startswith('s_buffer_load') or op in ('s_memtime', 's_memrealtime'):
            self.kind = 'smem'; self.wr = R(ops[0]); self.rd = sum((R(o) for o in ops[1:]), [])
        elif op == 's_waitcnt':
            self.kind = 'wait'
        elif op == 's_barrier':
            self.kind = 'barrier'
        elif op == 's_nop':
            self.kind = 'nop'
        elif op.startswith('s_cbranch') or op == 's_branch':
            self.kind = 'branch'
            if 'scc' in op: self.rd = ['scc']
            if 'vcc' in op: self.rd = ['vcc']
            if 'exec' in op: self.rd = ['exec']
        elif op in ('s_endpgm', 's_setprio', 's_sleep', 's_sethalt'):
            self.kind = 'misc'
        elif op.startswith('s_cmp') or op.startswith('s_bitcmp'):
            self.kind = 'salu'; self.wr = ['scc']; self.rd = sum((R(o) for o in ops), [])
        elif op.startswith('s_'):
            self.kind = 'salu'; self.wr = R(ops[0]) + ['scc']; self.rd = sum((R(o) for o in ops[1:]), [])
            if op in ('s_mov_b32', 's_mov_b64', 's_movk_i32', 's_getreg_b32', 's_mul_i32', 's_mul_hi_u32', 's_cselect_b32', 's_cselect_b64'):
                self.wr = R(ops[0])
            if op.startswith('s_cselect') or op in ('s_addc_u32', 's_subb_u32'): self.rd += ['scc']
            if 'saveexec' in op: self.wr += ['exec']; self.rd += ['exec']
            if op in ('s_addk_i32', 's_mulk_i32'): self.rd += R(ops[0])
        else:
            raise ValueError('unknown op ' + text)
    def is_valu(self):
        return self.kind in ('valu', 'trans', 'dpp', 'permlane', 'readlane')
    def is_vmem(self):
        return self.kind in ('vload', 'vstore', 'dma')
    def is_lds(self):
        return self.kind in ('ds_read', 'ds_write')

def mfma_passes(op):
    if '16x16x32' in op or '16x16x16' in op: return 4
    if '32x32x16' in op or '32x32x8' in op: return 8
    raise ValueError(op)

class Emitter:
    def __init__(self, name):
        self.name = name
        self.ins = []
        self.vmq = []
        self.lgq = []
        self.n = 0
    def i(self, text, tag=None):
        ins = Ins(text, tag)
        self.n += 1
        if tag is None: ins.tag = ('auto', self.n)
        self.ins.append(ins)
        if ins.is_vmem(): self.vmq.append(ins.tag)
        elif ins.is_lds(): self.lgq.append(ins.tag)
        elif ins.kind == 'smem': self.lgq.append(('smem', self.n))
        elif ins.kind == 'wait': self._apply_wait(text)
        return ins.tag
    def c(self, text):
        self.ins.append(Ins('; ' + text))
    def _apply_wait(self, text):
        m = re.search(r'vmcnt\((\d+)\)', text)
        if m:
            n = int(m.group(1))
            if len(self.vmq) > n: self.vmq = self.vmq[len(self.vmq) - n:] if n else []
        m = re.search(r'lgkmcnt\((\d+)\)', text)
        if m:
            n = int(m.group(1))
            if len(self.lgq) > n: self.lgq = self.lgq[len(self.lgq) - n:] if n else []
    def _need(self, q, tags):
        best = None
        for t in tags:
            if t in q:
                k = len(q) - 1 - q.index(t)
                best = k if best is None else min(best, k)
        return best
    def wait(self, vm=(), lg=(), force=False):
        parts = []
        v = self._need(self.vmq, vm)
        if v is not None: parts.append('vmcnt(%d)' % min(v, 63))
        l = self._need(self.lgq, lg)
        if l is not None:
            if any(isinstance(t, tuple) and t[0] == 'smem' for t in self.lgq): l = 0
            parts.append('lgkmcnt(%d)' % min(l, 15))
        if parts: self.i('s_waitcnt ' + ' '.join(parts))
        return bool(parts)
    def wait_all(self, vm=True, lg=True):
        parts = []
        if vm: parts.append('vmcnt(0)')
        if lg: parts.append('lgkmcnt(0)')
        self.i('s_waitcnt ' + ' '.join(parts))
    def nop(self, n):
        while n > 0:
            k = min(n, 16); self.i('s_nop %d' % (k - 1)); n -= k
    def text(self):
        out = []
        for x in self.ins:
            if x.kind in ('label', 'directive'): out.append(x.text)
            else: out.append('  ' + x.text)
        return '\n'.join(out) + '\n'

def check(ins_list, name='', verbose=True):
    probs = []
    real = [x for x in ins_list if x.kind not in ('comment', 'label', 'directive')]
    pos = []; p = 0
    for x in real:
        pos.append(p)
        if x.kind == 'nop': p += int(x.ops[0]) + 1
        else: p += 1
    lastw = {}
    last_mfma_c_read = {}
    last_store_data = {}
    vmq = []; lgq = []
    pend = {}
    def dist(i, j): return pos[j] - pos[i] - (int(real[i].ops[0]) if real[i].kind == 'nop' else 0) - 1
    def err(j, msg): probs.append('%s: [%d] %s  <<%s>>' % (name, j, msg, real[j].text.strip()))
    for j, x in enumerate(real):
        if x.kind == 'wait':
            m = re.search(r'vmcnt\((\d+)\)', x.text)
            if m:
                n = int(m.group(1))
                while len(vmq) > n:
                    i = vmq.pop(0)
                    for r in real[i].wr:
                        if pend.get(r) == ('vm', i): del pend[r]
            m = re.search(r'lgkmcnt\((\d+)\)', x.text)
            if m:
                n = int(m.group(1))
                if any(real[i].kind == 'smem' for i in lgq) and n > 0:
                    pass
                else:
                    while len(lgq) > n:
                        i = lgq.pop(0)
                        for r in real[i].wr:
                            if pend.get(r) == ('lg', i): del pend[r]
            continue
        for r in x.rd + x.wr:
            if r in pend:
                if x.kind in ('ds_read', 'vload', 'smem') and r in x.wr and r not in x.rd and real[pend[r][1]].kind == x.kind and x.kind != 'smem':
                    continue
                err(j, 'register %s has an outstanding load from [%d] %s' % (r, pend[r][1], real[pend[r][1]].text.strip()))
        for r in x.rd:
            if r in lastw:
                i = lastw[r]; w = real[i]; d = dist(i, j)
                need = 0; why = ''
                if w.kind == 'mfma':
                    ps = mfma_passes(w.op)
                    if x.kind == 'mfma':
                        isC = r in regs_of(x.ops[3]); isAB = r in regs_of(x.ops[1]) + regs_of(x.ops[2])
                        if isAB: need = {4: 8, 8: 12}[ps]; why = 'mfma D -> mfma A/B'
                        elif isC:
                            if x.ops[3] == w.ops[0] and mfma_passes(x.op) == ps: need = 0
                            else: need = {4: 6, 8: 10}[ps]; why = 'mfma D -> overlapped C'
                    elif x.is_valu() or x.is_vmem() or x.is_lds():
                        need = {4: 8, 8: 12}[ps]; why = 'mfma D -> valu/mem read'
                elif w.op.startswith('v_dot2') and not (x.op == w.op and r in regs_of(x.ops[3] if len(x.ops) > 3 else '') and r not in regs_of(x.ops[1]) + regs_of(x.ops[2])):
                    need = 3; why = 'dot -> other reader'
                elif w.is_valu():
                    if r[0] in 'va' and r not in ('vcc',):
                        if x.kind == 'mfma': need = 2; why = 'valu -> mfma'
                        elif x.kind == 'permlane': need = 2; why = 'valu -> permlane'
                        elif x.kind == 'dpp': need = 2; why = 'valu -> dpp'
                        elif x.kind == 'readlane': need = 1; why = 'valu -> readlane'
                        elif w.kind == 'trans' and x.is_valu() and x.kind != 'trans': need = 1; why = 'trans -> valu'
                        elif w.kind == 'trans' and x.kind == 'trans': need = 1; why = 'trans -> trans (conservative)'
                    elif r[0] == 's' or r == 'vcc':
                        if x.is_vmem(): need = 5; why = 'valu sgpr -> vmem'
                        elif x.is_valu(): need = 2; why = 'valu sgpr -> valu'
                        elif x.kind in ('salu', 'branch', 'smem'): need = 4 if x.kind != 'branch' else 5; why = 'valu sgpr -> salu (conservative)'
                    elif r == 'exec':
                        need = 5; why = 'valu exec'
                elif w.kind == 'salu' and r == 'm0' and x.kind == 'dma': need = 1; why = 'm0 -> dma'
                if d < need: err(j, 'hazard %s: distance %d < %d (producer [%d] %s)' % (why, d, need, i, w.text.strip()))
        for r in x.wr:
            if r in lastw:
                i = lastw[r]; w = real[i]; d = dist(i, j)
                if w.kind == 'mfma' and (x.is_valu() or x.kind in ('ds_read', 'vload')):
                    need = {4: 8, 8: 12}[mfma_passes(w.op)]
                    if d < need: err(j, 'hazard mfma D -> write WAW: %d < %d (producer [%d])' % (d, need, i))
                if w.op.startswith('v_dot2') and x.op != w.op and d < 3: err(j, 'hazard dot -> other writer: %d < 3' % d)
                if w.kind == 'mfma' and x.kind == 'mfma' and r not in x.rd:
                    need = {4: 6, 8: 10}[mfma_passes(w.op)]
                    if d < need: err(j, 'hazard mfma D -> mfma D WAW (conservative): %d < %d (producer [%d])' % (d, need, i))
            if r in last_mfma_c_read and x.is_valu():
                i = last_mfma_c_read[r]; d = dist(i, j)
                need = {4: 3, 8: 7}[mfma_passes(real[i].op)]
                if d < need: err(j, 'hazard mfma C read -> valu write: %d < %d' % (d, need))
            if r in last_store_data:
                i = last_store_data[r]; d = dist(i, j)
                need = 2 if x.is_valu() else 1
                if d < need: err(j, 'hazard wide store data overwritten: %d < %d' % (d, need))
        if x.kind == 'mfma':
            for r in regs_of(x.ops[3]): last_mfma_c_read[r] = j
        if x.kind == 'vstore' and ('x4' in x.op or 'x3' in x.op):
            for r in regs_of(x.ops[0] if x.op.startswith('buffer') else x.ops[1]): last_store_data[r] = j
        for r in x.wr: lastw[r] = j
        if x.is_vmem():
            vmq.append(j)
            for r in x.wr: pend[r] = ('vm', j)
        elif x.is_lds() or x.kind == 'smem':
            lgq.append(j)
            for r in x.wr: pend[r] = ('lg', j)
    if verbose:
        for s in probs[:4]: print('HAZARD', s)
        if len(probs) > 4: print("... %d more" % (len(probs) - 4))
    return probs

def kernel_desc(name, nvgpr, nsgpr=96, accum=None):
    if accum is None: accum = (min(nvgpr, 256) + 3) // 4 * 4
    return f""".section .rodata,"a"
.p2align 6
.amdhsa_kernel {name}
  .amdhsa_next_free_vgpr {nvgpr}
  .amdhsa_next_free_sgpr {nsgpr}
  .amdhsa_accum_offset {accum}
  .amdhsa_group_segment_fixed_size 0
  .amdhsa_kernarg_size 80
  .amdhsa_user_sgpr_count 2
  .amdhsa_user_sgpr_kernarg_segment_ptr 1
  .amdhsa_system_sgpr_workgroup_id_x 1
  .amdhsa_float_denorm_mode_32 3
.end_amdhsa_kernel
.text
"""
```

```python
from asmlib import *
from common import *
import struct, math
def f2u(x): return struct.unpack('<I', struct.pack('<f', x))[0]

def gen_k1(name='attn_kernel', diag=False, store_mod='', prefetch=True, stamps=False):
    e = Emitter(name)
    NS = 6; SLOT = 24576; P = 5
    LDS = NS*SLOT
    QS, KS, VS, OS = 0, 12288, 27648, 53248
    sX, sW, sO, sM = 4, 8, 12, 16
    sPX, sPW, sPWO, sPWS = 20, 22, 24, 26
    sPG, sPU, sPD = 28, 30, 32
    sw, sHG, sRB, sT0, sT1, sT2, sOFF, sMB = 34, 35, 36, 37, 38, 39, 40, 41
    sONE, sTILE = 42, 43
    sTS = 48
    sST = 56
    vL, vG, vM, vROW, vR80 = 240, 241, 242, 243, 244
    e.i(f'{name}:')
    e.i('s_cmp_ge_u32 s2, 256')
    e.i(f's_cbranch_scc1 {name}_done')
    if diag: e.i(f's_memrealtime s[{sTS}:{sTS+1}]')
    e.i(f's_load_dwordx4 s[{sPX}:{sPX+3}], s[0:1], {ARG_X}')
    e.i(f's_load_dwordx2 s[{sPWO}:{sPWO+1}], s[0:1], {ARG_WO}')
    e.i(f's_load_dwordx2 s[{sPWS}:{sPWS+1}], s[0:1], {ARG_WS}')
    e.i(f's_load_dwordx4 s[{sPG}:{sPG+3}], s[0:1], {ARG_WG}')
    e.i(f's_load_dwordx2 s[{sPD}:{sPD+1}], s[0:1], {ARG_WD}')
    e.i('v_lshrrev_b32 v1, 6, v0')
    e.i(f'v_and_b32 v{vL}, 63, v0')
    e.i(f'v_readfirstlane_b32 s{sw}, v1')
    e.i(f's_and_b32 s{sHG}, s2, 7')
    e.i(f's_lshr_b32 s{sRB}, s2, 3')
    e.i(f'v_lshrrev_b32 v{vG}, 4, v{vL}')
    e.i(f'v_and_b32 v{vM}, 15, v{vL}')
    e.i('s_waitcnt lgkmcnt(0)')
    srd(e, sX, sPX, sPX+1, 0, MAT_BYTES)
    srd(e, sW, sPW, sPW+1, 0, D*3*D*2)
    e.i(f's_cmp_ge_u32 s{sw}, 5')
    e.i(f's_cbranch_scc1 {name}_loader')
    e.i(f's_cmp_eq_u32 s{sw}, 4')
    e.i(f's_cbranch_scc1 {name}_halo')
    common_n = len(e.ins)
    save = (list(e.vmq), list(e.lgq))
    def stamp(k):
        if diag and stamps: e.i(f's_memtime s[{sST+2*k}:{sST+1+2*k}]')
    def finish(nst):
        if diag:
            e.i('s_mov_b64 exec, -1')
            e.i('s_waitcnt vmcnt(0)')
            e.i(f's_memrealtime s[{sTS+2}:{sTS+3}]')
            e.i('s_waitcnt lgkmcnt(0)')
            srd(e, sM, sPWS, sPWS+1, WS_TS + 0*0x10000, 0x10000)
            e.i(f's_lshl_b32 s{sT0}, s2, 3'); e.i(f's_add_u32 s{sT0}, s{sT0}, s{sw}'); e.i(f's_lshl_b32 s{sT0}, s{sT0}, 4')
            for k in range(4): e.i(f'v_mov_b32 v{k}, s{sTS+k}')
            e.i('v_mov_b32 v4, 0')
            e.i(f'buffer_store_dwordx4 v[0:3], v4, s[{sM}:{sM+3}], s{sT0} offen')
            if stamps:
                e.i(f's_memtime s[{sST+2*nst}:{sST+1+2*nst}]')
                e.i('s_waitcnt lgkmcnt(0)')
                srd(e, sM, sPWS, sPWS+1, WS_TS + 4*0x10000, 0x40000)
                e.i(f's_lshl_b32 s{sT0}, s2, 3'); e.i(f's_add_u32 s{sT0}, s{sT0}, s{sw}'); e.i(f's_lshl_b32 s{sT0}, s{sT0}, 7')
                for k in range(nst + 1):
                    e.i(f'v_mov_b32 v0, s{sST+2*k}')
                    e.i(f'buffer_store_dword v0, v4, s[{sM}:{sM+3}], s{sT0} offen offset:{4*k}')
            e.i('s_waitcnt vmcnt(0)')
        e.i('s_endpgm')

    def final_copy(extra):
        srd(e, sO, sPWS, sPWS+1, WS_O, MAT_BYTES)
        e.i(f's_lshl_b32 s{sT0}, s{sw}, 6')
        passes = [0, 512] if extra else [0]
        for pi, base in enumerate(passes):
            a = 200 + 8*pi
            e.i(f'v_add_u32 v{a}, s{sT0}, v{vL}')
            if base: e.i(f'v_add_u32 v{a}, {base}, v{a}')
            e.i(f'v_lshlrev_b32 v{a+1}, 4, v{a}')
            e.i(f'ds_read_b128 v[{a+4}:{a+7}], v{a+1} offset:{OS}', ('oc', pi))
            e.i(f'v_mul_u32_u24 v{a+2}, 7282, v{a}')
            e.i(f'v_lshrrev_b32 v{a+2}, 16, v{a+2}')
            e.i(f'v_mul_u32_u24 v{a+3}, 9, v{a+2}')
            e.i(f'v_sub_u32 v{a+3}, v{a}, v{a+3}')
            e.i(f's_lshl_b32 s{sT1}, s{sRB}, 6')
            e.i(f'v_add_u32 v{a+2}, s{sT1}, v{a+2}')
            e.i(f'v_mul_u32_u24 v{a+2}, 1152, v{a+2}')
            e.i(f'v_lshl_add_u32 v{a+2}, v{a+3}, 4, v{a+2}')
            e.i(f's_mul_i32 s{sT1}, s{sHG}, 144')
            e.wait(lg=[('oc', pi)])
            e.i(f'buffer_store_dwordx4 v[{a+4}:{a+7}], v{a+2}, s[{sO}:{sO+3}], s{sT1} offen {store_mod}')

    def compute(halo):
        vB = lambda s: 4*s
        mats = (1, 2) if halo else (0, 1, 2)
        acc = lambda mat, c: 72 + (mat*5 + c)*4
        NA = 8; DIST = 7
        vA = lambda k: 132 + 4*k
        vRA = lambda sp, c: 164 + sp*5 + c
        stamp(0)
        if halo: e.i(f's_mov_b32 s{sTILE}, 0')
        else: e.i(f's_add_u32 s{sTILE}, s{sw}, 1')
        e.i(f's_lshl_b32 s{sT0}, s{sRB}, 6')
        e.i(f's_lshl_b32 s{sT1}, s{sTILE}, 4')
        e.i(f'v_add_u32 v{vR80}, s{sT1}, v{vM}')
        e.i(f's_sub_u32 s{sT0}, s{sT0}, 16')
        e.i(f'v_add_u32 v{vROW}, s{sT0}, v{vR80}')
        e.i(f'v_max_i32 v{vROW}, 0, v{vROW}')
        e.i(f'v_mul_u32_u24 v200, 1152, v{vROW}')
        e.i(f'v_lshl_add_u32 v200, v{vG}, 4, v200')
        tb = [e.i(f'buffer_load_dwordx4 v[{vB(s)}:{vB(s)+3}], v200, s[{sX}:{sX+3}], 0 offen offset:{64*s}') for s in range(18)]
        e.i(f'v_bfe_u32 v201, v{vL}, 2, 2')
        e.i(f'v_lshl_add_u32 v202, v{vG}, 3, v201')
        e.i('v_lshlrev_b32 v202, 8, v202')
        e.i(f'v_and_b32 v203, 1, v{vG}')
        e.i('v_lshl_or_b32 v203, v203, 2, v201')
        e.i('v_lshlrev_b32 v203, 1, v203')
        e.i(f'v_and_b32 v204, 3, v{vL}')
        e.i(f's_lshl_b32 s{sT0}, s{sHG}, 4')
        for c in range(5):
            e.i(f'v_add_u32 v205, {4*c}, v204')
            e.i('v_mul_u32_u24 v206, 52, v205')
            e.i('v_lshrrev_b32 v206, 8, v206')
            e.i('v_mul_u32_u24 v207, 5, v206')
            e.i('v_sub_u32 v207, v205, v207')
            e.i('v_mul_u32_u24 v208, 36, v206')
            e.i('v_and_b32 v206, 1, v206')
            e.i('v_lshlrev_b32 v206, 2, v206')
            e.i('v_sub_u32 v208, v208, v206')
            e.i('v_lshl_add_u32 v208, v207, 3, v208')
            e.i(f'v_add_u32 v208, s{sT0}, v208')
            e.i('v_lshrrev_b32 v207, 4, v208')
            e.i('v_xor_b32 v207, v207, v203')
            e.i('v_and_b32 v208, 8, v208')
            e.i('v_lshl_add_u32 v207, v207, 4, v208')
            e.i(f'v_add_u32 v{vRA(0,c)}, v207, v202')
            e.i(f'v_add_u32 v{vRA(1,c)}, {2*SLOT}, v{vRA(0,c)}')
            e.i(f'v_add_u32 v{vRA(2,c)}, {4*SLOT}, v{vRA(0,c)}')
        e.i(f's_mov_b32 s{sONE}, 0x3f803f80')
        for k in range(4): e.i(f'v_mov_b32 v{180+k}, 0')
        for s in range(18):
            e.wait(vm=[tb[s]])
            for k in range(4):
                r = vB(s) + k
                e.i(f'v_dot2_f32_bf16 v{180+(k&1)}, v{r}, s{sONE}, v{180+(k&1)}')
                e.i(f'v_dot2_f32_bf16 v{182+(k&1)}, v{r}, v{r}, v{182+(k&1)}')
        e.nop(2)
        e.i('v_add_f32 v180, v180, v181')
        e.i('v_add_f32 v182, v182, v183')
        for swp in ('v_permlane16_swap_b32', 'v_permlane32_swap_b32'):
            e.i('v_mov_b32 v181, v180')
            e.i('v_mov_b32 v183, v182')
            e.nop(2)
            e.i(f'{swp} v180, v181')
            e.i(f'{swp} v182, v183')
            e.nop(1)
            e.i('v_add_f32 v180, v180, v181')
            e.i('v_add_f32 v182, v182, v183')
        e.i(f's_mov_b32 s{sT0}, {f2u(1.0/576)}')
        e.i(f'v_mul_f32 v180, s{sT0}, v180')
        e.i(f'v_mul_f32 v182, s{sT0}, v182')
        e.i('v_fma_f32 v182, -v180, v180, v182')
        e.i('v_max_f32 v182, 0, v182')
        e.i(f'v_add_f32 v182, {f2u(1e-5)}, v182')
        e.i('v_rsq_f32 v182, v182')
        if not halo:
            e.i(f's_cmp_lg_u32 s{sHG}, 0')
            e.i(f's_cbranch_scc1 {name}_noxm')
            srd(e, sM, sPWS, sPWS+1, WS_XM, S*4)
            e.i(f'v_lshlrev_b32 v184, 2, v{vROW}')
            e.i('s_mov_b64 exec, 0xffff')
            e.i(f'buffer_store_dword v180, v184, s[{sM}:{sM+3}], 0 offen {store_mod}')
            e.i('s_mov_b64 exec, -1')
            e.i(f'{name}_noxm:')
        e.nop(1)
        e.i('v_mul_f32 v183, v180, v182')
        e.i('v_sub_f32 v183, 0, v183')
        e.i('v_mov_b32 v184, 0xffff0000')
        for s in range(18):
            for k in range(4):
                r = vB(s) + k; t = 186 + 2*(k & 1)
                e.i(f'v_lshlrev_b32 v{t}, 16, v{r}')
                e.i(f'v_and_b32 v{t+1}, v184, v{r}')
                e.i(f'v_fma_f32 v{t}, v{t}, v182, v183')
                e.i(f'v_fma_f32 v{t+1}, v{t+1}, v182, v183')
                e.i(f'v_cvt_pk_bf16_f32 v{r}, v{t}, v{t+1}')
        stamp(1)
        flist = [(t, mat, c) for t in range(18) for mat in mats for c in range(5)]
        rt = {}
        def rd(i):
            t, mat, c = flist[i]; slot = t % NS
            ar = vRA(slot // 2, c); off = (slot & 1)*SLOT + mat*8192; ra = vA(i % NA)
            rt[i] = [e.i(f'ds_read_b64_tr_b16 v[{ra}:{ra+1}], v{ar} offset:{off}'),
                     e.i(f'ds_read_b64_tr_b16 v[{ra+2}:{ra+3}], v{ar} offset:{off + 1024}')]
        nxt = 0
        for i, (t, mat, c) in enumerate(flist):
            if mat == mats[0] and c == 0:
                e.i('s_barrier')
                if t == 0:
                    stamp(2)
                    for k in range(DIST): rd(k)
                    nxt = DIST
            e.wait(lg=rt[i])
            a = acc(mat, c); ra = vA(i % NA)
            cc = '0' if t == 0 else f'v[{a}:{a+3}]'
            e.i(f'v_mfma_f32_16x16x32_bf16 v[{a}:{a+3}], v[{ra}:{ra+3}], v[{vB(t)}:{vB(t)+3}], {cc}')
            if nxt < len(flist): rd(nxt); nxt += 1
        stamp(3)
        e.i('s_barrier')
        e.i(f'v_mul_u32_u24 v200, 48, v{vR80}')
        e.i(f'v_mul_u32_u24 v201, 80, v{vR80}')
        for c in range(5):
            e.i(f'v_add_u32 v205, {4*c}, v{vG}')
            e.i('v_mul_u32_u24 v206, 52, v205')
            e.i('v_lshrrev_b32 v206, 8, v206')
            e.i('v_mul_u32_u24 v207, 5, v206')
            e.i('v_sub_u32 v207, v205, v207')
            e.i('v_mul_u32_u24 v208, 3840, v206')
            e.i('v_lshl_add_u32 v208, v207, 3, v208')
            e.i('v_add_u32 v208, v208, v200')
            a = acc(1, c)
            e.i(f'v_cvt_pk_bf16_f32 v210, v{a}, v{a+1}')
            e.i(f'v_cvt_pk_bf16_f32 v211, v{a+2}, v{a+3}')
            e.i(f'ds_write_b64 v208, v[210:211] offset:{KS}')
            e.i('v_mul_u32_u24 v209, 6400, v206')
            e.i('v_lshl_add_u32 v209, v207, 4, v209')
            e.i('v_add_u32 v209, v209, v201')
            a = acc(2, c)
            e.i(f'ds_write_b128 v209, v[{a}:{a+3}] offset:{VS}')
            if not halo:
                e.i('v_mul_u32_u24 v212, 3072, v206')
                e.i('v_lshl_add_u32 v212, v207, 3, v212')
                e.i('v_add_u32 v212, v212, v200')
                a = acc(0, c)
                e.i(f'v_cvt_pk_bf16_f32 v214, v{a}, v{a+1}')
                e.i(f'v_cvt_pk_bf16_f32 v215, v{a+2}, v{a+3}')
                e.i(f'v_subrev_u32 v212, {16*48}, v212')
                e.i(f'ds_write_b64 v212, v[214:215] offset:{QS}')
        e.wait_all(vm=False)
        e.i('s_barrier')
        stamp(4)
        if not halo: attention()
        stamp(5)
        e.wait_all(vm=False)
        e.i('s_barrier')
        final_copy(extra=False) if halo else final_copy_main()
        finish(6)

    def final_copy_main():
        final_copy(extra=False)
        e.i(f's_cmp_lg_u32 s{sw}, 0')
        e.i(f's_cbranch_scc1 {name}_nox2')
        a = 208
        e.i(f'v_add_u32 v{a}, 512, v{vL}')
        e.i(f'v_lshlrev_b32 v{a+1}, 4, v{a}')
        e.i(f'ds_read_b128 v[{a+4}:{a+7}], v{a+1} offset:{OS}', 'oc2')
        e.i(f'v_mul_u32_u24 v{a+2}, 7282, v{a}')
        e.i(f'v_lshrrev_b32 v{a+2}, 16, v{a+2}')
        e.i(f'v_mul_u32_u24 v{a+3}, 9, v{a+2}')
        e.i(f'v_sub_u32 v{a+3}, v{a}, v{a+3}')
        e.i(f's_lshl_b32 s{sT1}, s{sRB}, 6')
        e.i(f'v_add_u32 v{a+2}, s{sT1}, v{a+2}')
        e.i(f'v_mul_u32_u24 v{a+2}, 1152, v{a+2}')
        e.i(f'v_lshl_add_u32 v{a+2}, v{a+3}, 4, v{a+2}')
        e.i(f's_mul_i32 s{sT1}, s{sHG}, 144')
        e.wait(lg=['oc2'])
        e.i(f'buffer_store_dwordx4 v[{a+4}:{a+7}], v{a+2}, s[{sO}:{sO+3}], s{sT1} offen {store_mod}')
        e.i(f'{name}_nox2:')

    def attention():
        vQ = 0; vK = lambda k: 12 + 10*k
        vS = 92
        vV = lambda b: 100 + 20*b
        vO = 160
        aQ, aK, aV = 180, 181, 182
        e.i(f's_mul_i32 s{sT0}, s{sw}, 3072')
        e.i(f'v_mul_u32_u24 v{aQ}, 48, v{vL}')
        e.i(f'v_add_u32 v{aK}, {2*48}, v{aQ}')
        e.i(f'v_add_u32 v{aQ}, s{sT0}, v{aQ}')
        e.i(f's_mul_i32 s{sT0}, s{sw}, 3840')
        e.i(f'v_add_u32 v{aK}, s{sT0}, v{aK}')
        e.i(f'v_mul_u32_u24 v{aV}, 80, v{vL}')
        e.i(f's_mul_i32 s{sT0}, s{sw}, 6400')
        e.i(f's_add_u32 s{sT0}, s{sT0}, {2*80}')
        e.i(f'v_add_u32 v{aV}, s{sT0}, v{aV}')
        def rd10(dst, addr, off, tag):
            return [e.i(f'ds_read_b128 v[{dst}:{dst+3}], v{addr} offset:{off}', (tag, 0)),
                    e.i(f'ds_read_b128 v[{dst+4}:{dst+7}], v{addr} offset:{off+16}', (tag, 1)),
                    e.i(f'ds_read_b64 v[{dst+8}:{dst+9}], v{addr} offset:{off+32}', (tag, 2))]
        tq = rd10(vQ, aQ, QS, 'q')
        tk = {}
        for k in range(4): tk[k] = rd10(vK(k), aK, KS + 96*(7 - k), ('k', k))
        e.i(f's_and_b32 s{sT0}, s{sw}, 1')
        e.i(f's_sub_u32 s{sT1}, s{sT0}, 1')
        e.i(f's_not_b32 s{sT2}, s{sT1}')
        e.i(f's_lshl_b32 s{sT0}, s{sRB}, 6')
        e.i(f'v_add_u32 v183, s{sT0}, v{vL}')
        e.wait(lg=tq)
        e.i(f'v_and_b32 v{vQ}, s{sT1}, v{vQ}')
        e.i(f'v_and_b32 v{vQ+9}, s{sT2}, v{vQ+9}')
        def vread(k, b):
            return [e.i(f'ds_read_b128 v[{vV(b)+4*x}:{vV(b)+4*x+3}], v{aV} offset:{VS + 160*(7 - k) + 16*x}', ('v', k, x)) for x in range(5)]
        for k in range(8):
            if k + 4 < 8: tk[k+4] = rd10(vK(k+4), aK, KS + 96*(7 - k - 4), ('k', k+4))
            e.wait(lg=tk[k])
            e.i(f'v_dot2_f32_bf16 v{vS+k}, v{vQ}, v{vK(k)}, 0')
            for x in range(1, 10):
                e.i(f'v_dot2_f32_bf16 v{vS+k}, v{vQ+x}, v{vK(k)+x}, v{vS+k}')
        tv = {}
        tv[0] = vread(0, 0); tv[1] = vread(1, 1)
        e.i(f'v_mov_b32 v184, {f2u(-1e30)}')
        for k in range(1, 8):
            e.i(f'v_cmp_le_u32 vcc, {2*k}, v183')
            e.nop(2)
            e.i(f'v_cndmask_b32 v{vS+k}, v184, v{vS+k}, vcc')
        e.i(f'v_max3_f32 v185, v{vS}, v{vS+1}, v{vS+2}')
        e.i(f'v_max3_f32 v185, v185, v{vS+3}, v{vS+4}')
        e.i(f'v_max3_f32 v185, v185, v{vS+5}, v{vS+6}')
        e.i(f'v_max_f32 v185, v185, v{vS+7}')
        e.i(f's_mov_b32 s{sT0}, {f2u(18**-0.5 * 1.4426950408889634)}')
        e.i(f'v_mul_f32 v185, s{sT0}, v185')
        for k in range(8): e.i(f'v_fma_f32 v{vS+k}, v{vS+k}, s{sT0}, -v185')
        for k in range(8): e.i(f'v_exp_f32 v{vS+k}, v{vS+k}')
        e.nop(1)
        e.i(f'v_add_f32 v186, v{vS}, v{vS+1}')
        e.i(f'v_add_f32 v187, v{vS+2}, v{vS+3}')
        e.i(f'v_add_f32 v188, v{vS+4}, v{vS+5}')
        e.i(f'v_add_f32 v189, v{vS+6}, v{vS+7}')
        e.i('v_add_f32 v186, v186, v187')
        e.i('v_add_f32 v188, v188, v189')
        e.i('v_add_f32 v186, v186, v188')
        e.i('v_rcp_f32 v186, v186')
        e.nop(1)
        for k in range(8): e.i(f'v_mul_f32 v{vS+k}, v{vS+k}, v186')
        for k in range(8):
            if k + 2 < 8: tv[k+2] = vread(k + 2, (k + 2) % 3)
            e.wait(lg=tv[k])
            for x in range(20):
                if k == 0: e.i(f'v_mul_f32 v{vO+x}, v{vS}, v{vV(0)+x}')
                else: e.i(f'v_fma_f32 v{vO+x}, v{vS+k}, v{vV(k % 3)+x}, v{vO+x}')
        for x in range(10): e.i(f'v_cvt_pk_bf16_f32 v{x}, v{vO+2*x}, v{vO+2*x+1}')
        e.i(f'v_mul_u32_u24 v184, 144, v{vL}')
        e.i(f's_mul_i32 s{sT0}, s{sw}, 36')
        e.i(f'v_add_u32 v184, s{sT0}, v184')
        e.i(f's_bitcmp1_b32 s{sw}, 0')
        e.i(f's_cbranch_scc1 {name}_odd')
        for x in range(9): e.i(f'ds_write_b32 v184, v{x} offset:{OS + 4*x}')
        e.i(f's_branch {name}_owr')
        e.i(f'{name}_odd:')
        for x in range(9): e.i(f'ds_write_b32 v184, v{x+1} offset:{OS + 4*x}')
        e.i(f'{name}_owr:')

    def loader():
        sL = sTILE
        e.i(f's_sub_u32 s{sL}, s{sw}, 5')
        vE, vO_ = 200, 201
        e.i(f'v_lshrrev_b32 v2, 4, v{vL}')
        e.i(f'v_and_b32 v3, 15, v{vL}')
        e.i('v_mul_u32_u24 v4, 3456, v2')
        e.i(f's_mul_i32 s{sT0}, s{sL}, 1152')
        e.i(f's_lshl_b32 s{sT1}, s{sHG}, 7')
        e.i(f's_add_u32 s{sT0}, s{sT0}, s{sT1}')
        e.i(f'v_add_u32 v4, s{sT0}, v4')
        for par, dst in ((0, vE), (1, vO_)):
            e.i(f'v_or_b32 v5, {4*par}, v2')
            e.i('v_lshlrev_b32 v5, 1, v5')
            e.i('v_xor_b32 v5, v5, v3')
            e.i(f'v_lshl_add_u32 v{dst}, v5, 4, v4')
        e.i(f's_lshl_b32 s{sMB}, s{sL}, 13')
        def dma(t):
            slot = t % NS
            for k in range(8):
                e.i(f's_add_u32 m0, s{sMB}, {slot*SLOT + k*1024}')
                e.i(f's_mov_b32 s{sOFF}, {t*110592 + k*13824}')
                e.i(f'buffer_load_dwordx4 v{vE if ((k >> 1) & 1) == 0 else vO_}, s[{sW}:{sW+3}], s{sOFF} offen lds', ('A', t, k))
        for t in range(P): dma(t)
        for t in range(18):
            e.wait(vm=[('A', x, k) for x in range(min(t + 1, 17) + 1) for k in range(8)])
            e.i('s_barrier')
            if t + P < 18: dma(t + P)
            if t == 13:
                srd(e, sM, sPWO, sPWO+1, 0, D*D*2)
                e.i(f'v_lshrrev_b32 v2, 4, v{vL}')
                e.i(f's_lshl_b32 s{sT0}, s2, 2')
                e.i(f'v_add_u32 v2, s{sT0}, v2')
                e.i('v_mul_u32_u24 v3, 1152, v2')
                e.i(f'v_and_b32 v4, 15, v{vL}')
                e.i('v_mul_u32_u24 v4, 72, v4')
                e.i('v_add_u32 v3, v3, v4')
                tw = [e.i(f'buffer_load_dwordx2 v[{10+2*k}:{11+2*k}], v3, s[{sM}:{sM+3}], 0 offen offset:{8*k}') for k in range(9)]
            if t == 14 and prefetch:
                e.i(f's_cmp_eq_u32 s{sL}, 0')
                e.i(f's_cselect_b32 s{sO}, s{sPG}, s{sPU}')
                e.i(f's_cselect_b32 s{sO+1}, s{sPG+1}, s{sPU+1}')
                e.i(f's_cmp_eq_u32 s{sL}, 2')
                e.i(f's_cselect_b32 s{sO}, s{sPD}, s{sO}')
                e.i(f's_cselect_b32 s{sO+1}, s{sPD+1}, s{sO+1}')
                e.i(f's_mov_b32 s{sO+2}, {D*F*2}')
                e.i(f's_mov_b32 s{sO+3}, 0x20000')
                e.i(f's_mul_i32 s{sT0}, s2, {162*128}')
                e.i(f'v_lshlrev_b32 v5, 7, v{vL}')
                for k in range(3):
                    e.i(f'buffer_load_dword v{40+k}, v5, s[{sO}:{sO+3}], s{sT0} offen')
                    if k < 2: e.i(f's_add_u32 s{sT0}, s{sT0}, 8192')
        e.i('s_barrier')
        e.wait(vm=tw)
        e.i(f's_mov_b32 s{sONE}, 0x3f803f80')
        e.i('v_mov_b32 v6, 0')
        for k in range(18): e.i(f'v_dot2_f32_bf16 v6, v{10+k}, s{sONE}, v6')
        for r in (8, 4, 2, 1):
            e.nop(3)
            e.i(f'v_add_f32_dpp v6, v6, v6 row_ror:{r} row_mask:0xf bank_mask:0xf')
        e.i(f's_mov_b32 s{sT0}, {f2u(1.0/576)}')
        e.i(f'v_mul_f32 v6, s{sT0}, v6')
        e.i('v_cvt_pk_bf16_f32 v6, v6, v6')
        srd(e, sM, sPWS, sPWS+1, WS_WB, 1152)
        e.i('v_lshlrev_b32 v7, 1, v2')
        e.i(f's_cmp_lg_u32 s{sw}, 5')
        e.i(f's_cbranch_scc1 {name}_nowb')
        e.i('s_mov_b32 exec_lo, 0x00010001')
        e.i('s_mov_b32 exec_hi, 0x00010001')
        e.i(f'buffer_store_short v6, v7, s[{sM}:{sM+3}], 0 offen {store_mod}')
        e.i('s_mov_b64 exec, -1')
        e.i(f'{name}_nowb:')
        e.i('s_barrier')
        e.i('s_barrier')
        final_copy(extra=False)
        finish(6)

    compute(False)
    n1 = len(e.ins)
    e.i(f'{name}_halo:')
    e.vmq, e.lgq = list(save[0]), list(save[1])
    compute(True)
    n2 = len(e.ins)
    e.i(f'{name}_loader:')
    e.vmq, e.lgq = list(save[0]), list(save[1])
    loader()
    n3 = len(e.ins)
    segs = [e.ins[:n1], e.ins[:common_n] + e.ins[n1:n2], e.ins[:common_n] + e.ins[n2:n3]]
    e.i(f'{name}_done:')
    e.i('s_endpgm')
    probs = sum((check(x, name) for x in segs), [])
    txt = '.p2align 8\n.type %s,@function\n' % name + e.text() + kernel_desc(name, 256, 96, 256)
    return txt, LDS, probs

if __name__ == '__main__':
    t, lds, pr = gen_k1()
    open('k1.s', 'w').write('.amdgcn_target "amdgcn-amd-amdhsa--gfx950"\n.text\n' + t)
    print(len(t), lds, len(pr))
```

```python
from asmlib import *
from common import *
import struct
def f2u(x): return struct.unpack('<I', struct.pack('<f', x))[0]

def gen_k2(name='oproj_kernel', diag=False, store_mod=''):
    e = Emitter(name)
    WB = 76800
    LDS = WB + 2048
    sWO, sO, sX, sWS = 4, 8, 12, 16
    sPX, sPWO, sPWS = 20, 22, 24
    sw, sTG, sNW, sT, sT0, sT1, sOFF = 26, 27, 28, 29, 30, 31, 32
    sHC, sSS = 36, 40
    sTS = 48
    vB = lambda s: 4*s
    vACC = lambda c: 72 + 4*c
    vAW = 88
    vA = lambda st, c: 92 + 16*st + 4*c
    vWB = lambda st: 124 + 4*st
    vX = lambda c: 132 + 2*c
    vXM = 140
    vRA = [141, 142, 143, 144]; vRB = [145, 146, 147, 148]
    vD = [149, 150]
    vL, vL16, vROW, vG, vWA = 151, 152, 153, 154, 155
    vOFF = 156
    e.i(f'{name}:')
    e.i('s_cmp_ge_u32 s2, 234')
    e.i(f's_cbranch_scc1 {name}_done')
    if diag: e.i(f's_memrealtime s[{sTS}:{sTS+1}]')
    e.i(f's_load_dwordx2 s[{sPX}:{sPX+1}], s[0:1], {ARG_X}')
    e.i(f's_load_dwordx2 s[{sPWO}:{sPWO+1}], s[0:1], {ARG_WO}')
    e.i(f's_load_dwordx2 s[{sPWS}:{sPWS+1}], s[0:1], {ARG_WS}')
    e.i('v_lshrrev_b32 v1, 6, v0')
    e.i(f'v_and_b32 v{vL}, 63, v0')
    e.i(f'v_readfirstlane_b32 s{sw}, v1')
    e.i(f's_mul_i32 s{sTG}, s2, 7282')
    e.i(f's_lshr_b32 s{sTG}, s{sTG}, 16')
    e.i(f's_mul_i32 s{sT0}, s{sTG}, 9')
    e.i(f's_sub_u32 s{sNW}, s2, s{sT0}')
    e.i(f's_mul_i32 s{sT}, s{sTG}, 5')
    e.i(f's_add_u32 s{sT}, s{sT}, s{sw}')
    e.i(f'v_lshlrev_b32 v{vL16}, 4, v{vL}')
    e.i(f'v_lshrrev_b32 v{vG}, 4, v{vL}')
    e.i(f'v_and_b32 v2, 15, v{vL}')
    e.i(f's_lshl_b32 s{sT0}, s{sT}, 4')
    e.i(f'v_add_u32 v{vROW}, s{sT0}, v2')
    e.i(f'v_mul_u32_u24 v3, 1152, v{vROW}')
    e.i(f'v_lshl_add_u32 v{vOFF}, v{vG}, 4, v3')
    e.i(f's_lshl_b32 s{sT0}, s{sNW}, 7')
    e.i(f'v_lshl_add_u32 v157, v{vG}, 3, v3')
    e.i(f'v_add_u32 v157, s{sT0}, v157')
    e.i(f'v_lshlrev_b32 v158, 2, v{vROW}')
    e.i(f'v_lshrrev_b32 v6, 3, v{vL}')
    e.i(f'v_bfe_u32 v7, v{vL}, 4, 1')
    e.i(f'v_and_b32 v8, 7, v{vL}')
    e.i('v_mul_u32_u24 v6, 1152, v6')
    e.i(f's_and_b32 s{sT0}, s{sw}, 1')
    for k in range(2):
        e.i(f's_xor_b32 s{sT1}, s{sT0}, {k}')
        e.i(f's_lshl_b32 s{sT1}, s{sT1}, 1')
        e.i(f'v_or_b32 v9, s{sT1}, v7')
        e.i('v_lshlrev_b32 v9, 1, v9')
        e.i('v_xor_b32 v9, v9, v8')
        e.i(f'v_lshl_add_u32 v{vD[k]}, v9, 4, v6')
    e.i(f'v_bfe_u32 v6, v{vL}, 2, 2')
    e.i(f'v_lshl_add_u32 v7, v{vG}, 3, v6')
    e.i('v_lshlrev_b32 v7, 7, v7')
    e.i(f'v_and_b32 v8, 3, v{vL}')
    e.i('v_lshl_add_u32 v7, v8, 3, v7')
    e.i('v_lshrrev_b32 v6, 1, v6')
    e.i(f'v_and_b32 v8, 1, v{vG}')
    e.i('v_lshl_or_b32 v6, v8, 1, v6')
    e.i(f'v_lshl_add_u32 v{vRA[0]}, v6, 5, v7')
    for c in range(1, 4): e.i(f'v_xor_b32 v{vRA[c]}, {32*c}, v{vRA[0]}')
    for c in range(4): e.i(f'v_add_u32 v{vRB[c]}, 0x10000, v{vRA[c]}')
    e.i(f'v_lshlrev_b32 v{vWA}, 4, v{vG}')
    e.i(f'v_add_u32 v{vWA}, {WB}, v{vWA}')
    e.i('s_waitcnt lgkmcnt(0)')
    srd(e, sWO, sPWO, sPWO+1, 0, D*D*2)
    srd(e, sO, sPWS, sPWS+1, WS_O, MAT_BYTES)
    srd(e, sX, sPX, sPX+1, 0, MAT_BYTES)
    srd(e, sWS, sPWS, sPWS+1, WS_WB, 1152)
    e.i(f's_mov_b32 m0, {WB}')
    e.i('s_nop 0')
    e.i(f'buffer_load_dwordx4 v{vL16}, s[{sWS}:{sWS+3}], 0 offen lds', 'wb0')
    e.i(f'buffer_load_dwordx4 v{vL16}, s[{sWS}:{sWS+3}], 0 offen offset:1024 lds', 'wb1')
    e.i(f's_mul_i32 s{sOFF}, s{sw}, 9216')
    e.i(f's_lshl_b32 s{sT0}, s{sNW}, 7')
    e.i(f's_add_u32 s{sOFF}, s{sOFF}, s{sT0}')
    e.i(f's_lshl_b32 s{sT0}, s{sw}, 10')
    for st in range(3):
        for k in range(6):
            s = 6*st + k
            e.i(f'buffer_load_dwordx4 v[{vB(s)}:{vB(s)+3}], v{vOFF}, s[{sO}:{sO+3}], 0 offen offset:{64*s}', ('B', s))
            if k < 5:
                t = 5*st + k
                e.i(f's_add_u32 m0, s{sT0}, {t*5*1024}')
                if t: e.i(f's_add_u32 s{sOFF}, s{sOFF}, {5*9216}')
                else: e.i('s_nop 0')
                e.i(f'buffer_load_dwordx4 v{vD[t & 1]}, s[{sWO}:{sWO+3}], s{sOFF} offen lds', ('A', t))
    srd(e, sWS, sPWS, sPWS+1, WS_XM, S*4)
    tx = [e.i(f'buffer_load_dwordx2 v[{vX(c)}:{vX(c)+1}], v157, s[{sX}:{sX+3}], 0 offen offset:{32*c}') for c in range(4)]
    txm = e.i(f'buffer_load_dword v{vXM}, v158, s[{sWS}:{sWS+3}], 0 offen')
    srd(e, sHC, sPWS, sPWS+1, WS_HC, MAT_BYTES)
    srd(e, sSS, sPWS, sPWS+1, WS_SS, S*64)
    rt = {}
    def reads(s):
        st = s & 1; tg = []
        R = vRA if s < 16 else vRB
        base = (s if s < 16 else s - 16)*4096
        for c in range(4):
            tg.append(e.i(f'ds_read_b64_tr_b16 v[{vA(st,c)}:{vA(st,c)+1}], v{R[c]} offset:{base}'))
            tg.append(e.i(f'ds_read_b64_tr_b16 v[{vA(st,c)+2}:{vA(st,c)+3}], v{R[c]} offset:{base + 512}'))
        tg.append(e.i(f'ds_read_b128 v[{vWB(st)}:{vWB(st)+3}], v{vWA} offset:{64*s}'))
        rt[s] = tg
    for st in range(3):
        e.wait(vm=['wb0', 'wb1'] + [('B', s) for s in range(6*st, 6*st + 6)] + [('A', t) for t in range(5*st, 5*st + 5)])
        e.i('s_barrier')
        reads(6*st)
        for k in range(6):
            s = 6*st + k
            e.wait(lg=rt[s])
            if k < 5: reads(s + 1)
            sset = s & 1
            for c in range(4):
                cc = '0' if s == 0 else f'v[{vACC(c)}:{vACC(c)+3}]'
                e.i(f'v_mfma_f32_16x16x32_bf16 v[{vACC(c)}:{vACC(c)+3}], v[{vA(sset,c)}:{vA(sset,c)+3}], v[{vB(s)}:{vB(s)+3}], {cc}')
            cc = '0' if s == 0 else f'v[{vAW}:{vAW+3}]'
            e.i(f'v_mfma_f32_16x16x32_bf16 v[{vAW}:{vAW+3}], v[{vWB(sset)}:{vWB(sset)+3}], v[{vB(s)}:{vB(s)+3}], {cc}')
    e.wait(vm=tx + [txm])
    e.i('v_mov_b32 v0, 0xffff0000')
    e.nop(7)
    e.i(f'v_add_f32 v{vXM}, v{vXM}, v{vAW}')
    for c in range(4):
        a = vACC(c)
        e.i(f'v_lshlrev_b32 v1, 16, v{vX(c)}')
        e.i(f'v_and_b32 v2, v0, v{vX(c)}')
        e.i(f'v_lshlrev_b32 v3, 16, v{vX(c)+1}')
        e.i(f'v_and_b32 v4, v0, v{vX(c)+1}')
        for j in range(4):
            e.i(f'v_sub_f32 v{1+j}, v{1+j}, v{vXM}')
        for j in range(4):
            e.i(f'v_add_f32 v{a+j}, v{a+j}, v{1+j}')
    e.i(f'v_mul_f32 v6, v{vACC(0)}, v{vACC(0)}')
    e.i(f'v_mul_f32 v7, v{vACC(0)+1}, v{vACC(0)+1}')
    for k in range(2, 16):
        r = vACC(0) + k
        e.i(f'v_fma_f32 v{6 + (k & 1)}, v{r}, v{r}, v{6 + (k & 1)}')
    for p in range(2):
        for h in range(2):
            a = vACC(2*p + h)
            e.i(f'v_cvt_pk_bf16_f32 v{8+4*p+2*h}, v{a}, v{a+1}')
            e.i(f'v_cvt_pk_bf16_f32 v{9+4*p+2*h}, v{a+2}, v{a+3}')
    e.i('v_add_f32 v6, v6, v7')
    e.i(f's_mul_i32 s{sT0}, s{sT}, 18')
    e.i(f's_lshl_b32 s{sT1}, s{sNW}, 1')
    e.i(f's_add_u32 s{sT0}, s{sT0}, s{sT1}')
    e.i(f's_lshl_b32 s{sT0}, s{sT0}, 10')
    e.i(f'buffer_store_dwordx4 v[8:11], v{vL16}, s[{sHC}:{sHC+3}], s{sT0} offen {store_mod}')
    e.i(f'buffer_store_dwordx4 v[12:15], v{vL16}, s[{sHC}:{sHC+3}], s{sT0} offen offset:1024 {store_mod}')
    for swp in ('v_permlane16_swap_b32', 'v_permlane32_swap_b32'):
        e.i('v_mov_b32 v7, v6')
        e.nop(2)
        e.i(f'{swp} v6, v7')
        e.nop(1)
        e.i('v_add_f32 v6, v6, v7')
    e.i(f'v_lshlrev_b32 v5, 6, v{vROW}')
    e.i(f's_lshl_b32 s{sT0}, s{sNW}, 2')
    e.i(f'v_add_u32 v5, s{sT0}, v5')
    e.i(f'v_lshlrev_b32 v4, 2, v{vROW}')
    srd(e, sWS, sPWS, sPWS+1, WS_HM, S*4)
    e.i('s_mov_b64 exec, 0xffff')
    e.i(f'buffer_store_dword v6, v5, s[{sSS}:{sSS+3}], 0 offen {store_mod}')
    e.i(f's_cmp_lg_u32 s{sNW}, 0')
    e.i(f's_cbranch_scc1 {name}_nohm')
    e.i(f'buffer_store_dword v{vXM}, v4, s[{sWS}:{sWS+3}], 0 offen {store_mod}')
    e.i(f'{name}_nohm:')
    if diag:
        e.i('s_mov_b64 exec, -1')
        e.i('s_waitcnt vmcnt(0)')
        e.i(f's_memrealtime s[{sTS+2}:{sTS+3}]')
        e.i('s_waitcnt lgkmcnt(0)')
        srd(e, sHC, sPWS, sPWS+1, WS_TS + 1*0x10000, 0x10000)
        e.i(f's_mul_i32 s{sT0}, s2, 5'); e.i(f's_add_u32 s{sT0}, s{sT0}, s{sw}'); e.i(f's_lshl_b32 s{sT0}, s{sT0}, 4')
        for k in range(4): e.i(f'v_mov_b32 v{k}, s{sTS+k}')
        e.i('v_mov_b32 v4, 0')
        e.i(f'buffer_store_dwordx4 v[0:3], v4, s[{sHC}:{sHC+3}], s{sT0} offen')
        e.i('s_waitcnt vmcnt(0)')
    e.i(f'{name}_done:')
    e.i('s_endpgm')
    probs = check(e.ins, name)
    txt = '.p2align 8\n.type %s,@function\n' % name + e.text() + kernel_desc(name, 160, 64, 160)
    return txt, LDS, probs

if __name__ == '__main__':
    t, lds, pr = gen_k2()
    open('k2.s', 'w').write('.amdgcn_target "amdgcn-amd-amdhsa--gfx950"\n.text\n' + t)
    print(len(t), lds, len(pr))
```

```python
from asmlib import *
from common import *
import struct

C0 = -2.0 * 1.4426950408889634 * 0.7978845608028654
C1 = C0 * 0.044715
def f2u(x): return struct.unpack('<I', struct.pack('<f', x))[0]

def gen_k3(name='ffn_kernel', NS=8, BG=2, P=None, PB=None, NSB=8, diag=False, store_mod='', stamps=(), exp='',
           NA1=4, NA2=4, dmaslot=0, wevery=1):
    if P is None: P = NS - BG
    if PB is None: PB = NSB - BG
    e = Emitter(name)
    RING = 0
    HH = NS * 8192
    LDS = HH + 73728
    assert NS <= 8
    vB = lambda q, s: (s*2 + q)*4
    acc1 = lambda st, mat, cc, q: 144 + 32*st + ((mat*2 + cc)*2 + q)*4
    acc2 = lambda st, cc, q: 72 + 32*st + (cc*2 + q)*4
    ASET1 = [208, 212, 216, 220, 248 ]
    ASET2 = [208, 212, 216, 220, 136, 140, 144, 148]
    vPK = lambda q: 224 + 4*q
    vT = [232, 233, 234, 235]
    vCA = [236, 239]; vCB = [237, 240]; vV = [238, 241]
    vRA = [242, 243]
    vRH = 244
    vD1, vD1H = 245, 246
    vHW = 247
    vBS = 252
    vHWF = 253
    vR2 = [248, 249, 250, 251]
    vL16 = 254
    vX = 255
    NA1 = min(NA1, 5); assert NA2 <= 6
    sWG, sWD, sHC, sP, sWU = 4, 8, 12, 16, 52
    sPG, sPU, sPD, sPWS = 20, 22, 24, 26
    sw, sWB, sRB, sJ, sROT = 28, 29, 30, 31, 32
    sFF, sFH = 33, 34
    sOFF, sBOFF, sT0 = 35, 36, 37
    sFB = 38
    sPO = 39
    sKS = 40
    sMQ, sFHW = 41, 42
    sT1, sT2, sO2 = 43, 44, 45
    sFR = [46, 47, 48, 49]
    sTS = 56
    sST = 60
    e.i(f'{name}:')
    e.i('s_cmp_ge_u32 s2, 256')
    e.i(f's_cbranch_scc1 {name}_done')
    if diag: e.i(f's_memrealtime s[{sTS}:{sTS+1}]')
    e.i(f's_load_dwordx4 s[{sPG}:{sPG+3}], s[0:1], {ARG_WG}')
    e.i(f's_load_dwordx2 s[{sPD}:{sPD+1}], s[0:1], {ARG_WD}')
    e.i(f's_load_dwordx2 s[{sPWS}:{sPWS+1}], s[0:1], {ARG_WS}')
    e.i('v_lshrrev_b32 v1, 6, v0')
    e.i(f'v_and_b32 v{vX}, 63, v0')
    e.i(f'v_readfirstlane_b32 s{sw}, v1')
    e.i(f's_and_b32 s{sJ}, s2, 7')
    e.i(f's_lshl_b32 s{sJ}, s{sJ}, 1')
    e.i(f's_lshr_b32 s{sT0}, s2, 3')
    e.i(f's_and_b32 s{sT0}, s{sT0}, 1')
    e.i(f's_add_u32 s{sJ}, s{sJ}, s{sT0}')
    e.i(f's_lshr_b32 s{sRB}, s2, 4')
    e.i(f's_and_b32 s{sROT}, s{sRB}, 3')
    e.i(f's_mul_i32 s{sT1}, s{sJ}, 288')
    e.i(f's_and_b32 s{sT0}, s{sJ}, 1')
    e.i(f's_lshl_b32 s{sT2}, s{sT0}, 5')
    e.i(f's_add_u32 s{sFF}, s{sT1}, s{sT2}')
    e.i(f's_xor_b32 s{sT0}, s{sT0}, 1')
    e.i(f's_lshl_b32 s{sT2}, s{sT0}, 8')
    e.i(f's_add_u32 s{sFH}, s{sT1}, s{sT2}')
    e.i(f's_and_b32 s{sMQ}, s{sw}, 3')
    e.i(f's_lshl_b32 s{sWB}, s{sMQ}, 10')
    e.i(f's_lshr_b32 s{sFHW}, s{sw}, 2')
    for wi in range(4):
        e.i(f's_add_u32 s{sT0}, s{sROT}, {wi}')
        e.i(f's_and_b32 s{sT0}, s{sT0}, 3')
        e.i(f's_lshl_b32 s{sT0}, s{sT0}, 6')
        e.i(f's_add_u32 s{sT0}, s{sT0}, s{sFF}')
        e.i(f's_mul_i32 s{sFR[wi]}, s{sT0}, 1152')
    L = vX
    e.i(f'v_lshlrev_b32 v{vL16}, 4, v{L}')
    e.i(f'v_lshrrev_b32 v2, 4, v{L}')
    e.i(f'v_bfe_u32 v3, v{L}, 2, 2')
    e.i(f'v_and_b32 v4, 3, v{L}')
    e.i(f'v_lshl_add_u32 v5, v2, 2, v3')
    e.i('v_bfe_u32 v6, v5, 1, 2')
    e.i(f's_lshl_b32 s{sT0}, s{sFHW}, 1')
    e.i(f'v_xor_b32 v6, s{sT0}, v6')
    e.i('v_lshlrev_b32 v7, 7, v5')
    e.i('v_lshl_add_u32 v7, v4, 3, v7')
    e.i(f'v_lshl_add_u32 v{vRA[0]}, v6, 5, v7')
    e.i(f'v_xor_b32 v{vRA[1]}, 32, v{vRA[0]}')
    e.i('v_and_b32 v6, 1, v2')
    e.i(f'v_xor_b32 v6, s{sFHW}, v6')
    e.i('v_lshlrev_b32 v7, 6, v5')
    e.i('v_lshl_add_u32 v7, v4, 3, v7')
    e.i(f'v_lshl_add_u32 v{vRH}, v6, 5, v7')
    e.i(f'v_lshrrev_b32 v6, 3, v{L}')
    e.i(f'v_bfe_u32 v7, v{L}, 4, 2')
    e.i('v_lshlrev_b32 v7, 1, v7')
    e.i(f'v_and_b32 v8, 7, v{L}')
    e.i('v_xor_b32 v8, v7, v8')
    e.i(f's_lshl_b32 s{sT0}, s{sMQ}, 3')
    e.i(f'v_add_u32 v9, s{sT0}, v6')
    e.i(f's_mov_b32 s{sT1}, 9216')
    e.i(f'v_mul_lo_u32 v9, v9, s{sT1}')
    e.i(f'v_lshl_add_u32 v{vD1}, v8, 4, v9')
    e.i(f'v_lshrrev_b32 v6, 2, v{L}')
    e.i(f'v_bfe_u32 v7, v{L}, 4, 1')
    e.i('v_lshlrev_b32 v7, 1, v7')
    e.i(f'v_and_b32 v8, 3, v{L}')
    e.i('v_xor_b32 v8, v7, v8')
    e.i(f's_lshl_b32 s{sT0}, s{sMQ}, 4')
    e.i(f'v_add_u32 v9, s{sT0}, v6')
    e.i(f'v_mul_lo_u32 v9, v9, s{sT1}')
    e.i(f'v_lshl_add_u32 v{vD1H}, v8, 4, v9')
    e.i(f's_mul_i32 s{sT0}, s{sMQ}, 18432')
    e.i(f's_add_u32 s{sT0}, s{sT0}, {HH}')
    e.i(f'v_add_u32 v{vHW}, s{sT0}, v{vL16}')
    e.i(f's_lshl_b32 s{sT0}, s{sFHW}, 11')
    e.i(f'v_add_u32 v{vHWF}, s{sT0}, v{vHW}')
    e.i(f's_lshl_b32 s{sT0}, s{sMQ}, 11')
    e.i(f's_add_u32 s{sT0}, s{sT0}, {HH}')
    e.i(f'v_add_u32 v{vBS}, s{sT0}, v{vL16}')
    e.i(f'v_and_b32 v6, 15, v{L}')
    e.i(f's_lshl_b32 s{sT0}, s{sRB}, 7')
    e.i(f's_lshl_b32 s{sT1}, s{sMQ}, 5')
    e.i(f's_add_u32 s{sT0}, s{sT0}, s{sT1}')
    e.i(f'v_add_u32 v6, s{sT0}, v6')
    e.i('v_lshlrev_b32 v6, 6, v6')
    e.i('v_lshl_add_u32 v6, v2, 4, v6')
    e.i('s_waitcnt lgkmcnt(0)')
    srd(e, sWG, sPG, sPG+1, 0, D*F*2)
    srd(e, sWU, sPU, sPU+1, 0, D*F*2)
    srd(e, sWD, sPD, sPD+1, 0, D*F*2)
    srd(e, sHC, sPWS, sPWS+1, WS_HC, MAT_BYTES)
    srd(e, sP, sPWS, sPWS+1, WS_SS, S*64)
    tss = [e.i(f'buffer_load_dwordx4 v[{16+4*q}:{19+4*q}], v6, s[{sP}:{sP+3}], 0 offen offset:{1024*q}') for q in range(2)]
    def a_dma(t):
        slot = t % NS
        r = [f's_add_u32 m0, s{sWB}, {RING + slot*8192}']
        m2 = f's_add_u32 m0, s{sWB}, {RING + slot*8192 + 4096}'
        if t < 81:
            if t < 72:
                wi, s = divmod(t, 18)
                if s == 0:
                    r += [f's_add_u32 s{sT0}, s{sROT}, {wi}', f's_and_b32 s{sT0}, s{sT0}, 3', f's_lshl_b32 s{sT0}, s{sT0}, 7',
                          f's_lshl_b32 s{sT1}, s{sFF}, 1', f's_add_u32 s{sOFF}, s{sT1}, s{sT0}']
                else: r.append(f's_add_u32 s{sOFF}, s{sOFF}, {32*9216}')
                vo = vD1
            else:
                sp = t - 72
                if sp == 0: r.append(f's_lshl_b32 s{sOFF}, s{sFH}, 1')
                else: r.append(f's_add_u32 s{sOFF}, s{sOFF}, {64*9216}')
                vo = vD1H
            r.append((f'buffer_load_dwordx4 v{vo}, s[{sWG}:{sWG+3}], s{sOFF} offen lds', ('A', t, 0)))
            r += [m2, 's_nop 0', (f'buffer_load_dwordx4 v{vo}, s[{sWU}:{sWU+3}], s{sOFF} offen lds', ('A', t, 1))]
            return r
        if t < 117:
            swi, b = divmod(t - 81, 9)
            if b == 0:
                r += [f's_add_u32 s{sT0}, s{sROT}, {swi}', f's_and_b32 s{sT0}, s{sT0}, 3', f's_lshl_b32 s{sFB}, s{sT0}, 8']
            if b == 8: r += [f's_mul_i32 s{sOFF}, s{sFH}, 1152', f's_add_u32 s{sOFF}, s{sOFF}, s{sFB}']
            elif b % 2 == 0: r.append(f's_add_u32 s{sOFF}, s{sFR[b//2]}, s{sFB}')
            else: r.append(f's_add_u32 s{sOFF}, s{sOFF}, {32*1152}')
            vo, d2 = vD1, 16*1152
        else:
            sp = t - 117
            if sp < 4: r.append(f's_add_u32 s{sOFF}, s{sFR[sp]}, 1024')
            else: r += [f's_mul_i32 s{sOFF}, s{sFH}, 1152', f's_add_u32 s{sOFF}, s{sOFF}, 1024']
            vo, d2 = vD1H, 32*1152
        r.append((f'buffer_load_dwordx4 v{vo}, s[{sWD}:{sWD+3}], s{sOFF} offen lds', ('A', t, 0)))
        r += [m2, f's_add_u32 s{sO2}, s{sOFF}, {d2}', (f'buffer_load_dwordx4 v{vo}, s[{sWD}:{sWD+3}], s{sO2} offen lds', ('A', t, 1))]
        return r
    def b_dma(t):
        r = [f's_add_u32 m0, s{sWB}, {HH + (t % NSB)*8192}']
        if t == 0:
            r += [f's_lshl_b32 s{sBOFF}, s{sRB}, 3', f's_add_u32 s{sBOFF}, s{sBOFF}, s{sMQ}', f's_mul_i32 s{sBOFF}, s{sBOFF}, {18*1024}']
        else:
            r.append(f's_add_u32 s{sBOFF}, s{sBOFF}, 1024')
        r.append((f'buffer_load_dwordx4 v{vL16}, s[{sHC}:{sHC+3}], s{sBOFF} offen lds', ('B', t, 0)))
        r += [f's_add_u32 m0, s{sWB}, {HH + (t % NSB)*8192 + 4096}', f's_add_u32 s{sO2}, s{sBOFF}, {4*18*1024}',
              (f'buffer_load_dwordx4 v{vL16}, s[{sHC}:{sHC+3}], s{sO2} offen lds', ('B', t, 1))]
        return r
    def emit(lst):
        for x in lst:
            txt = x[0] if isinstance(x, tuple) else x
            if isinstance(txt, str):
                if 'nodma' in exp and ' lds' in txt and 'buffer_load' in txt and len(e.ins) > 300: continue
                if 'novalu' in exp and txt.startswith('v_') and len(e.ins) > 300: continue
                if 'nostore' in exp and txt.startswith('buffer_store'): continue
            if isinstance(x, tuple): e.i(x[0], x[1])
            elif callable(x): x()
            else: e.i(x)
    def stats():
        e.wait(vm=tss)
        e.i('v_cmp_gt_u32 vcc, 2, v2')
        e.i('v_cmp_gt_u32 s[50:51], 3, v2')
        e.nop(1)
        for q in range(2):
            b = 16 + 4*q
            for k in (1, 2, 3): e.i(f'v_cndmask_b32 v{b+k}, 0, v{b+k}, vcc')
            e.i(f'v_cndmask_b32 v{b}, 0, v{b}, s[50:51]')
            e.i(f'v_add_f32 v{b}, v{b}, v{b+1}')
            e.i(f'v_add_f32 v{b+2}, v{b+2}, v{b+3}')
            e.i(f'v_add_f32 v{b}, v{b}, v{b+2}')
        for swp in ('v_permlane16_swap_b32', 'v_permlane32_swap_b32'):
            for q in range(2): e.i(f'v_mov_b32 v{17+4*q}, v{16+4*q}')
            e.nop(2)
            for q in range(2): e.i(f'{swp} v{16+4*q}, v{17+4*q}')
            e.nop(1)
            for q in range(2): e.i(f'v_add_f32 v{16+4*q}, v{16+4*q}, v{17+4*q}')
            e.nop(1)
        e.i(f's_mov_b32 s{sT0}, {f2u(1.0/576)}')
        e.i(f's_mov_b32 s{sT1}, {f2u(C0)}')
        e.i(f's_mov_b32 s{sT2}, {f2u(C1)}')
        for q in range(2):
            b = 16 + 4*q
            e.i(f'v_mov_b32 v{b+1}, {f2u(1e-5)}')
            e.i(f'v_fma_f32 v{vV[q]}, v{b}, s{sT0}, v{b+1}')
            e.i(f'v_rsq_f32 v{b}, v{vV[q]}')
            e.nop(1)
            e.i(f'v_mul_f32 v{vCA[q]}, s{sT1}, v{b}')
            e.i(f'v_mul_f32 v{b+1}, v{b}, v{b}')
            e.i(f'v_mul_f32 v{b+1}, v{b+1}, v{b}')
            e.i(f'v_mul_f32 v{vCB[q]}, s{sT2}, v{b+1}')
        e.i(f's_mul_i32 s{sT0}, s{sJ}, {MAT_BYTES}')
        e.i(f's_add_u32 s{sT0}, s{sT0}, {WS_P}')
        e.i(f's_add_u32 s{sP}, s{sPWS}, s{sT0}')
        e.i(f's_addc_u32 s{sP+1}, s{sPWS+1}, 0')
        e.i(f's_mov_b32 s{sP+2}, {MAT_BYTES}')
        e.i(f's_mov_b32 s{sP+3}, 0x20000')
        e.i(f's_lshl_b32 s{sT0}, s{sRB}, 3')
        e.i(f's_lshl_b32 s{sT1}, s{sMQ}, 1')
        e.i(f's_add_u32 s{sT0}, s{sT0}, s{sT1}')
        e.i(f's_mul_i32 s{sPO}, s{sT0}, {18*1024}')

    NT = 122
    def frags(t):
        slot = RING + (t % NS)*8192
        out = []
        if t < 72:
            wi, s = divmod(t, 18); st = wi & 1
            for mat in range(2):
                for cc in range(2):
                    out.append(dict(ar=vRA[cc], off=slot + mat*4096, off2=2048,
                                    mf=[(acc1(st, mat, cc, q), vB(q, s), s == 0) for q in range(2)]))
        elif t < 81:
            sp = t - 72
            for kp in range(2):
                s = 2*sp + kp
                for mat in range(2):
                    out.append(dict(ar=vRH, off=slot + mat*4096 + kp*2048, off2=1024,
                                    mf=[(acc1(0, mat, 0, q), vB(q, s), s == 0) for q in range(2)]))
        elif t < 117:
            swi, b = divmod(t - 81, 9); st = swi & 1
            for cc in range(4):
                out.append(dict(ar=vR2[cc], off=slot, off2=4096,
                                mf=[(acc2(st, cc, q), vB(q, b), b == 0) for q in range(2)]))
        else:
            sp = t - 117
            for kp in range(2):
                b = 2*sp + kp
                if b > 8: continue
                for cc in range(2):
                    out.append(dict(ar=vRA[cc], off=slot + kp*4096, off2=2048,
                                    mf=[(acc2(0, cc, q), vB(q, b), b == 0) for q in range(2)]))
        return out
    flist = [(t, a) for t in range(NT) for a in range(len(frags(t)))]
    fidx = {k: i for i, k in enumerate(flist)}
    SWITCH = fidx[(90, 0)]
    def fset(i):
        if i < SWITCH: return ASET1[i % NA1] if NA1 <= 4 or True else None
        return ASET2[(i - SWITCH) % NA2]
    def dist(i):
        return (NA1 if i < SWITCH else NA2) - 1
    rtag = {}; bread = {}; hread = {}
    def rd_half(i, h):
        t, a = flist[i]; f = frags(t)[a]; ra = fset(i)
        if 'noread' in exp and t > 0:
            rtag.setdefault(i, []); return
        tg = e.i(f'ds_read_b64_tr_b16 v[{ra+2*h}:{ra+2*h+1}], v{f["ar"]} offset:{f["off"] + h*f["off2"]}')
        rtag.setdefault(i, []).append(tg)
    def read_b(t):
        def fn():
            bread[t] = [e.i(f'ds_read_b128 v[{vB(q,t)}:{vB(q,t)+3}], v{vBS} offset:{(t % NSB)*8192 + q*1024}') for q in range(2)]
        return [fn]
    def read_h(b):
        def fn():
            hread[b] = [e.i(f'ds_read_b128 v[{vB(q,b)}:{vB(q,b)+3}], v{vHW} offset:{(b*2+q)*1024}') for q in range(2)]
        return fn
    def geglu_ops(st, ncc):
        ops = []
        for q in range(2):
            for cc in range(ncc):
                a = [acc1(st, 0, cc, q) + jj for jj in range(4)]
                b = [acc1(st, 1, cc, q) + jj for jj in range(4)]
                T = vT
                for jj in range(4): ops.append(f'v_mul_f32 v{T[jj]}, v{a[jj]}, v{a[jj]}')
                for jj in range(4): ops.append(f'v_fma_f32 v{T[jj]}, v{T[jj]}, v{vCB[q]}, v{vCA[q]}')
                for jj in range(4): ops.append(f'v_mul_f32 v{T[jj]}, v{a[jj]}, v{T[jj]}')
                for jj in range(4): ops.append(f'v_exp_f32 v{T[jj]}, v{T[jj]}')
                for jj in range(4): ops.append(f'v_mul_f32 v{b[jj]}, v{a[jj]}, v{b[jj]}')
                for jj in range(4): ops.append(f'v_fma_f32 v{T[jj]}, v{T[jj]}, v{vV[q]}, v{vV[q]}')
                for jj in range(4): ops.append(f'v_rcp_f32 v{T[jj]}, v{T[jj]}')
                for jj in range(4): ops.append(f'v_mul_f32 v{b[jj]}, v{b[jj]}, v{T[jj]}')
                ops.append(f'v_cvt_pk_bf16_f32 v{vPK(q)+2*cc}, v{b[0]}, v{b[1]}')
                ops.append(f'v_cvt_pk_bf16_f32 v{vPK(q)+2*cc+1}, v{b[2]}, v{b[3]}')
        return ops
    def hh_write_full(wi):
        return [(f'ds_write_b128 v{vHWF}, v[{vPK(q)}:{vPK(q)+3}] offset:{wi*4096 + q*1024}', ('HW', wi, q)) for q in range(2)]
    def hh_write_half():
        return [f's_lshl_b32 s{sKS}, s{sFHW}, 3', f'v_add_u32 v{vT[0]}, s{sKS}, v{vHW}'] + \
               [(f'ds_write_b64 v{vT[0]}, v[{vPK(q)}:{vPK(q)+1}] offset:{8*2048 + q*1024}', ('HW', 'h', q)) for q in range(2)]
    def p2_epilogue(st, ncc, swi):
        ops = []
        if swi is not None:
            ops += [f's_add_u32 s{sT2}, s{sROT}, {swi}', f's_and_b32 s{sT2}, s{sT2}, 3', f's_lshl_b32 s{sT2}, s{sT2}, 12',
                    f's_lshl_b32 s{sKS}, s{sFHW}, 11', f's_add_u32 s{sT2}, s{sT2}, s{sKS}', f's_add_u32 s{sT2}, s{sT2}, s{sPO}']
        else:
            ops += [f's_lshl_b32 s{sKS}, s{sFHW}, 10', f's_add_u32 s{sT2}, s{sKS}, {16*1024}', f's_add_u32 s{sT2}, s{sT2}, s{sPO}']
        k = 0
        for q in range(2):
            for pp in range(ncc//2):
                pk = vPK(k & 1); k += 1
                for h in range(2):
                    cc = 2*pp + h; a = acc2(st, cc, q)
                    ops.append(f'v_cvt_pk_bf16_f32 v{pk+2*h}, v{a}, v{a+1}')
                    ops.append(f'v_cvt_pk_bf16_f32 v{pk+2*h+1}, v{a+2}, v{a+3}')
                off = q*18*1024 + pp*1024
                if off < 4096:
                    ops.append(f'buffer_store_dwordx4 v[{pk}:{pk+3}], v{vL16}, s[{sP}:{sP+3}], s{sT2} offen offset:{off} {store_mod}')
                else:
                    ops.append(f's_add_u32 s{sKS}, s{sT2}, {off}')
                    ops.append(f'buffer_store_dwordx4 v[{pk}:{pk+3}], v{vL16}, s[{sP}:{sP+3}], s{sKS} offen {store_mod}')
        return ops
    def p2_dma_full_setup():
        T = [0, 1, 2]
        return [f'v_lshrrev_b32 v{T[0]}, 4, v{L}', f's_lshl_b32 s{sT2}, s{sMQ}, 2', f'v_add_u32 v{T[0]}, s{sT2}, v{T[0]}',
                f'v_and_b32 v{T[1]}, 7, v{T[0]}', f'v_lshlrev_b32 v{T[1]}, 1, v{T[1]}', f'v_and_b32 v{T[2]}, 15, v{L}',
                f'v_xor_b32 v{T[2]}, v{T[1]}, v{T[2]}', f'v_mul_u32_u24 v{T[0]}, 1152, v{T[0]}', f'v_lshl_add_u32 v{vD1}, v{T[2]}, 4, v{T[0]}']
    def p2_dma_half_setup():
        T = [136, 137, 138]
        return [f'v_lshrrev_b32 v{T[0]}, 3, v{L}', f'v_bfe_u32 v{T[1]}, v{L}, 4, 2', f'v_lshlrev_b32 v{T[1]}, 1, v{T[1]}',
                f'v_and_b32 v{T[2]}, 7, v{L}', f'v_xor_b32 v{T[2]}, v{T[1]}, v{T[2]}', f's_lshl_b32 s{sT2}, s{sMQ}, 3',
                f'v_add_u32 v{T[0]}, s{sT2}, v{T[0]}', f'v_mul_u32_u24 v{T[0]}, 1152, v{T[0]}', f'v_lshl_add_u32 v{vD1H}, v{T[2]}, 4, v{T[0]}']
    def p2_read_setup():
        return [f'v_lshrrev_b32 v0, 4, v{L}', f'v_bfe_u32 v1, v{L}, 2, 2', f'v_lshl_add_u32 v0, v0, 2, v1',
                'v_and_b32 v1, 7, v0', f's_lshl_b32 s{sKS}, s{sFHW}, 2', f'v_xor_b32 v1, s{sKS}, v1',
                'v_lshlrev_b32 v0, 8, v0', f'v_and_b32 v2, 3, v{L}', 'v_lshl_add_u32 v0, v2, 3, v0',
                f'v_lshl_add_u32 v{vR2[0]}, v1, 5, v0'] + [f'v_xor_b32 v{vR2[cc]}, {32*cc}, v{vR2[0]}' for cc in range(1, 4)]
    fill = [[] for _ in range(NT + 1)]
    def spread(ops, t0, t1):
        n = t1 - t0; m = len(ops)
        for k in range(n): fill[t0 + k] += ops[k*m//n:(k+1)*m//n]
    for wi in range(3):
        t0 = 18*(wi+1)
        spread(geglu_ops(wi & 1, 2), t0 + 1, t0 + 17)
        fill[t0 + 17] += hh_write_full(wi)
    spread(geglu_ops(1, 2), 73, 82); fill[82] += hh_write_full(3)
    spread(geglu_ops(0, 1), 83, 87); fill[87] += hh_write_half()
    HBLK = {74: (0,), 75: (1,), 76: (2,), 77: (3,), 78: (4,), 79: (5,), 84: (6, 7), 88: (8,)}
    BARX = {84: [('HW', 3, 0), ('HW', 3, 1)], 88: [('HW', 'h', 0), ('HW', 'h', 1)], 72: [('HW', 2, 0), ('HW', 2, 1)]}
    for swi in range(3): spread(p2_epilogue(swi & 1, 4, swi), 81 + 9*(swi+1) + 1, 81 + 9*(swi+1) + 8)
    spread(p2_epilogue(1, 4, 3), 118, 121)
    setup_full_t = 73 if P <= 7 else None
    assert 71 - P < setup_full_t < 81 - P
    setup_read_t = 73
    assert NA1 <= 4 or True
    setup_half_t = 89
    assert 80 - P < setup_half_t < 117 - P

    def barrier_point(tb, grp):
        vm = []
        if grp == 0:
            for t in range(tb, min(tb + BG, NT - 1) + 1): vm += [('A', t, 0), ('A', t, 1)]
            for t in range(tb, min(tb + BG, 17) + 1): vm += [('B', t, 0), ('B', t, 1)]
        e.wait(vm=vm, lg=BARX.get(tb, []))
        if 'nobar' not in exp or tb == 0: e.i('s_barrier')
    def stamp(x):
        if diag and x in stamps:
            k = stamps.index(x)
            e.i(f's_memtime s[{sST+2*k}:{sST+1+2*k}]')
    def stream(grp):
        rtag.clear(); bread.clear(); hread.clear()
        if grp == 0:
            for t in range(max(P, PB)):
                if t < PB: emit(b_dma(t))
                if t < P: emit(a_dma(t))
        stats()
        barrier_point(0, grp)
        emit(read_b(0))
        nxt = 0
        for i in range(dist(0)): rd_half(i, 0); rd_half(i, 1)
        nxt = dist(0)
        for t in range(NT):
            e.c(f'---- step {t}')
            stamp(t)
            if t and (t % BG == 0 or t in BARX): barrier_point(t, grp)
            fr = frags(t)
            mem = []
            if grp == 0:
                if t + P < NT: mem += a_dma(t + P)
                if t + PB < 18: mem += b_dma(t + PB)
            lds = []
            if t + 1 < 18: lds += read_b(t + 1)
            lds += [read_h(b) for b in HBLK.get(t, ())]
            q = list(fill[t])
            if t == setup_read_t: q = p2_read_setup() + q
            if grp == 0 and t == setup_full_t: q = p2_dma_full_setup() + q
            if grp == 0 and t == setup_half_t: q = p2_dma_half_setup() + q
            nm = 2*len(fr)
            if dmaslot == 0: emit(mem); mem = []
            q = lds + q
            n = 0
            for a, f in enumerate(fr):
                i = fidx[(t, a)]
                need = list(rtag[i])
                bq = f['mf'][0][1]
                if t < 18: need += bread[t]
                if t >= 81: need += hread.get(bq // 8, [])
                e.wait(lg=need)
                ra = fset(i)
                for k, (acc, breg, zero) in enumerate(f['mf']):
                    c = '0' if zero else f'v[{acc}:{acc+3}]'
                    e.i(f'v_mfma_f32_16x16x32_bf16 v[{acc}:{acc+3}], v[{ra}:{ra+3}], v[{breg}:{breg+3}], {c}')
                    tgt = i + dist(min(i + 1, len(flist) - 1))
                    while nxt <= tgt and nxt < len(flist) and nxt < tgt:
                        rd_half(nxt, 0); rd_half(nxt, 1); nxt += 1
                    if nxt < len(flist) and nxt == tgt:
                        rd_half(nxt, k)
                        if k == 1: nxt += 1
                    lo, hi = n*len(q)//nm, (n+1)*len(q)//nm
                    emit(q[lo:hi]); n += 1
                    if mem and n == dmaslot: emit(mem); mem = []
            emit(mem)
        e.nop(8)
        emit(p2_epilogue(0, 2, None))
        e.i('s_waitcnt vmcnt(0)')
        if diag:
            e.i(f's_memrealtime s[{sTS+2}:{sTS+3}]')
            e.i('s_waitcnt lgkmcnt(0)')
            srd(e, sHC, sPWS, sPWS+1, WS_TS + 2*0x10000, 0x10000)
            e.i(f's_lshl_b32 s{sT0}, s2, 3'); e.i(f's_add_u32 s{sT0}, s{sT0}, s{sw}'); e.i(f's_lshl_b32 s{sT0}, s{sT0}, 4')
            for k in range(4): e.i(f'v_mov_b32 v{k}, s{sTS+k}')
            e.i('v_mov_b32 v4, 0')
            e.i(f'buffer_store_dwordx4 v[0:3], v4, s[{sHC}:{sHC+3}], s{sT0} offen')
            if stamps:
                e.i(f's_memtime s[{sST+2*len(stamps)}:{sST+1+2*len(stamps)}]')
                e.i('s_waitcnt lgkmcnt(0)')
                srd(e, sHC, sPWS, sPWS+1, WS_TS + 4*0x10000, 0x40000)
                e.i(f's_lshl_b32 s{sT0}, s2, 3'); e.i(f's_add_u32 s{sT0}, s{sT0}, s{sw}'); e.i(f's_lshl_b32 s{sT0}, s{sT0}, 7')
                for k in range(len(stamps) + 1):
                    e.i(f'v_mov_b32 v0, s{sST+2*k}')
                    e.i(f'buffer_store_dword v0, v4, s[{sHC}:{sHC+3}], s{sT0} offen offset:{4*k}')
            e.i('s_waitcnt vmcnt(0)')
        e.i('s_endpgm')
    e.i(f's_cmp_ge_u32 s{sw}, 4')
    e.i(f's_cbranch_scc1 {name}_grpB')
    common_n = len(e.ins)
    save = (list(e.vmq), list(e.lgq))
    stream(0)
    nA = len(e.ins)
    e.i(f'{name}_grpB:')
    e.vmq, e.lgq = list(save[0]), list(save[1])
    stream(1)
    segs = [e.ins[:nA], e.ins[:common_n] + e.ins[nA:]]
    e.i(f'{name}_done:')
    e.i('s_endpgm')
    probs = sum((check(x, name) for x in segs), [])
    txt = '.p2align 8\n.type %s,@function\n' % name + e.text() + kernel_desc(name, 256, 96, 256)
    return txt, LDS, probs

if __name__ == '__main__':
    t, lds, pr = gen_k3()
    print(len(t), lds, len(pr))
    open('k3.s', 'w').write('.amdgcn_target "amdgcn-amd-amdhsa--gfx950"\n.text\n' + t)
```

```python
from asmlib import *
from common import *

def gen_k4(name='reduce_kernel', diag=False, load_mod=''):
    e = Emitter(name)
    sP, sHC, sHM, sO = 4, 8, 12, 16
    sPWS, sPO = 20, 22
    sw, sG, sT, sS, sT0 = 24, 25, 26, 27, 28
    sOFFJ = 32
    sTS = 48
    e.i(f'{name}:')
    e.i('s_cmp_ge_u32 s2, 576')
    e.i(f's_cbranch_scc1 {name}_done')
    if diag: e.i(f's_memrealtime s[{sTS}:{sTS+1}]')
    e.i(f's_load_dwordx2 s[{sPWS}:{sPWS+1}], s[0:1], {ARG_WS}')
    e.i(f's_load_dwordx2 s[{sPO}:{sPO+1}], s[0:1], {ARG_OUT}')
    e.i('v_lshrrev_b32 v1, 6, v0')
    e.i('v_and_b32 v2, 63, v0')
    e.i(f'v_readfirstlane_b32 s{sw}, v1')
    e.i('v_lshlrev_b32 v3, 4, v2')
    e.i('v_and_b32 v4, 15, v2')
    e.i('v_lshrrev_b32 v5, 4, v2')
    e.i(f's_lshl_b32 s{sG}, s2, 2')
    e.i(f's_add_u32 s{sG}, s{sG}, s{sw}')
    e.i(f's_mul_i32 s{sT}, s{sG}, 3641')
    e.i(f's_lshr_b32 s{sT}, s{sT}, 16')
    e.i(f's_mul_i32 s{sT0}, s{sT}, 18')
    e.i(f's_sub_u32 s{sS}, s{sG}, s{sT0}')
    e.i(f's_lshl_b32 s{sG}, s{sG}, 10')
    for j in range(16):
        e.i(f's_add_u32 s{sOFFJ+j}, s{sG}, {j*MAT_BYTES}')
    e.i(f's_lshl_b32 s{sT0}, s{sT}, 4')
    e.i(f'v_add_u32 v6, s{sT0}, v4')
    e.i('v_lshlrev_b32 v7, 2, v6')
    e.i('v_mul_u32_u24 v8, 1152, v6')
    e.i('v_and_b32 v9, 1, v5')
    e.i('v_lshlrev_b32 v9, 5, v9')
    e.i('v_lshrrev_b32 v10, 1, v5')
    e.i('v_lshl_add_u32 v9, v10, 4, v9')
    e.i('v_add_u32 v8, v8, v9')
    e.i(f's_lshl_b32 s{sT0}, s{sS}, 6')
    e.i(f'v_add_u32 v8, s{sT0}, v8')
    e.i('s_waitcnt lgkmcnt(0)')
    srd(e, sP, sPWS, sPWS+1, WS_P, 16*MAT_BYTES)
    srd(e, sHC, sPWS, sPWS+1, WS_HC, MAT_BYTES)
    srd(e, sHM, sPWS, sPWS+1, WS_HM, S*4)
    srd(e, sO, sPO, sPO+1, 0, MAT_BYTES)
    th = e.i(f'buffer_load_dword v11, v7, s[{sHM}:{sHM+3}], 0 offen')
    tc = e.i(f'buffer_load_dwordx4 v[12:15], v3, s[{sHC}:{sHC+3}], s{sG} offen')
    tp = [e.i(f'buffer_load_dwordx4 v[{32+4*j}:{35+4*j}], v3, s[{sP}:{sP+3}], s{sOFFJ+j} offen {load_mod}') for j in range(16)]
    acc = list(range(16, 24))
    e.i('v_mov_b32 v24, 0xffff0000')
    e.wait(vm=[th, tc])
    for k in range(4):
        e.i(f'v_lshlrev_b32 v25, 16, v{12+k}')
        e.i(f'v_and_b32 v26, v24, v{12+k}')
        e.i(f'v_add_f32 v{acc[2*k]}, v11, v25')
        e.i(f'v_add_f32 v{acc[2*k+1]}, v11, v26')
    for j in range(16):
        e.wait(vm=[tp[j]])
        for k in range(4):
            r = 32 + 4*j + k
            e.i(f'v_lshlrev_b32 v{25+(k&1)*2}, 16, v{r}')
            e.i(f'v_and_b32 v{26+(k&1)*2}, v24, v{r}')
            e.i(f'v_add_f32 v{acc[2*k]}, v{acc[2*k]}, v{25+(k&1)*2}')
            e.i(f'v_add_f32 v{acc[2*k+1]}, v{acc[2*k+1]}, v{26+(k&1)*2}')
    for k in range(4):
        e.i(f'v_cvt_pk_bf16_f32 v{12+k}, v{acc[2*k]}, v{acc[2*k+1]}')
    e.nop(2)
    e.i('v_permlane16_swap_b32 v12, v14')
    e.i('v_permlane16_swap_b32 v13, v15')
    e.nop(1)
    e.i(f'buffer_store_dwordx4 v[12:15], v8, s[{sO}:{sO+3}], 0 offen')
    if diag:
        e.i('s_waitcnt vmcnt(0)')
        e.i(f's_memrealtime s[{sTS+2}:{sTS+3}]')
        e.i('s_waitcnt lgkmcnt(0)')
        srd(e, sHC, sPWS, sPWS+1, WS_TS + 3*0x10000, 0x10000)
        e.i(f's_lshl_b32 s{sT0}, s2, 2'); e.i(f's_add_u32 s{sT0}, s{sT0}, s{sw}'); e.i(f's_lshl_b32 s{sT0}, s{sT0}, 4')
        for k in range(4): e.i(f'v_mov_b32 v{k}, s{sTS+k}')
        e.i('v_mov_b32 v4, 0')
        e.i(f'buffer_store_dwordx4 v[0:3], v4, s[{sHC}:{sHC+3}], s{sT0} offen')
        e.i('s_waitcnt vmcnt(0)')
    e.i(f'{name}_done:')
    e.i('s_endpgm')
    probs = check(e.ins, name)
    txt = '.p2align 8\n.type %s,@function\n' % name + e.text() + kernel_desc(name, 96, 64, 96)
    return txt, 0, probs

if __name__ == '__main__':
    t, lds, pr = gen_k4()
    open('k4.s', 'w').write('.amdgcn_target "amdgcn-amd-amdhsa--gfx950"\n.text\n' + t)
    print(len(t), len(pr))
```

```python
import sys, json
from k3 import gen_k3
from k4 import gen_k4
try:
    from k2 import gen_k2
except ImportError: gen_k2 = None
try:
    from k1 import gen_k1
except ImportError: gen_k1 = None

HEADER = """; Fused pre-LN transformer block (dilated local attention + GEGLU FFN), gfx950.
"""
def build(path, diag=False, k1=None, k2=None, k3=None, k4=None, which=('k1','k2','k3','k4'), blk3=512):
    ks = []
    if 'k1' in which and gen_k1: ks.append(('attn_kernel', gen_k1('attn_kernel', diag=diag, **(k1 or {})), 256, 512))
    if 'k2' in which and gen_k2: ks.append(('oproj_kernel', gen_k2('oproj_kernel', diag=diag, **(k2 or {})), 234, 512))
    if 'k3' in which: ks.append(('ffn_kernel', gen_k3('ffn_kernel', diag=diag, **(k3 or {})), 256, blk3))
    if 'k4' in which: ks.append(('reduce_kernel', gen_k4('reduce_kernel', diag=diag, **(k4 or {})), 576, 256))
    s = HEADER
    launches = []
    nprob = 0
    for name, (txt, lds, probs), grid, block in ks:
        s += f'; @launch kernel={name} grid=({grid},1,1) block=({block},1,1) lds={lds}\n'
        launches.append((name, grid, block, lds)); nprob += len(probs)
    s += '.amdgcn_target "amdgcn-amd-amdhsa--gfx950"\n.text\n'
    for name, (txt, lds, probs), grid, block in ks:
        s += f'.globl {name}\n' + txt
    open(path, 'w').write(s)
    if '/bench/' in path: json.dump(launches, open(path + '.json', 'w'))
    print('built', path, len(s), 'bytes; hazards:', nprob)
    return launches

if __name__ == '__main__':
    out = sys.argv[1] if len(sys.argv) > 1 else 'full.s'
    kw = {}
    for a in sys.argv[2:]:
        if '=' in a:
            k, v = a.split('=', 1); kn, opt = k.split('.')
            kw.setdefault(kn, {})[opt] = eval(v)
    which = tuple(a for a in sys.argv[2:] if a in ('k1', 'k2', 'k3', 'k4')) or ('k1', 'k2', 'k3', 'k4')
    build(out, diag=('diag' in sys.argv), which=which, blk3=(256 if 'solo' in sys.argv else 512), **kw)
```

```python
S = 2048; D = 576; F = 4608
WS_O  = 0x000000
WS_HC = 0x240000
WS_SS = 0x480000
WS_XM = 0x4A0000
WS_HM = 0x4A2000
WS_WB = 0x4A4000
WS_TS = 0x4B0000
WS_FL = 0x540000
WS_P  = 0x600000
WS_HG = 0x1800000
NPART = 8
MAT_BYTES = 0x240000
ARG_X, ARG_WQKV, ARG_WO, ARG_BX, ARG_WG, ARG_WU, ARG_WD, ARG_OUT, ARG_DBG, ARG_WS = [8*i for i in range(10)]

def srd(e, s, lo, hi, off, size):
    if off:
        e.i(f's_add_u32 s{s}, s{lo}, {off}')
        e.i(f's_addc_u32 s{s+1}, s{hi}, 0')
    else:
        e.i(f's_mov_b32 s{s}, s{lo}')
        e.i(f's_mov_b32 s{s+1}, s{hi}')
    e.i(f's_mov_b32 s{s+2}, {size}')
    e.i(f's_mov_b32 s{s+3}, 0x20000')

def stamp_begin(e, s):
    e.i(f's_memrealtime s[{s}:{s+1}]')

def stamp_end(e, kidx, sbeg, send, ws_lo, ws_hi, ssrd, vtmp, wgid='s2', nw=8):
    e.i(f's_memrealtime s[{send}:{send+1}]')
    e.i('s_waitcnt lgkmcnt(0)')
    srd(e, ssrd, ws_lo, ws_hi, WS_TS + kidx*0x10000, 0x10000)
    return
```

```python
from asmlib import *
from common import *
import struct, math
def f2u(x): return struct.unpack('<I', struct.pack('<f', x))[0]

def gen_k1(name='attn_kernel', diag=False, store_mod='', prefetch=False, stamps=False, pf_t=(14, 14, 14), wmod='', xmod='', rotate=True, lprio=0, aprio=0, exp=''):
    e = Emitter(name)
    NS = 6; SLOT = 24576
    slot_of = lambda t: (t + 4) % NS
    QS, KS, VS, OS = 0, 15360, 30720, 56320
    CS, ST = NS*SLOT, NS*SLOT + 1024
    LDS = ST + 1024
    sX, sW, sO, sM = 4, 8, 12, 16
    sPX, sPW, sPWO, sPWS = 20, 22, 24, 26
    sPG, sPU, sPD = 28, 30, 32
    sw, sHG, sRB, sT0, sT1, sT2, sOFF, sMB = 34, 35, 36, 37, 38, 39, 40, 41
    sONE, sTILE, sR2, sK, sU = 42, 43, 44, 45, 46
    sTS = 48
    sST = 82
    vL, vG = 252, 253
    e.i(f'{name}:')
    e.i('s_cmp_ge_u32 s2, 256')
    e.i(f's_cbranch_scc1 {name}_done')
    if diag: e.i(f's_memrealtime s[{sTS}:{sTS+1}]')
    e.i(f's_load_dwordx4 s[{sPX}:{sPX+3}], s[0:1], {ARG_X}')
    e.i(f's_load_dwordx2 s[{sPWO}:{sPWO+1}], s[0:1], {ARG_WO}')
    e.i(f's_load_dwordx2 s[{sPWS}:{sPWS+1}], s[0:1], {ARG_WS}')
    if prefetch:
        e.i(f's_load_dwordx4 s[{sPG}:{sPG+3}], s[0:1], {ARG_WG}')
        e.i(f's_load_dwordx2 s[{sPD}:{sPD+1}], s[0:1], {ARG_WD}')
    e.i('v_lshrrev_b32 v1, 6, v0')
    e.i(f'v_and_b32 v{vL}, 63, v0')
    e.i(f'v_readfirstlane_b32 s{sw}, v1')
    e.i(f's_and_b32 s{sHG}, s2, 7')
    e.i(f's_lshr_b32 s{sRB}, s2, 3')
    e.i(f'v_lshrrev_b32 v{vG}, 4, v{vL}')
    if rotate:
        e.i(f's_mul_i32 s{sT0}, s{sRB}, 57')
        e.i(f's_lshr_b32 s{sT0}, s{sT0}, 9')
        e.i(f's_mul_i32 s{sT0}, s{sT0}, 9')
        e.i(f's_sub_u32 s{sR2}, s{sRB}, s{sT0}')
    else:
        e.i(f's_mov_b32 s{sR2}, 0')
    e.i(f's_lshl_b32 s{sT0}, s{sRB}, 6')
    e.i(f's_sub_u32 s{sT0}, s{sT0}, 16')
    e.i(f's_lshl_b32 s{sT1}, s{sw}, 6')
    e.i(f'v_add_u32 v2, s{sT1}, v{vL}')
    e.i(f's_mov_b32 s{sT2}, 14564')
    for k in range(12):
        e.i(f'v_add_u32 v3, {512*k}, v2')
        e.i(f'v_mul_u32_u24 v4, s{sT2}, v3')
        e.i('v_lshrrev_b32 v4, 20, v4')
        e.i('v_mul_u32_u24 v5, 72, v4')
        e.i('v_sub_u32 v5, v3, v5')
        e.i('v_and_b32 v6, 7, v4')
        e.i('v_xor_b32 v5, v5, v6')
        e.i(f'v_add_u32 v4, s{sT0}, v4')
        e.i('v_max_i32 v4, 0, v4')
        e.i('v_mul_u32_u24 v4, 72, v4')
        e.i(f'v_add_lshl_u32 v{10+k}, v4, v5, 4')
    e.i('s_waitcnt lgkmcnt(0)')
    srd(e, sX, sPX, sPX+1, 0, MAT_BYTES)
    srd(e, sW, sPW, sPW+1, 0, D*3*D*2)
    e.i(f's_lshl_b32 s{sT0}, s{sw}, 10')
    xt = []
    for k in range(12):
        e.i(f's_add_u32 m0, s{sT0}, {k*8192}')
        e.i('s_nop 0')
        xt.append(e.i(f'buffer_load_dwordx4 v{10+k}, s[{sX}:{sX+3}], 0 offen {xmod} lds', ('X', k)))
    e.i(f's_cmp_eq_u32 s{sw}, 7')
    e.i(f's_cbranch_scc1 {name}_ld')
    e.i(f's_cmp_ge_u32 s{sw}, 4')
    e.i(f's_cbranch_scc1 {name}_aux')
    e.i(f's_bitcmp1_b32 s{sw}, 0')
    e.i(f's_cbranch_scc1 {name}_m0')
    common_n = len(e.ins)
    save = (list(e.vmq), list(e.lgq))
    def stamp(k):
        if diag and stamps: e.i(f's_memtime s[{sST+2*k}:{sST+1+2*k}]')
    def finish(nst):
        if diag:
            e.i('s_mov_b64 exec, -1')
            e.i('s_waitcnt vmcnt(0)')
            e.i(f's_memrealtime s[{sTS+2}:{sTS+3}]')
            e.i('s_waitcnt lgkmcnt(0)')
            srd(e, sM, sPWS, sPWS+1, WS_TS + 0*0x10000, 0x10000)
            e.i(f's_lshl_b32 s{sT0}, s2, 3'); e.i(f's_add_u32 s{sT0}, s{sT0}, s{sw}'); e.i(f's_lshl_b32 s{sT0}, s{sT0}, 4')
            for k in range(4): e.i(f'v_mov_b32 v{k}, s{sTS+k}')
            e.i('v_mov_b32 v4, 0')
            e.i(f'buffer_store_dwordx4 v[0:3], v4, s[{sM}:{sM+3}], s{sT0} offen')
            if stamps:
                e.i(f's_memtime s[{sST+2*nst}:{sST+1+2*nst}]')
                e.i('s_waitcnt lgkmcnt(0)')
                srd(e, sM, sPWS, sPWS+1, WS_TS + 4*0x10000, 0x40000)
                e.i(f's_lshl_b32 s{sT0}, s2, 3'); e.i(f's_add_u32 s{sT0}, s{sT0}, s{sw}'); e.i(f's_lshl_b32 s{sT0}, s{sT0}, 7')
                for k in range(nst + 1):
                    e.i(f'v_mov_b32 v0, s{sST+2*k}')
                    e.i(f'buffer_store_dword v0, v4, s[{sM}:{sM+3}], s{sT0} offen offset:{4*k}')
            e.i('s_waitcnt vmcnt(0)')
        e.i('s_endpgm')

    def copy_piece(base, a, tag):
        e.i(f's_lshl_b32 s{sT0}, s{sw}, 6')
        e.i(f'v_add_u32 v{a}, s{sT0}, v{vL}')
        if base: e.i(f'v_add_u32 v{a}, {base}, v{a}')
        e.i(f'v_and_b32 v{a+1}, 15, v{a}')
        e.i(f'v_lshrrev_b32 v{a}, 4, v{a}')
        e.i(f'v_mul_u32_u24 v{a+2}, 57, v{a}')
        e.i(f'v_lshrrev_b32 v{a+2}, 9, v{a+2}')
        e.i(f'v_mul_u32_u24 v{a+3}, 9, v{a+2}')
        e.i(f'v_sub_u32 v{a}, v{a}, v{a+3}')
        e.i(f'v_lshl_add_u32 v{a+3}, v{a+2}, 4, v{a+1}')
        e.i(f'v_mul_u32_u24 v{a+3}, 144, v{a+3}')
        e.i(f'v_lshl_add_u32 v{a+3}, v{a}, 4, v{a+3}')
        e.i(f'ds_read_b128 v[{a+4}:{a+7}], v{a+3} offset:{OS}', tag)
        e.i(f's_mul_i32 s{sT1}, s{sHG}, 9')
        e.i(f'v_add_u32 v{a}, s{sT1}, v{a}')
        e.i(f's_lshl_b32 s{sT1}, s{sRB}, 2')
        e.i(f'v_add_u32 v{a+2}, s{sT1}, v{a+2}')
        e.i(f'v_mul_u32_u24 v{a+2}, 72, v{a+2}')
        e.i(f'v_add_u32 v{a+2}, v{a+2}, v{a}')
        e.i(f'v_lshl_add_u32 v{a+2}, v{a+2}, 4, v{a+1}')
        e.i(f'v_lshlrev_b32 v{a+2}, 4, v{a+2}')
        e.wait(lg=[tag])
        e.i(f'buffer_store_dwordx4 v[{a+4}:{a+7}], v{a+2}, s[{sO}:{sO+3}], 0 offen {store_mod}')
    def final_copy(extra):
        srd(e, sO, sPWS, sPWS+1, WS_O, MAT_BYTES)
        copy_piece(0, 200, 'oc0')
        if extra:
            e.i(f's_cmp_lg_u32 s{sw}, 0')
            e.i(f's_cbranch_scc1 {name}_nox2')
            copy_piece(512, 208, 'oc1')
            e.i(f'{name}_nox2:')

    ALL = [(mat, c) for mat in range(3) for c in range(5)]
    def compute(kind):
        aux = kind == 'aux'
        nq = 1 if aux else 2
        nsub = 5 if aux else (8 if kind == 'm0' else 7)
        subs = None if aux else (ALL[:8] if kind == 'm0' else ALL[8:])
        own = 0 if kind in ('aux', 'm0') else 1
        vB = lambda q, s: (s*nq + q)*4
        acc = lambda k, q: 144 + (k*nq + q)*4
        NA = 6 if not aux else 10; DIST = 5
        vA = (lambda k: 208 + 4*k) if not aux else (lambda k: 168 + 4*k)
        vRA = [232, 233, 234, 235, 236]
        vONE, vAS, vAQ = 240, 244, 248
        vT0 = 237
        vD = [100 + j for j in range(6)]
        sA, sSUB = sTILE + 0, 47
        stamp(0)
        if aux:
            if aprio: e.i(f's_setprio {aprio}')
            e.i(f's_sub_u32 s{sSUB}, s{sw}, 4')
            e.i(f's_mov_b32 s{sA}, 0')
        else:
            e.i(f's_lshr_b32 s{sTILE}, s{sw}, 1')
            e.i(f's_lshl_b32 s{sTILE}, s{sTILE}, 1')
            e.i(f's_add_u32 s{sTILE}, s{sTILE}, 1')
        T = 148
        e.i(f'v_and_b32 v{T+9}, 15, v{vL}')
        e.i(f's_lshl_b32 s{sT1}, s{sTILE}, 4')
        e.i(f'v_add_u32 v{T+10}, s{sT1}, v{T+9}')
        e.i(f'v_mul_u32_u24 v{T+11}, 1152, v{T+10}')
        e.i(f'v_and_b32 v{T+12}, 7, v{T+9}')
        vP = [254, 255]
        for par in range(2):
            e.i(f'v_add_u32 v{T+13}, {4*par}, v{vG}')
            e.i(f'v_xor_b32 v{T+13}, v{T+13}, v{T+12}')
            e.i(f'v_lshl_add_u32 v{vP[par]}, v{T+13}, 4, v{T+11}')
        e.i(f'v_bfe_u32 v{T+1}, v{vL}, 2, 2')
        e.i(f'v_lshl_add_u32 v{T+2}, v{vG}, 3, v{T+1}')
        e.i(f'v_lshlrev_b32 v{T+2}, 8, v{T+2}')
        e.i(f'v_and_b32 v{T+3}, 1, v{vG}')
        e.i(f'v_lshl_or_b32 v{T+3}, v{T+3}, 2, v{T+1}')
        e.i(f'v_lshlrev_b32 v{T+3}, 1, v{T+3}')
        e.i(f'v_and_b32 v{T+4}, 3, v{vL}')
        e.i(f's_lshl_b32 s{sT0}, s{sHG}, 4')
        for c in range(5):
            a_, b_, c_, d_ = T+5, T+6, T+7, T+8
            e.i(f'v_add_u32 v{a_}, {4*c}, v{T+4}')
            e.i(f'v_mul_u32_u24 v{b_}, 52, v{a_}')
            e.i(f'v_lshrrev_b32 v{b_}, 8, v{b_}')
            e.i(f'v_mul_u32_u24 v{c_}, 5, v{b_}')
            e.i(f'v_sub_u32 v{c_}, v{a_}, v{c_}')
            e.i(f'v_mul_u32_u24 v{d_}, 36, v{b_}')
            e.i(f'v_and_b32 v{b_}, 1, v{b_}')
            e.i(f'v_lshlrev_b32 v{b_}, 2, v{b_}')
            e.i(f'v_sub_u32 v{d_}, v{d_}, v{b_}')
            e.i(f'v_lshl_add_u32 v{d_}, v{c_}, 3, v{d_}')
            e.i(f'v_add_u32 v{d_}, s{sT0}, v{d_}')
            e.i(f'v_lshrrev_b32 v{c_}, 4, v{d_}')
            e.i(f'v_xor_b32 v{c_}, v{c_}, v{T+3}')
            e.i(f'v_and_b32 v{d_}, 8, v{d_}')
            e.i(f'v_lshl_add_u32 v{c_}, v{c_}, 4, v{d_}')
            e.i(f'v_add_u32 v{vRA[c]}, v{c_}, v{T+2}')
            if aux:
                e.i(f's_lshl_b32 s{sT1}, s{sSUB}, 13')
                e.i(f's_add_u32 s{sT1}, s{sT1}, {slot_of(0)*SLOT}')
                e.i(f'v_add_u32 v{vRA[c]}, s{sT1}, v{vRA[c]}')
            else:
                e.i(f'v_add_u32 v{vRA[c]}, {slot_of(0)*SLOT}, v{vRA[c]}')
        for k in range(4): e.i(f'v_mov_b32 v{vONE+k}, 0x3f803f80')
        e.wait(vm=xt)
        e.i('s_barrier')
        stamp(1)
        bt = {}
        def read_b(t):
            if t % 2 == 0:
                e.i(f's_add_u32 s{sU}, s{sR2}, {t//2}')
                e.i(f's_cmp_ge_u32 s{sU}, 9')
                e.i(f's_cselect_b32 s{sT0}, 9, 0')
                e.i(f's_sub_u32 s{sU}, s{sU}, s{sT0}')
                e.i(f's_lshl_b32 s{sU}, s{sU}, 7')
            tv = vT0 + (t & 1)
            e.i(f'v_add_u32 v{tv}, s{sU}, v{vP[t & 1]}')
            bt[t] = [e.i(f'ds_read_b128 v[{vB(q,t)}:{vB(q,t)+3}], v{tv} offset:{q*18432}') for q in range(nq)]
        def ones_row(t):
            e.i('s_mov_b32 exec_lo, 0x00010001')
            e.i('s_mov_b32 exec_hi, 0x00010001')
            for r in range(4): e.i(f'v_mov_b32 v{vB(0,t)+r}, 0x3f803f80')
            e.i('s_mov_b64 exec, -1')
        flist = [(t, k) for t in range(18) for k in range(nsub)]
        rt = {}
        seen = set()
        def rd(i, both=True):
            t, k = flist[i]; slot = slot_of(t)
            if k == 0 and t > 0:
                if t == 1: e.wait(lg=sum(bt.values(), []))
                e.i('s_barrier')
                if t == 1: stamp(2)
            ci = k if aux else subs[k][1]
            if t > 0 and (t, ci) not in seen:
                d = (slot - slot_of(t - 1))*SLOT
                if d > 0: e.i(f'v_add_u32 v{vRA[ci]}, {d}, v{vRA[ci]}')
                else: e.i(f'v_subrev_u32 v{vRA[ci]}, {-d}, v{vRA[ci]}')
            seen.add((t, ci))
            if 'noread' in exp and t > 0:
                rt[i] = []; return
            off = 0 if aux else subs[k][0]*8192; ra = vA(i % NA)
            rt[i] = [e.i(f'ds_read_b64_tr_b16 v[{ra}:{ra+1}], v{vRA[ci]} offset:{off}')]
            if both: rd2(i)
        def rd2(i):
            t, k = flist[i]
            if 'noread' in exp and t > 0: return
            ci = k if aux else subs[k][1]; off = 0 if aux else subs[k][0]*8192; ra = vA(i % NA)
            rt[i].append(e.i(f'ds_read_b64_tr_b16 v[{ra+2}:{ra+3}], v{vRA[ci]} offset:{off + 1024}'))
        if aux:
            e.i(f'v_lshlrev_b32 v{vT0+2}, 4, v{vL}')
            e.i(f'ds_write_b128 v{vT0+2}, v[{vONE}:{vONE+3}]')
            e.i(f'ds_write_b128 v{vT0+2}, v[{vONE}:{vONE+3}] offset:1024')
        read_b(0); read_b(1)
        for k in range(DIST): rd(k) if k < nsub else None
        nxt = min(DIST, nsub)
        nb = 2
        fill = [[] for _ in range(19)]
        for i, (t, k) in enumerate(flist):
            if k == 0:
                e.wait(lg=bt[t])
            e.wait(lg=rt[i])
            ra = vA(i % NA)
            for q in range(nq):
                a = acc(k, q)
                cc = '0' if t == 0 else f'v[{a}:{a+3}]'
                e.i(f'v_mfma_f32_16x16x32_bf16 v[{a}:{a+3}], v[{ra}:{ra+3}], v[{vB(q,t)}:{vB(q,t)+3}], {cc}')
                if q == 0:
                    if t == 0:
                        per = -(-16 // max(nsub - DIST, 1)) if nsub > DIST else 16
                        for _ in range(per):
                            if nb < 18: read_b(nb); nb += 1
                    if nxt < len(flist): rd(nxt, both=aux); pend2 = nxt; nxt += 1
                    else: pend2 = None
                elif pend2 is not None: rd2(pend2)
            if k == 1 and 'nostats' not in exp:
                b = vB(own, t)
                cs_ = '0' if t == 0 else f'v[{vAS}:{vAS+3}]'
                cq_ = '0' if t == 0 else f'v[{vAQ}:{vAQ+3}]'
                e.i(f'v_mfma_f32_16x16x32_bf16 v[{vAS}:{vAS+3}], v[{vONE}:{vONE+3}], v[{b}:{b+3}], {cs_}')
                e.i(f'v_mfma_f32_16x16x32_bf16 v[{vAQ}:{vAQ+3}], v[{b}:{b+3}], v[{b}:{b+3}], {cq_}')
        stamp(3)
        e.nop(8)
        if aux:
            e.i(f'v_lshlrev_b32 v{vT0}, 4, v{vG}')
            e.i(f's_mul_i32 s{sT0}, s{sSUB}, 320')
            e.i(f's_add_u32 s{sT0}, s{sT0}, {CS}')
            e.i(f'v_add_u32 v{vT0}, s{sT0}, v{vT0}')
            e.i('s_mov_b32 exec_lo, 0x00010001')
            e.i('s_mov_b32 exec_hi, 0x00010001')
            for k in range(5): e.i(f'ds_write_b128 v{vT0}, v[{acc(k,0)}:{acc(k,0)+3}] offset:{64*k}')
            e.i('s_mov_b64 exec, -1')
        e.i(f'v_and_b32 v0, 15, v{vL}')
        e.i('v_and_b32 v1, 3, v0')
        e.i('v_lshrrev_b32 v2, 2, v0')
        e.i('v_cmp_eq_u32 s[56:57], 1, v1')
        e.i('v_cmp_eq_u32 s[58:59], 2, v1')
        e.i('v_cmp_eq_u32 s[60:61], 3, v1')
        e.i(f'v_cmp_eq_u32 s[62:63], v2, v{vG}')
        e.i(f'v_cndmask_b32 v3, v{vAQ}, v{vAQ+1}, s[56:57]')
        e.i(f'v_cndmask_b32 v3, v3, v{vAQ+2}, s[58:59]')
        e.i(f'v_cndmask_b32 v3, v3, v{vAQ+3}, s[60:61]')
        e.i(f'v_cndmask_b32 v3, 0, v3, s[62:63]')
        for swp in ('v_permlane16_swap_b32', 'v_permlane32_swap_b32'):
            e.i('v_mov_b32 v4, v3')
            e.nop(2)
            e.i(f'{swp} v3, v4')
            e.nop(1)
            e.i('v_add_f32 v3, v3, v4')
        e.i(f's_mov_b32 s{sT0}, {f2u(1.0/576)}')
        e.i(f'v_mul_f32 v5, s{sT0}, v{vAS}')
        e.i(f'v_mul_f32 v3, s{sT0}, v3')
        e.i('v_fma_f32 v3, -v5, v5, v3')
        e.i('v_max_f32 v3, 0, v3')
        e.i(f'v_add_f32 v3, {f2u(1e-5)}, v3')
        e.i('v_rsq_f32 v7, v3')
        e.i(f's_add_u32 s{sT1}, s{sTILE}, {own}')
        e.i(f's_lshl_b32 s{sT1}, s{sT1}, 4')
        e.i(f'v_add_u32 v8, s{sT1}, v0')
        e.i('v_mul_f32 v6, v5, v7')
        e.i('v_lshlrev_b32 v9, 3, v8')
        e.i(f'v_add_u32 v9, {ST}, v9')
        e.i('ds_write_b64 v9, v[6:7]')
        if not aux:
            e.i(f's_cmp_lg_u32 s{sHG}, 0')
            e.i(f's_cbranch_scc1 {name}_noxm_{kind}')
            srd(e, sM, sPWS, sPWS+1, WS_XM, S*4)
            e.i(f's_lshl_b32 s{sT1}, s{sRB}, 6')
            e.i(f's_sub_u32 s{sT1}, s{sT1}, 16')
            e.i(f'v_add_u32 v8, s{sT1}, v8')
            e.i('v_lshlrev_b32 v8, 2, v8')
            e.i(f'buffer_store_dword v5, v8, s[{sM}:{sM+3}], 0 offen {store_mod}')
            e.i(f'{name}_noxm_{kind}:')
        e.i(f's_lshl_b32 s{sT1}, s{sTILE}, 4')
        e.i(f'v_add_u32 v0, s{sT1}, v0')
        e.i('v_mul_u32_u24 v8, 48, v0')
        e.i('v_mul_u32_u24 v9, 80, v0')
        cl = list(range(5)) if aux else sorted(set(c for _, c in subs))
        for c in cl:
            e.i(f'v_add_u32 v10, {4*c}, v{vG}')
            e.i('v_mul_u32_u24 v11, 52, v10')
            e.i('v_lshrrev_b32 v11, 8, v11')
            e.i('v_mul_u32_u24 v12, 5, v11')
            e.i('v_sub_u32 v12, v10, v12')
            e.i('v_mul_u32_u24 v13, 3840, v11')
            e.i('v_lshl_add_u32 v13, v12, 3, v13')
            e.i(f'v_add_u32 v{80+c}, v13, v8')
            e.i('v_mul_u32_u24 v13, 6400, v11')
            e.i('v_lshl_add_u32 v13, v12, 4, v13')
            e.i(f'v_add_u32 v{88+c}, v13, v9')
        e.i('v_lshlrev_b32 v1, 3, v0')
        e.i(f'v_add_u32 v1, {ST}, v1')
        e.i(f'v_lshlrev_b32 v2, 4, v{vG}')
        e.i(f'v_add_u32 v2, {CS}, v2')
        e.wait_all(vm=False)
        e.i('s_barrier')
        st = [e.i(f'ds_read_b64 v[{4+2*q}:{5+2*q}], v1 offset:{128*q}') for q in range(nq)]
        cst = {}
        for k in range(nsub):
            if aux:
                if k == 0:
                    e.i(f's_mul_i32 s{sT0}, s{sSUB}, 320')
                    e.i(f'v_add_u32 v2, s{sT0}, v2')
                cst[k] = e.i(f'ds_read_b128 v[{16+4*k}:{19+4*k}], v2 offset:{64*k}')
            else:
                mat, c = subs[k]
                cst[k] = e.i(f'ds_read_b128 v[{16+4*k}:{19+4*k}], v2 offset:{64*(mat*5 + c)}')
        e.wait(lg=st)
        for k in range(nsub):
            e.wait(lg=[cst[k]])
            for q in range(nq):
                a = acc(k, q); tmp = 96 + 4*((k*nq + q) & 1)
                for j in range(4): e.i(f'v_mul_f32 v{tmp+j}, v{4+2*q}, v{16+4*k+j}')
                for j in range(4): e.i(f'v_fma_f32 v{a+j}, v{a+j}, v{5+2*q}, -v{tmp+j}')
                pk = 104 + 2*((k*nq + q) & 1)
                if aux:
                    e.i(f's_cmp_eq_u32 s{sSUB}, 0')
                    e.i(f's_cbranch_scc1 {name}_st{k}_x')
                    e.i(f's_cmp_eq_u32 s{sSUB}, 1')
                    e.i(f's_cbranch_scc1 {name}_st{k}_k')
                    e.i(f'ds_write_b128 v{88+k}, v[{a}:{a+3}] offset:{VS}')
                    e.i(f's_branch {name}_st{k}_x')
                    e.i(f'{name}_st{k}_k:')
                    e.i(f'v_cvt_pk_bf16_f32 v{pk}, v{a}, v{a+1}')
                    e.i(f'v_cvt_pk_bf16_f32 v{pk+1}, v{a+2}, v{a+3}')
                    e.i(f'ds_write_b64 v{80+k}, v[{pk}:{pk+1}] offset:{KS}')
                    e.i(f'{name}_st{k}_x:')
                else:
                    mat, c = subs[k]
                    if mat == 2:
                        e.i(f'ds_write_b128 v{88+c}, v[{a}:{a+3}] offset:{VS + 1280*q}')
                    else:
                        e.i(f'v_cvt_pk_bf16_f32 v{pk}, v{a}, v{a+1}')
                        e.i(f'v_cvt_pk_bf16_f32 v{pk+1}, v{a+2}, v{a+3}')
                        e.i(f'ds_write_b64 v{80+c}, v[{pk}:{pk+1}] offset:{(QS if mat == 0 else KS) + 768*q}')
        e.wait_all(vm=False)
        e.i('s_barrier')
        stamp(4)
        if not aux: attention(kind)
        stamp(5)
        e.wait_all(vm=False)
        e.i('s_barrier')
        final_copy(extra=(kind == 'm1'))
        finish(6)

    def attention(kind):
        vQ = 0; vK = lambda k: 12 + 10*k
        vS = 92
        vV = lambda b: 100 + 20*b
        vO = 160
        aQ, aK, aV = 180, 181, 182
        e.i(f's_mul_i32 s{sT0}, s{sw}, 3840')
        e.i(f'v_mul_u32_u24 v{aQ}, 48, v{vL}')
        e.i(f'v_add_u32 v{aQ}, s{sT0}, v{aQ}')
        e.i(f'v_add_u32 v{aK}, {2*48}, v{aQ}')
        e.i(f'v_add_u32 v{aQ}, {16*48}, v{aQ}')
        e.i(f'v_mul_u32_u24 v{aV}, 80, v{vL}')
        e.i(f's_mul_i32 s{sT0}, s{sw}, 6400')
        e.i(f's_add_u32 s{sT0}, s{sT0}, {2*80}')
        e.i(f'v_add_u32 v{aV}, s{sT0}, v{aV}')
        def rd10(dst, addr, off, tag):
            return [e.i(f'ds_read_b128 v[{dst}:{dst+3}], v{addr} offset:{off}', (tag, 0)),
                    e.i(f'ds_read_b128 v[{dst+4}:{dst+7}], v{addr} offset:{off+16}', (tag, 1)),
                    e.i(f'ds_read_b64 v[{dst+8}:{dst+9}], v{addr} offset:{off+32}', (tag, 2))]
        tq = rd10(vQ, aQ, QS, 'q')
        tk = {}
        for k in range(4): tk[k] = rd10(vK(k), aK, KS + 96*(7 - k), ('k', k))
        e.i(f's_and_b32 s{sT0}, s{sw}, 1')
        e.i(f's_sub_u32 s{sT1}, s{sT0}, 1')
        e.i(f's_not_b32 s{sT2}, s{sT1}')
        e.i(f's_lshl_b32 s{sT0}, s{sRB}, 6')
        e.i(f'v_add_u32 v183, s{sT0}, v{vL}')
        for k in range(1, 8): e.i(f'v_cmp_le_u32 s[{64+2*k}:{65+2*k}], {2*k}, v183')
        e.wait(lg=tq)
        e.i(f'v_and_b32 v{vQ}, s{sT1}, v{vQ}')
        e.i(f'v_and_b32 v{vQ+9}, s{sT2}, v{vQ+9}')
        def vread(k, b):
            return [e.i(f'ds_read_b128 v[{vV(b)+4*x}:{vV(b)+4*x+3}], v{aV} offset:{VS + 160*(7 - k) + 16*x}', ('v', k, x)) for x in range(5)]
        tv = {}
        for k in range(8):
            if k + 4 < 8: tk[k+4] = rd10(vK(k+4), aK, KS + 96*(7 - k - 4), ('k', k+4))
            if k == 6: tv[0] = vread(0, 0)
            if k == 7: tv[1] = vread(1, 1)
            e.wait(lg=tk[k])
            e.i(f'v_dot2_f32_bf16 v{vS+k}, v{vQ}, v{vK(k)}, 0')
            for x in range(1, 10):
                e.i(f'v_dot2_f32_bf16 v{vS+k}, v{vQ+x}, v{vK(k)+x}, v{vS+k}')
        e.i(f'v_mov_b32 v184, {f2u(-1e30)}')
        e.nop(2)
        for k in range(1, 8):
            e.i(f'v_cndmask_b32 v{vS+k}, v184, v{vS+k}, s[{64+2*k}:{65+2*k}]')
        e.i(f'v_max3_f32 v185, v{vS}, v{vS+1}, v{vS+2}')
        e.i(f'v_max3_f32 v185, v185, v{vS+3}, v{vS+4}')
        e.i(f'v_max3_f32 v185, v185, v{vS+5}, v{vS+6}')
        e.i(f'v_max_f32 v185, v185, v{vS+7}')
        e.i(f's_mov_b32 s{sT0}, {f2u(18**-0.5 * 1.4426950408889634)}')
        e.i(f'v_mul_f32 v185, s{sT0}, v185')
        for k in range(8): e.i(f'v_fma_f32 v{vS+k}, v{vS+k}, s{sT0}, -v185')
        for k in range(8): e.i(f'v_exp_f32 v{vS+k}, v{vS+k}')
        e.nop(1)
        e.i(f'v_add_f32 v186, v{vS}, v{vS+1}')
        e.i(f'v_add_f32 v187, v{vS+2}, v{vS+3}')
        e.i(f'v_add_f32 v188, v{vS+4}, v{vS+5}')
        e.i(f'v_add_f32 v189, v{vS+6}, v{vS+7}')
        e.i('v_add_f32 v186, v186, v187')
        e.i('v_add_f32 v188, v188, v189')
        e.i('v_add_f32 v186, v186, v188')
        e.i('v_rcp_f32 v186, v186')
        e.nop(1)
        for k in range(8): e.i(f'v_mul_f32 v{vS+k}, v{vS+k}, v186')
        for k in range(8):
            if k + 2 < 8: tv[k+2] = vread(k + 2, (k + 2) % 3)
            e.wait(lg=tv[k])
            for x in range(20):
                if k == 0: e.i(f'v_mul_f32 v{vO+x}, v{vS}, v{vV(0)+x}')
                else: e.i(f'v_fma_f32 v{vO+x}, v{vS+k}, v{vV(k % 3)+x}, v{vO+x}')
        odd = 1 if kind == 'm0' else 0
        for x in range(9): e.i(f'v_cvt_pk_bf16_f32 v{x}, v{vO+2*(x+odd)}, v{vO+2*(x+odd)+1}')
        e.i(f'v_mul_u32_u24 v184, 144, v{vL}')
        e.i(f's_mul_i32 s{sT0}, s{sw}, 36')
        e.i(f'v_add_u32 v184, s{sT0}, v184')
        for x in range(9): e.i(f'ds_write_b32 v184, v{x} offset:{OS + 4*x}')

    def loader():
        if lprio: e.i(f's_setprio {lprio}')
        vD = lambda i: 100 + i
        e.i(f'v_lshrrev_b32 v2, 4, v{vL}')
        e.i(f'v_and_b32 v3, 15, v{vL}')
        e.i('v_mul_u32_u24 v5, 3456, v2')
        e.i(f's_lshl_b32 s{sT2}, s{sHG}, 7')
        e.i(f'v_add_u32 v5, s{sT2}, v5')
        for par in range(2):
            e.i(f'v_or_b32 v4, {4*par}, v2')
            e.i('v_lshlrev_b32 v4, 1, v4')
            e.i('v_xor_b32 v4, v4, v3')
            e.i(f'v_lshl_add_u32 v{6+par}, v4, 4, v5')
        for i in range(24):
            mat, k = i >> 3, i & 7
            c = mat*1152 + k*13824 - (i & 3)*1024
            e.i(f'v_add_u32 v{vD(i)}, {c & 0xffffffff}, v{6 + ((k >> 1) & 1)}')
        e.i(f's_mul_i32 s{sK}, s{sR2}, {2*110592}')
        def dma(t):
            slot = slot_of(t)
            if t > 0:
                e.i(f's_add_u32 s{sK}, s{sK}, 110592')
                e.i(f's_cmp_ge_u32 s{sK}, {18*110592}')
                e.i(f's_cselect_b32 s{sOFF}, {18*110592}, 0')
                e.i(f's_sub_u32 s{sK}, s{sK}, s{sOFF}')
            for i in range(24):
                if 'nodma' in exp and t > 5: continue
                if i % 4 == 0:
                    e.i(f's_mov_b32 m0, {slot*SLOT + i*1024}')
                    e.i('s_nop 0')
                e.i(f'buffer_load_dwordx4 v{vD(i)}, s[{sW}:{sW+3}], s{sK} offen offset:{(i & 3)*1024} {wmod} lds', ('A', t, i))
        A = lambda t: [('A', t, i) for i in range(24)]
        srd(e, sM, sPWS, sPWS+1, WS_FL, 256*256)
        e.i(f'v_lshlrev_b32 v8, 2, v{vL}')
        e.i('v_mov_b32 v9, 0')
        e.i(f's_lshl_b32 s{sT0}, s2, 8')
        e.i(f'buffer_store_dword v9, v8, s[{sM}:{sM+3}], s{sT0} offen sc1')
        dma(0); dma(1)
        e.wait(vm=xt + A(0))
        e.i('s_barrier')
        for t in range(1, 18):
            e.wait(vm=A(t))
            e.i('s_barrier')
            if t == 1:
                for x in (2, 3, 4, 5): dma(x)
            elif t + 4 < 18: dma(t + 4)
            if prefetch and t in pf_t:
                k = pf_t.index(t)
                mat, part = divmod(k, 3)
                if part == 0:
                    ptr = (sPG, sPU, sPD)[mat]
                    srd(e, sO, ptr, ptr+1, 0, D*F*2)
                    e.i(f's_mul_i32 s{sT2}, s2, {162*128}')
                    e.i(f'v_lshlrev_b32 v9, 7, v{vL}')
                e.i(f'buffer_load_dword v{40+k}, v9, s[{sO}:{sO+3}], s{sT2} offen')
                e.i(f's_add_u32 s{sT2}, s{sT2}, 8192')
            if t == 14:
                srd(e, sM, sPWO, sPWO+1, 0, D*D*2)
                e.i(f'v_lshrrev_b32 v10, 4, v{vL}')
                e.i(f's_lshl_b32 s{sT0}, s2, 2')
                e.i(f'v_add_u32 v10, s{sT0}, v10')
                e.i('v_mul_u32_u24 v11, 1152, v10')
                e.i(f'v_and_b32 v12, 15, v{vL}')
                e.i('v_mul_u32_u24 v12, 72, v12')
                e.i('v_add_u32 v11, v11, v12')
                tw = [e.i(f'buffer_load_dwordx2 v[{14+2*k}:{15+2*k}], v11, s[{sM}:{sM+3}], 0 offen offset:{8*k}') for k in range(9)]
        e.i('s_barrier')
        e.wait(vm=tw)
        e.i(f's_mov_b32 s{sONE}, 0x3f803f80')
        e.i('v_mov_b32 v6, 0')
        for k in range(18): e.i(f'v_dot2_f32_bf16 v6, v{14+k}, s{sONE}, v6')
        for r in (8, 4, 2, 1):
            e.nop(3)
            e.i(f'v_add_f32_dpp v6, v6, v6 row_ror:{r} row_mask:0xf bank_mask:0xf')
        e.i(f's_mov_b32 s{sT0}, {f2u(1.0/576)}')
        e.i(f'v_mul_f32 v6, s{sT0}, v6')
        e.i('v_cvt_pk_bf16_f32 v6, v6, v6')
        srd(e, sM, sPWS, sPWS+1, WS_WB, 1152)
        e.i('v_lshlrev_b32 v7, 1, v10')
        e.i('s_mov_b32 exec_lo, 0x00010001')
        e.i('s_mov_b32 exec_hi, 0x00010001')
        e.i(f'buffer_store_short v6, v7, s[{sM}:{sM+3}], 0 offen {store_mod}')
        e.i('s_mov_b64 exec, -1')
        e.i('s_barrier')
        e.i('s_barrier')
        final_copy(extra=False)
        finish(6)

    segs = []
    for lab, fn in ((None, lambda: compute('m1')), ('m0', lambda: compute('m0')), ('aux', lambda: compute('aux')), ('ld', loader)):
        n0 = len(e.ins)
        if lab: e.i(f'{name}_{lab}:')
        e.vmq, e.lgq = list(save[0]), list(save[1])
        fn()
        segs.append(e.ins[:common_n] + e.ins[n0:])
    e.i(f'{name}_done:')
    e.i('s_endpgm')
    probs = sum((check(x, name) for x in segs), [])
    nb = [sum(1 for x in sg if x.kind == 'barrier') for sg in segs]
    assert len(set(nb)) == 1, nb
    txt = '.p2align 8\n.type %s,@function\n' % name + e.text() + kernel_desc(name, 256, 96, 256)
    return txt, LDS, probs

if __name__ == '__main__':
    t, lds, pr = gen_k1()
    open('k1.s', 'w').write('.amdgcn_target "amdgcn-amd-amdhsa--gfx950"\n.text\n' + t)
    print(len(t), lds, len(pr))
```

```python
from asmlib import *
from common import *
import struct
def f2u(x): return struct.unpack('<I', struct.pack('<f', x))[0]

def gen_k2(name='oproj_kernel', diag=False, store_mod='', wmod='', omod='', xmod='', stamps=False, NST=6, FIRST=2):
    e = Emitter(name)
    WB = 73728
    XS = WB + 2048
    KPS = 18 // NST
    BS = XS + 10240
    NBS = 5; BSL = 5*KPS*1024
    LDS = BS + NBS*BSL
    sWO, sO, sX, sWS = 4, 8, 12, 16
    sPX, sPWO, sPWS = 20, 22, 24
    sw, sTG, sNW, sT, sT0, sT1, sOFF, sMB, sBO = 26, 27, 28, 29, 30, 31, 32, 33, 34
    sHC, sSS = 36, 40
    sTS = 48; sST = 52
    def stamp(k):
        if diag and stamps: e.i(f's_memtime s[{sST+2*k}:{sST+1+2*k}]')
    NSET = 3
    vB = lambda s: 4*s
    vACC = lambda c: 72 + 4*c
    vAW = 88
    vA = lambda st, c: 92 + 20*st + 4*c
    vX = lambda c: 152 + 2*c
    vXM = 160
    vRA = [161, 162, 163, 164]; vRB = [165, 166, 167, 168]
    vL, vL16, vROW, vG, vWA, vOFF, vXA, vBA = 169, 170, 171, 172, 173, 174, 175, 176
    e.i(f'{name}:')
    e.i('s_cmp_ge_u32 s2, 234')
    e.i(f's_cbranch_scc1 {name}_done')
    if diag: e.i(f's_memrealtime s[{sTS}:{sTS+1}]')
    e.i(f's_load_dwordx2 s[{sPX}:{sPX+1}], s[0:1], {ARG_X}')
    e.i(f's_load_dwordx2 s[{sPWO}:{sPWO+1}], s[0:1], {ARG_WO}')
    e.i(f's_load_dwordx2 s[{sPWS}:{sPWS+1}], s[0:1], {ARG_WS}')
    stamp(0)
    e.i('v_lshrrev_b32 v1, 6, v0')
    e.i(f'v_and_b32 v{vL}, 63, v0')
    e.i(f'v_readfirstlane_b32 s{sw}, v1')
    e.i(f's_mul_i32 s{sTG}, s2, 7282')
    e.i(f's_lshr_b32 s{sTG}, s{sTG}, 16')
    e.i(f's_mul_i32 s{sT0}, s{sTG}, 9')
    e.i(f's_sub_u32 s{sNW}, s2, s{sT0}')
    e.i(f'v_lshlrev_b32 v{vL16}, 4, v{vL}')
    e.i(f's_cmp_eq_u32 s{sw}, 5')
    e.i(f's_cbranch_scc1 {name}_ld0')
    e.i(f's_cmp_eq_u32 s{sw}, 6')
    e.i(f's_cbranch_scc1 {name}_ld1')
    e.i(f's_cmp_eq_u32 s{sw}, 7')
    e.i(f's_cbranch_scc1 {name}_ld2')
    common_n = len(e.ins); save = (list(e.vmq), list(e.lgq))
    def finish():
        if diag:
            e.i('s_mov_b64 exec, -1')
            e.i('s_waitcnt vmcnt(0)')
            e.i(f's_memrealtime s[{sTS+2}:{sTS+3}]')
            e.i('s_waitcnt lgkmcnt(0)')
            srd(e, sHC, sPWS, sPWS+1, WS_TS + 1*0x10000, 0x10000)
            e.i(f's_mul_i32 s{sT0}, s2, 8'); e.i(f's_add_u32 s{sT0}, s{sT0}, s{sw}'); e.i(f's_lshl_b32 s{sT0}, s{sT0}, 4')
            for k in range(4): e.i(f'v_mov_b32 v{k}, s{sTS+k}')
            e.i('v_mov_b32 v4, 0')
            e.i(f'buffer_store_dwordx4 v[0:3], v4, s[{sHC}:{sHC+3}], s{sT0} offen')
            if stamps:
                e.i(f's_memtime s[{sST+14}:{sST+15}]')
                e.i('s_waitcnt lgkmcnt(0)')
                srd(e, sHC, sPWS, sPWS+1, WS_TS + 4*0x10000, 0x40000)
                e.i(f's_lshl_b32 s{sT0}, s2, 3'); e.i(f's_add_u32 s{sT0}, s{sT0}, s{sw}'); e.i(f's_lshl_b32 s{sT0}, s{sT0}, 7')
                for k in range(8):
                    e.i(f'v_mov_b32 v0, s{sST+2*k}')
                    e.i(f'buffer_store_dword v0, v4, s[{sHC}:{sHC+3}], s{sT0} offen offset:{4*k}')
            e.i('s_waitcnt vmcnt(0)')
        e.i('s_endpgm')

    def compute():
        e.i(f's_mul_i32 s{sT}, s{sTG}, 5')
        e.i(f's_add_u32 s{sT}, s{sT}, s{sw}')
        e.i(f's_mul_i32 s{sT1}, s{sw}, {KPS*1024}')
        e.i(f's_add_u32 s{sT1}, s{sT1}, {BS}')
        e.i(f'v_add_u32 v{vBA}, s{sT1}, v{vL16}')
        e.i('s_waitcnt lgkmcnt(0)')
        e.i(f'v_lshrrev_b32 v{vG}, 4, v{vL}')
        e.i(f'v_and_b32 v100, 15, v{vL}')
        e.i(f's_lshl_b32 s{sT0}, s{sT}, 4')
        e.i(f'v_add_u32 v{vROW}, s{sT0}, v100')
        e.i(f'v_lshlrev_b32 v101, 2, v{vROW}')
        srd(e, sWS, sPWS, sPWS+1, WS_XM, S*4)
        txm = e.i(f'buffer_load_dword v{vXM}, v101, s[{sWS}:{sWS+3}], 0 offen')
        e.i(f'v_bfe_u32 v102, v{vL}, 2, 2')
        e.i(f'v_lshl_add_u32 v103, v{vG}, 3, v102')
        e.i('v_lshlrev_b32 v103, 7, v103')
        e.i(f'v_and_b32 v104, 3, v{vL}')
        e.i('v_lshl_add_u32 v103, v104, 3, v103')
        e.i('v_lshrrev_b32 v102, 1, v102')
        e.i(f'v_and_b32 v104, 1, v{vG}')
        e.i('v_lshl_or_b32 v102, v104, 1, v102')
        e.i(f'v_lshl_add_u32 v{vRA[0]}, v102, 5, v103')
        for c in range(1, 4): e.i(f'v_xor_b32 v{vRA[c]}, {32*c}, v{vRA[0]}')
        for c in range(4): e.i(f'v_add_u32 v{vRB[c]}, 0x10000, v{vRA[c]}')
        e.i(f'v_lshlrev_b32 v{vWA}, 4, v{vG}')
        e.i(f'v_add_u32 v{vWA}, {WB}, v{vWA}')
        e.i(f's_lshl_b32 s{sT0}, s{sw}, 4')
        e.i(f'v_add_u32 v102, s{sT0}, v100')
        e.i('v_lshlrev_b32 v102, 7, v102')
        e.i(f'v_lshrrev_b32 v103, 1, v{vG}')
        e.i('v_and_b32 v104, 7, v100')
        e.i('v_xor_b32 v103, v103, v104')
        e.i('v_lshl_add_u32 v102, v103, 4, v102')
        e.i(f'v_and_b32 v104, 1, v{vG}')
        e.i('v_lshl_add_u32 v102, v104, 3, v102')
        e.i(f'v_add_u32 v{vXA}, {XS}, v102')
        srd(e, sHC, sPWS, sPWS+1, WS_HC, MAT_BYTES)
        srd(e, sSS, sPWS, sPWS+1, WS_SS, S*64)
        stamp(1)
        rt = {}
        def reads(s):
            st = s % NSET; tg = []
            R = vRA if s < 16 else vRB
            base = (s if s < 16 else s - 16)*4096
            for c in range(4):
                tg.append(e.i(f'ds_read_b64_tr_b16 v[{vA(st,c)}:{vA(st,c)+1}], v{R[c]} offset:{base}'))
                tg.append(e.i(f'ds_read_b64_tr_b16 v[{vA(st,c)+2}:{vA(st,c)+3}], v{R[c]} offset:{base + 512}'))
            tg.append(e.i(f'ds_read_b128 v[{vA(st,4)}:{vA(st,4)+3}], v{vWA} offset:{64*s}'))
            tg.append(e.i(f'ds_read_b128 v[{vB(st)}:{vB(st)+3}], v{vBA} offset:{((s // KPS) % NBS)*BSL + (s % KPS)*1024}'))
            rt[s] = tg
        def pre(s):
            if s % KPS == 0:
                e.i('s_barrier')
                if s == 0: stamp(2)
            reads(s)
        pre(0); pre(1)
        tx = []
        for s in range(18):
            e.wait(lg=rt[s])
            sset = s % NSET
            for c in range(4):
                cc = '0' if s == 0 else f'v[{vACC(c)}:{vACC(c)+3}]'
                e.i(f'v_mfma_f32_16x16x32_bf16 v[{vACC(c)}:{vACC(c)+3}], v[{vA(sset,c)}:{vA(sset,c)+3}], v[{vB(sset)}:{vB(sset)+3}], {cc}')
            cc = '0' if s == 0 else f'v[{vAW}:{vAW+3}]'
            e.i(f'v_mfma_f32_16x16x32_bf16 v[{vAW}:{vAW+3}], v[{vA(sset,4)}:{vA(sset,4)+3}], v[{vB(sset)}:{vB(sset)+3}], {cc}')
            if s + 2 < 18: pre(s + 2)
            if s == 16:
                for c in range(4):
                    e.i(f'v_xor_b32 v{vOFF}, {32*c}, v{vXA}')
                    tx.append(e.i(f'ds_read_b64 v[{vX(c)}:{vX(c)+1}], v{vOFF}'))
        stamp(3)
        e.wait(vm=[txm], lg=tx)
        e.i('v_mov_b32 v0, 0xffff0000')
        e.nop(7)
        e.i(f'v_add_f32 v{vXM}, v{vXM}, v{vAW}')
        for c in range(4):
            a = vACC(c)
            e.i(f'v_lshlrev_b32 v1, 16, v{vX(c)}')
            e.i(f'v_and_b32 v2, v0, v{vX(c)}')
            e.i(f'v_lshlrev_b32 v3, 16, v{vX(c)+1}')
            e.i(f'v_and_b32 v4, v0, v{vX(c)+1}')
            for j in range(4): e.i(f'v_sub_f32 v{1+j}, v{1+j}, v{vXM}')
            for j in range(4): e.i(f'v_add_f32 v{a+j}, v{a+j}, v{1+j}')
        for p in range(2):
            for h in range(2):
                a = vACC(2*p + h)
                e.i(f'v_cvt_pk_bf16_f32 v{8+4*p+2*h}, v{a}, v{a+1}')
                e.i(f'v_cvt_pk_bf16_f32 v{9+4*p+2*h}, v{a+2}, v{a+3}')
        e.i(f's_mul_i32 s{sT0}, s{sT}, 18')
        e.i(f's_lshl_b32 s{sT1}, s{sNW}, 1')
        e.i(f's_add_u32 s{sT0}, s{sT0}, s{sT1}')
        e.i(f's_lshl_b32 s{sT0}, s{sT0}, 10')
        e.i(f'buffer_store_dwordx4 v[8:11], v{vL16}, s[{sHC}:{sHC+3}], s{sT0} offen {store_mod}')
        e.i(f'buffer_store_dwordx4 v[12:15], v{vL16}, s[{sHC}:{sHC+3}], s{sT0} offen offset:1024 {store_mod}')
        e.i(f'v_mul_f32 v6, v{vACC(0)}, v{vACC(0)}')
        e.i(f'v_mul_f32 v7, v{vACC(0)+1}, v{vACC(0)+1}')
        for k in range(2, 16):
            r = vACC(0) + k
            e.i(f'v_fma_f32 v{6 + (k & 1)}, v{r}, v{r}, v{6 + (k & 1)}')
        e.i('v_add_f32 v6, v6, v7')
        for swp in ('v_permlane16_swap_b32', 'v_permlane32_swap_b32'):
            e.i('v_mov_b32 v7, v6')
            e.nop(2)
            e.i(f'{swp} v6, v7')
            e.nop(1)
            e.i('v_add_f32 v6, v6, v7')
        e.i(f'v_lshlrev_b32 v5, 6, v{vROW}')
        e.i(f's_lshl_b32 s{sT0}, s{sNW}, 2')
        e.i(f'v_add_u32 v5, s{sT0}, v5')
        e.i(f'v_lshlrev_b32 v4, 2, v{vROW}')
        srd(e, sWS, sPWS, sPWS+1, WS_HM, S*4)
        e.i('s_mov_b64 exec, 0xffff')
        e.i(f'buffer_store_dword v6, v5, s[{sSS}:{sSS+3}], 0 offen {store_mod}')
        e.i(f's_cmp_lg_u32 s{sNW}, 0')
        e.i(f's_cbranch_scc1 {name}_nohm')
        e.i(f'buffer_store_dword v{vXM}, v4, s[{sWS}:{sWS+3}], 0 offen {store_mod}')
        e.i(f'{name}_nohm:')
        stamp(4); stamp(5); stamp(6)
        finish()

    def loader(role):
        vD = lambda par, j: 10 + 4*par + j
        e.i(f'v_lshrrev_b32 v6, 3, v{vL}')
        e.i(f'v_bfe_u32 v7, v{vL}, 4, 1')
        e.i(f'v_and_b32 v8, 7, v{vL}')
        e.i('v_mul_u32_u24 v9, 1152, v6')
        e.i(f's_lshl_b32 s{sT0}, s{sNW}, 7')
        e.i(f'v_add_u32 v9, s{sT0}, v9')
        for j in range(4):
            par = j & 1
            e.i(f'v_or_b32 v20, {2*par}, v7')
            e.i('v_lshlrev_b32 v20, 1, v20')
            e.i('v_xor_b32 v20, v20, v8')
            e.i('v_lshl_add_u32 v20, v20, 4, v9')
            e.i(f'v_add_u32 v{10+j}, {j*9216 - j*1024}, v20')
        e.i('v_xor_b32 v20, v6, v8')
        e.i('v_and_b32 v20, 7, v20')
        e.i(f's_mul_i32 s{sT1}, s{sTG}, {80*1152}')
        e.i(f's_add_u32 s{sT1}, s{sT1}, s{sT0}')
        e.i('v_mul_u32_u24 v21, 1152, v6')
        e.i('v_lshl_add_u32 v21, v20, 4, v21')
        e.i(f'v_add_u32 v21, s{sT1}, v21')
        e.i('s_waitcnt lgkmcnt(0)')
        srd(e, sWO, sPWO, sPWO+1, 0, D*D*2)
        srd(e, sX, sPX, sPX+1, 0, MAT_BYTES)
        srd(e, sWS, sPWS, sPWS+1, WS_WB, 1152)
        if role == 0:
            e.i(f's_mov_b32 m0, {WB}')
            e.i('s_nop 0')
            e.i(f'buffer_load_dwordx4 v{vL16}, s[{sWS}:{sWS+3}], 0 offen lds', 'wb0')
            e.i(f'buffer_load_dwordx4 v{vL16}, s[{sWS}:{sWS+3}], 0 offen offset:1024 lds', 'wb1')
        ni = 72 // NST
        def adma(st):
            for i in range(ni*st, ni*st + ni):
                if i % 4 == 0:
                    e.i(f's_mov_b32 m0, {i*1024}')
                    e.i(f's_mov_b32 s{sOFF}, {i*9216}')
                e.i(f'buffer_load_dwordx4 v{10 + (i & 3)}, s[{sWO}:{sWO+3}], s{sOFF} offen offset:{(i & 3)*1024} {wmod} lds', ('A', i))
        def xdma():
            for i in range(10):
                e.i(f's_mov_b32 m0, {XS + i*1024}')
                e.i(f's_mov_b32 s{sOFF}, {i*8*1152}')
                e.i(f'buffer_load_dwordx4 v21, s[{sX}:{sX+3}], s{sOFF} offen {xmod} lds', ('X', i))
        srd(e, sO, sPWS, sPWS+1, WS_O, MAT_BYTES)
        e.i(f's_mul_i32 s{sT}, s{sTG}, {5*18*1024}')
        tiles = {0: (), 1: (0, 1, 2), 2: (3, 4)}[role]
        def bdma(st):
            for w in tiles:
                e.i(f's_mov_b32 m0, {BS + (st % NBS)*BSL + w*KPS*1024}')
                e.i(f's_add_u32 s{sOFF}, s{sT}, {(w*18 + KPS*st)*1024}')
                for k in range(KPS):
                    e.i(f'buffer_load_dwordx4 v{vL16}, s[{sO}:{sO+3}], s{sOFF} offen offset:{k*1024} {omod} lds', ('B', st, w, k))
        A = lambda st: [('A', i) for i in range(ni*st, ni*st + ni)]
        Bt = lambda st: [('B', st, w, k) for w in tiles for k in range(KPS)]
        first = FIRST
        if role == 0:
            for st in range(min(first, NST)): adma(st)
        else:
            for st in range(min(first, NST)): bdma(st)
        nxt = first; nxa = first
        for st in range(NST):
            vm = (['wb0', 'wb1'] + A(st)) if role == 0 else Bt(st)
            if role == 2 and st == NST - 1: vm += [('X', i) for i in range(10)]
            e.wait(vm=vm)
            e.i('s_barrier')
            if role == 0:
                while nxa < NST and nxa <= st + 4: adma(nxa); nxa += 1
            while role and nxt < NST and (nxt < NBS or st >= nxt - NBS + 2): bdma(nxt); nxt += 1
            if role == 2 and st == 0: xdma()
        stamp(1); stamp(2); stamp(3); stamp(4); stamp(5); stamp(6)
        finish()

    segs = []
    for lab, fn in ((None, compute), ('ld0', lambda: loader(0)), ('ld1', lambda: loader(1)), ('ld2', lambda: loader(2))):
        n0 = len(e.ins)
        if lab: e.i(f'{name}_{lab}:')
        e.vmq, e.lgq = list(save[0]), list(save[1])
        fn()
        segs.append(e.ins[:common_n] + e.ins[n0:])
    e.i(f'{name}_done:')
    e.i('s_endpgm')
    probs = sum((check(x, name) for x in segs), [])
    nb = [sum(1 for x in sg if x.kind == 'barrier') for sg in segs]
    assert len(set(nb)) == 1, nb
    txt = '.p2align 8\n.type %s,@function\n' % name + e.text() + kernel_desc(name, 184, 96, 184)
    return txt, LDS, probs

if __name__ == '__main__':
    t, lds, pr = gen_k2()
    open('k2.s', 'w').write('.amdgcn_target "amdgcn-amd-amdhsa--gfx950"\n.text\n' + t)
    print(len(t), lds, len(pr))
```

```python
from asmlib import *
from common import *
import struct

C0 = -2.0 * 1.4426950408889634 * 0.7978845608028654
C1 = C0 * 0.044715
def f2u(x): return struct.unpack('<I', struct.pack('<f', x))[0]

def gen_k3(name='ffn_kernel', NS=8, BG=2, P=None, PB=None, NSB=8, diag=False, store_mod='', stamps=(), exp='',
           NA1=4, NA2=4, dmaslot=0, wevery=1, ppf=None, wmod='', bmod='', pgrp=1, fs=(76, 92), warm=None, p2order=0):
    if P is None: P = NS - BG
    if PB is None: PB = NSB - BG
    e = Emitter(name)
    RING = 0
    HH = NS * 8192
    LDS = HH + 73728
    assert NS <= 8
    vB = lambda q, s: (s*2 + q)*4
    acc1 = lambda st, mat, cc, q: 144 + 32*st + ((mat*2 + cc)*2 + q)*4
    acc2 = lambda k, cc, q: (176 if k == 0 else 144) + (cc*2 + q)*4
    accT = lambda q: 232 + 4*q
    vB2 = lambda q, s: 72 + (s*2 + q)*4
    ASET1 = [208, 212, 216, 220, 248 ]
    ASET2 = [208, 212, 216, 220, 136, 140, 144, 148]
    vPK = lambda q: 224 + 4*q
    vT = [232, 233, 234, 235]
    vCA = [236, 239]; vCB = [237, 240]; vV = [238, 241]
    vRA = [242, 243]
    vRH = 244
    vD1, vD1H = 245, 246
    vHW = 247
    vBS = 252
    vHWF = 253
    vR2 = [248, 249, 250, 251]
    vL16 = 254
    vX = 255
    NA1 = min(NA1, 5); assert NA2 <= 6
    sWG, sWD, sHC, sP, sWU = 4, 8, 12, 16, 52
    sPG, sPU, sPD, sPWS = 20, 22, 24, 26
    sw, sWB, sRB, sJ, sROT = 28, 29, 30, 31, 32
    sFF, sFH = 33, 34
    sOFF, sBOFF, sT0 = 35, 36, 37
    sFB = 38
    sPO = 39
    sKS = 40
    sMQ, sFHW = 41, 42
    sT1, sT2, sO2 = 43, 44, 45
    sFR = [46, 47, 48, 49]
    sFR2 = [84, 85, 86, 87]; sFRH, sFRH2 = 88, 89
    sNB = [90, 91]; sNT = 92; sHG, sHG2 = 93, 94
    sFL = 64; sHGS = 68
    sTS = 56
    sST = 72
    e.i(f'{name}:')
    e.i('s_cmp_ge_u32 s2, 256')
    e.i(f's_cbranch_scc1 {name}_done')
    if diag: e.i(f's_memrealtime s[{sTS}:{sTS+1}]')
    e.i(f's_load_dwordx4 s[{sPG}:{sPG+3}], s[0:1], {ARG_WG}')
    e.i(f's_load_dwordx2 s[{sPD}:{sPD+1}], s[0:1], {ARG_WD}')
    e.i(f's_load_dwordx2 s[{sPWS}:{sPWS+1}], s[0:1], {ARG_WS}')
    e.i('v_lshrrev_b32 v1, 6, v0')
    e.i(f'v_and_b32 v{vX}, 63, v0')
    e.i(f'v_readfirstlane_b32 s{sw}, v1')
    e.i(f's_and_b32 s{sJ}, s2, 7')
    e.i(f's_lshl_b32 s{sJ}, s{sJ}, 1')
    e.i(f's_lshr_b32 s{sT0}, s2, 3')
    e.i(f's_and_b32 s{sT0}, s{sT0}, 1')
    e.i(f's_add_u32 s{sJ}, s{sJ}, s{sT0}')
    e.i(f's_lshr_b32 s{sRB}, s2, 4')
    e.i(f's_and_b32 s{sROT}, s{sRB}, 3')
    e.i(f's_mul_i32 s{sT1}, s{sJ}, 288')
    e.i(f's_and_b32 s{sT0}, s{sJ}, 1')
    e.i(f's_lshl_b32 s{sT2}, s{sT0}, 5')
    e.i(f's_add_u32 s{sFF}, s{sT1}, s{sT2}')
    e.i(f's_xor_b32 s{sT0}, s{sT0}, 1')
    e.i(f's_lshl_b32 s{sT2}, s{sT0}, 8')
    e.i(f's_add_u32 s{sFH}, s{sT1}, s{sT2}')
    e.i(f's_and_b32 s{sMQ}, s{sw}, 3')
    e.i(f's_lshl_b32 s{sWB}, s{sMQ}, 10')
    e.i(f's_lshr_b32 s{sFHW}, s{sw}, 2')
    for wi in range(4):
        e.i(f's_add_u32 s{sT0}, s{sROT}, {wi}')
        e.i(f's_and_b32 s{sT0}, s{sT0}, 3')
        e.i(f's_lshl_b32 s{sT0}, s{sT0}, 6')
        e.i(f's_add_u32 s{sT0}, s{sT0}, s{sFF}')
        e.i(f's_mul_i32 s{sFR[wi]}, s{sT0}, 1152')
    e.i(f's_mul_i32 s{sFRH}, s{sFH}, 1152')
    e.i(f's_xor_b32 s{sT1}, s{sJ}, 1')
    e.i(f's_mul_i32 s{sT2}, s{sT1}, 288')
    e.i(f's_and_b32 s{sT1}, s{sT1}, 1')
    e.i(f's_lshl_b32 s{sKS}, s{sT1}, 5')
    e.i(f's_add_u32 s{sKS}, s{sKS}, s{sT2}')
    e.i(f's_xor_b32 s{sT1}, s{sT1}, 1')
    e.i(f's_lshl_b32 s{sT1}, s{sT1}, 8')
    e.i(f's_add_u32 s{sT1}, s{sT1}, s{sT2}')
    e.i(f's_mul_i32 s{sFRH2}, s{sT1}, 1152')
    for wi in range(4):
        e.i(f's_add_u32 s{sT0}, s{sROT}, {wi}')
        e.i(f's_and_b32 s{sT0}, s{sT0}, 3')
        e.i(f's_lshl_b32 s{sT0}, s{sT0}, 6')
        e.i(f's_add_u32 s{sT0}, s{sT0}, s{sKS}')
        e.i(f's_mul_i32 s{sFR2[wi]}, s{sT0}, 1152')
    e.i(f's_and_b32 s{sT1}, s{sJ}, 1')
    e.i(f's_mul_i32 s{sT2}, s{sT1}, 640')
    e.i(f's_and_b32 s{sT0}, s{sRB}, 1')
    e.i(f's_lshl_b32 s{sT0}, s{sT0}, 8')
    e.i(f's_add_u32 s{sNB[0]}, s{sT2}, s{sT0}')
    e.i(f's_xor_b32 s{sT0}, s{sT0}, 256')
    e.i(f's_add_u32 s{sNB[1]}, s{sT2}, s{sT0}')
    e.i(f's_lshl_b32 s{sT1}, s{sT1}, 6')
    e.i(f's_add_u32 s{sNT}, s{sT1}, 512')
    e.i(f's_mul_i32 s{sHG}, s2, 73728')
    e.i(f's_xor_b32 s{sT0}, s2, 8')
    e.i(f's_mul_i32 s{sHG2}, s{sT0}, 73728')
    e.i(f's_mul_i32 s{sT0}, s{sMQ}, 18432')
    e.i(f's_add_u32 s{sHG}, s{sHG}, s{sT0}')
    e.i(f's_add_u32 s{sHG2}, s{sHG2}, s{sT0}')
    L = vX
    e.i(f'v_lshlrev_b32 v{vL16}, 4, v{L}')
    e.i(f'v_lshrrev_b32 v2, 4, v{L}')
    e.i(f'v_bfe_u32 v3, v{L}, 2, 2')
    e.i(f'v_and_b32 v4, 3, v{L}')
    e.i(f'v_lshl_add_u32 v5, v2, 2, v3')
    e.i('v_bfe_u32 v6, v5, 1, 2')
    e.i(f's_lshl_b32 s{sT0}, s{sFHW}, 1')
    e.i(f'v_xor_b32 v6, s{sT0}, v6')
    e.i('v_lshlrev_b32 v7, 7, v5')
    e.i('v_lshl_add_u32 v7, v4, 3, v7')
    e.i(f'v_lshl_add_u32 v{vRA[0]}, v6, 5, v7')
    e.i(f'v_xor_b32 v{vRA[1]}, 32, v{vRA[0]}')
    e.i('v_and_b32 v6, 1, v2')
    e.i(f'v_xor_b32 v6, s{sFHW}, v6')
    e.i('v_lshlrev_b32 v7, 6, v5')
    e.i('v_lshl_add_u32 v7, v4, 3, v7')
    e.i(f'v_lshl_add_u32 v{vRH}, v6, 5, v7')
    e.i(f'v_lshrrev_b32 v6, 3, v{L}')
    e.i(f'v_bfe_u32 v7, v{L}, 4, 2')
    e.i('v_lshlrev_b32 v7, 1, v7')
    e.i(f'v_and_b32 v8, 7, v{L}')
    e.i('v_xor_b32 v8, v7, v8')
    e.i(f's_lshl_b32 s{sT0}, s{sMQ}, 3')
    e.i(f'v_add_u32 v9, s{sT0}, v6')
    e.i(f's_mov_b32 s{sT1}, 9216')
    e.i(f'v_mul_lo_u32 v9, v9, s{sT1}')
    e.i(f'v_lshl_add_u32 v{vD1}, v8, 4, v9')
    e.i(f'v_lshrrev_b32 v6, 2, v{L}')
    e.i(f'v_bfe_u32 v7, v{L}, 4, 1')
    e.i('v_lshlrev_b32 v7, 1, v7')
    e.i(f'v_and_b32 v8, 3, v{L}')
    e.i('v_xor_b32 v8, v7, v8')
    e.i(f's_lshl_b32 s{sT0}, s{sMQ}, 4')
    e.i(f'v_add_u32 v9, s{sT0}, v6')
    e.i(f'v_mul_lo_u32 v9, v9, s{sT1}')
    e.i(f'v_lshl_add_u32 v{vD1H}, v8, 4, v9')
    e.i(f's_mul_i32 s{sT0}, s{sMQ}, 18432')
    e.i(f's_add_u32 s{sT0}, s{sT0}, {HH}')
    e.i(f'v_add_u32 v{vHW}, s{sT0}, v{vL16}')
    e.i(f's_lshl_b32 s{sT0}, s{sFHW}, 11')
    e.i(f'v_add_u32 v{vHWF}, s{sT0}, v{vHW}')
    e.i(f's_lshl_b32 s{sT0}, s{sMQ}, 11')
    e.i(f's_add_u32 s{sT0}, s{sT0}, {HH}')
    e.i(f'v_add_u32 v{vBS}, s{sT0}, v{vL16}')
    e.i(f'v_and_b32 v6, 15, v{L}')
    e.i(f's_lshl_b32 s{sT0}, s{sRB}, 7')
    e.i(f's_lshl_b32 s{sT1}, s{sMQ}, 5')
    e.i(f's_add_u32 s{sT0}, s{sT0}, s{sT1}')
    e.i(f'v_add_u32 v6, s{sT0}, v6')
    e.i('v_lshlrev_b32 v6, 6, v6')
    e.i('v_lshl_add_u32 v6, v2, 4, v6')
    e.i('s_waitcnt lgkmcnt(0)')
    srd(e, sWG, sPG, sPG+1, 0, D*F*2)
    srd(e, sWU, sPU, sPU+1, 0, D*F*2)
    srd(e, sWD, sPD, sPD+1, 0, D*F*2)
    srd(e, sHC, sPWS, sPWS+1, WS_HC, MAT_BYTES)
    srd(e, sP, sPWS, sPWS+1, WS_SS, S*64)
    srd(e, sFL, sPWS, sPWS+1, WS_FL, 256*256)
    srd(e, sHGS, sPWS, sPWS+1, WS_HG, 256*73728)
    tss = [e.i(f'buffer_load_dwordx4 v[{16+4*q}:{19+4*q}], v6, s[{sP}:{sP+3}], 0 offen offset:{1024*q}') for q in range(2)]
    P2 = [('S', 0, 0, b) for b in range(9)] + [('S', 0, 1, b) for b in range(9)] + [('T', 0, ts) for ts in range(3)]
    if p2order == 0:
        P2 += [('S', 1, 0, b) for b in range(9)] + [('S', 1, 1, b) for b in range(9)] + [('T', 1, ts) for ts in range(3)]
    else:
        P2 += [('S', 1, 0, b) for b in range(6)] + [('S', 1, 1, b) for b in range(6)] + [('S', 1, 0, b) for b in range(6, 9)] + \
              [('S', 1, 1, b) for b in range(6, 9)] + [('T', 1, ts) for ts in range(3)]
    def a_dma(t):
        slot = t % NS
        r = [f's_add_u32 m0, s{sWB}, {RING + slot*8192}']
        m2 = f's_add_u32 m0, s{sWB}, {RING + slot*8192 + 4096}'
        if t < 81:
            if t < 72:
                wi, s = divmod(t, 18)
                if s == 0:
                    r += [f's_add_u32 s{sT0}, s{sROT}, {wi}', f's_and_b32 s{sT0}, s{sT0}, 3', f's_lshl_b32 s{sT0}, s{sT0}, 7',
                          f's_lshl_b32 s{sT1}, s{sFF}, 1', f's_add_u32 s{sOFF}, s{sT1}, s{sT0}']
                else: r.append(f's_add_u32 s{sOFF}, s{sOFF}, {32*9216}')
                vo = vD1
            else:
                sp = t - 72
                if sp == 0: r.append(f's_lshl_b32 s{sOFF}, s{sFH}, 1')
                else: r.append(f's_add_u32 s{sOFF}, s{sOFF}, {64*9216}')
                vo = vD1H
            r.append((f'buffer_load_dwordx4 v{vo}, s[{sWG}:{sWG+3}], s{sOFF} offen {wmod} lds', ('A', t, 0)))
            r += [m2, 's_nop 0', (f'buffer_load_dwordx4 v{vo}, s[{sWU}:{sWU+3}], s{sOFF} offen {wmod} lds', ('A', t, 1))]
            return r
        d = P2[t - 81]; pas = d[1]
        FR = sFR2 if pas else sFR; FH = sFRH2 if pas else sFRH
        if d[0] == 'S':
            k, b = d[2], d[3]
            if b == 8: r.append(f's_add_u32 s{sOFF}, s{FH}, s{sNB[k]}')
            else:
                r.append(f's_add_u32 s{sOFF}, s{FR[b//2]}, s{sNB[k]}')
                if b & 1: r += [f's_add_u32 s{sOFF}, s{sOFF}, {32*1152}']
            r.append((f'buffer_load_dwordx4 v{vD1}, s[{sWD}:{sWD+3}], s{sOFF} offen {wmod} lds', ('A', t, 0)))
            r += [m2, f's_add_u32 s{sO2}, s{sOFF}, {16*1152}', (f'buffer_load_dwordx4 v{vD1}, s[{sWD}:{sWD+3}], s{sO2} offen {wmod} lds', ('A', t, 1))]
            return r
        ts = d[2]
        r.append(f's_add_u32 s{sOFF}, s{FR[2*ts] if ts < 2 else FH}, s{sNT}')
        r.append((f'buffer_load_dwordx4 v{vD1H}, s[{sWD}:{sWD+3}], s{sOFF} offen {wmod} lds', ('A', t, 0)))
        if ts < 2:
            r += [m2, f's_add_u32 s{sO2}, s{FR[2*ts+1]}, s{sNT}', (f'buffer_load_dwordx4 v{vD1H}, s[{sWD}:{sWD+3}], s{sO2} offen {wmod} lds', ('A', t, 1))]
        return r
    def b_dma(t):
        r = [f's_add_u32 m0, s{sWB}, {HH + (t % NSB)*8192}']
        if t == 0:
            r += [f's_lshl_b32 s{sBOFF}, s{sRB}, 3', f's_add_u32 s{sBOFF}, s{sBOFF}, s{sMQ}', f's_mul_i32 s{sBOFF}, s{sBOFF}, {18*1024}']
        else:
            r.append(f's_add_u32 s{sBOFF}, s{sBOFF}, 1024')
        r.append((f'buffer_load_dwordx4 v{vL16}, s[{sHC}:{sHC+3}], s{sBOFF} offen {bmod} lds', ('B', t, 0)))
        r += [f's_add_u32 m0, s{sWB}, {HH + (t % NSB)*8192 + 4096}', f's_add_u32 s{sO2}, s{sBOFF}, {4*18*1024}',
              (f'buffer_load_dwordx4 v{vL16}, s[{sHC}:{sHC+3}], s{sO2} offen {bmod} lds', ('B', t, 1))]
        return r
    cur = [0]
    def emit(lst):
        for x in lst:
            txt = x[0] if isinstance(x, tuple) else x
            if isinstance(txt, str):
                if 'nodma' in exp and ' lds' in txt and 'buffer_load' in txt and len(e.ins) > 300: continue
                if 'novalu' in exp and txt.startswith('v_') and len(e.ins) > 300: continue
                if 'nostore' in exp and txt.startswith('buffer_store') and f's[{sP}:' in txt: continue
                if 'stskip%d' % cur[0] in exp and txt.startswith('buffer_store'): continue
            if isinstance(x, tuple): e.i(x[0], x[1])
            elif callable(x): x()
            else: e.i(x)
    def stats():
        e.wait(vm=tss)
        e.i('v_cmp_gt_u32 vcc, 2, v2')
        e.i('v_cmp_gt_u32 s[50:51], 3, v2')
        e.nop(1)
        for q in range(2):
            b = 16 + 4*q
            for k in (1, 2, 3): e.i(f'v_cndmask_b32 v{b+k}, 0, v{b+k}, vcc')
            e.i(f'v_cndmask_b32 v{b}, 0, v{b}, s[50:51]')
            e.i(f'v_add_f32 v{b}, v{b}, v{b+1}')
            e.i(f'v_add_f32 v{b+2}, v{b+2}, v{b+3}')
            e.i(f'v_add_f32 v{b}, v{b}, v{b+2}')
        for swp in ('v_permlane16_swap_b32', 'v_permlane32_swap_b32'):
            for q in range(2): e.i(f'v_mov_b32 v{17+4*q}, v{16+4*q}')
            e.nop(2)
            for q in range(2): e.i(f'{swp} v{16+4*q}, v{17+4*q}')
            e.nop(1)
            for q in range(2): e.i(f'v_add_f32 v{16+4*q}, v{16+4*q}, v{17+4*q}')
            e.nop(1)
        e.i(f's_mov_b32 s{sT0}, {f2u(1.0/576)}')
        e.i(f's_mov_b32 s{sT1}, {f2u(C0)}')
        e.i(f's_mov_b32 s{sT2}, {f2u(C1)}')
        for q in range(2):
            b = 16 + 4*q
            e.i(f'v_mov_b32 v{b+1}, {f2u(1e-5)}')
            e.i(f'v_fma_f32 v{vV[q]}, v{b}, s{sT0}, v{b+1}')
            e.i(f'v_rsq_f32 v{b}, v{vV[q]}')
            e.nop(1)
            e.i(f'v_mul_f32 v{vCA[q]}, s{sT1}, v{b}')
            e.i(f'v_mul_f32 v{b+1}, v{b}, v{b}')
            e.i(f'v_mul_f32 v{b+1}, v{b+1}, v{b}')
            e.i(f'v_mul_f32 v{vCB[q]}, s{sT2}, v{b+1}')
        e.i(f's_lshr_b32 s{sT0}, s{sJ}, 1')
        e.i(f's_mul_i32 s{sT0}, s{sT0}, {MAT_BYTES}')
        e.i(f's_add_u32 s{sT0}, s{sT0}, {WS_P}')
        e.i(f's_add_u32 s{sP}, s{sPWS}, s{sT0}')
        e.i(f's_addc_u32 s{sP+1}, s{sPWS+1}, 0')
        e.i(f's_mov_b32 s{sP+2}, {MAT_BYTES}')
        e.i(f's_mov_b32 s{sP+3}, 0x20000')
        e.i(f's_lshl_b32 s{sT0}, s{sRB}, 3')
        e.i(f's_lshl_b32 s{sT1}, s{sMQ}, 1')
        e.i(f's_add_u32 s{sT0}, s{sT0}, s{sT1}')
        e.i(f's_mul_i32 s{sPO}, s{sT0}, {18*1024}')

    NT = 123
    def frags(t):
        slot = RING + (t % NS)*8192
        out = []
        if t < 72:
            wi, s = divmod(t, 18); st = wi & 1
            for mat in range(2):
                for cc in range(2):
                    out.append(dict(ar=vRA[cc], off=slot + mat*4096, off2=2048,
                                    mf=[(acc1(st, mat, cc, q), vB(q, s), s == 0) for q in range(2)]))
        elif t < 81:
            sp = t - 72
            for kp in range(2):
                s = 2*sp + kp
                for mat in range(2):
                    out.append(dict(ar=vRH, off=slot + mat*4096 + kp*2048, off2=1024,
                                    mf=[(acc1(0, mat, 0, q), vB(q, s), s == 0) for q in range(2)]))
        else:
            d = P2[t - 81]; pas = d[1]
            BR = vB2 if pas else vB
            if d[0] == 'S':
                k, b = d[2], d[3]
                for cc in range(4):
                    out.append(dict(ar=vR2[cc], off=slot, off2=4096, blk=(pas, b),
                                    mf=[(acc2(k, cc, q), BR(q, b), pas == 0 and b == 0) for q in range(2)]))
            else:
                ts = d[2]
                for kq in range(4):
                    b = 4*ts + kq
                    if b > 8: continue
                    out.append(dict(ar=vRH, off=slot + kq*2048, off2=1024, blk=(pas, b),
                                    mf=[(accT(q), BR(q, b), pas == 0 and b == 0) for q in range(2)]))
        return out
    flist = [(t, a) for t in range(NT) for a in range(len(frags(t)))]
    fidx = {k: i for i, k in enumerate(flist)}
    SWITCH = len(flist) + 100
    def fset(i):
        if i < SWITCH: return ASET1[i % NA1] if NA1 <= 4 or True else None
        return ASET2[(i - SWITCH) % NA2]
    def dist(i):
        return (NA1 if i < SWITCH else NA2) - 1
    rtag = {}; bread = {}; hread = {}
    def rd_half(i, h):
        t, a = flist[i]; f = frags(t)[a]; ra = fset(i)
        if 'noread' in exp and t > 0:
            rtag.setdefault(i, []); return
        tg = e.i(f'ds_read_b64_tr_b16 v[{ra+2*h}:{ra+2*h+1}], v{f["ar"]} offset:{f["off"] + h*f["off2"]}')
        rtag.setdefault(i, []).append(tg)
    def read_b(t):
        def fn():
            bread[t] = [e.i(f'ds_read_b128 v[{vB(q,t)}:{vB(q,t)+3}], v{vBS} offset:{(t % NSB)*8192 + q*1024}') for q in range(2)]
        return [fn]
    def read_h(b):
        def fn():
            hread[(0, b)] = [e.i(f'ds_read_b128 v[{vB(q,b)}:{vB(q,b)+3}], v{vHW} offset:{(b*2+q)*1024}') for q in range(2)]
        return fn
    def read_h2(b):
        def fn():
            hread[(1, b)] = [e.i(f'ds_read_b128 v[{vB2(q,b)}:{vB2(q,b)+3}], v{vHW} offset:{(b*2+q)*1024}') for q in range(2)]
        return fn
    def geglu_ops(st, ncc):
        ops = []
        for q in range(2):
            for cc in range(ncc):
                a = [acc1(st, 0, cc, q) + jj for jj in range(4)]
                b = [acc1(st, 1, cc, q) + jj for jj in range(4)]
                T = vT
                for jj in range(4): ops.append(f'v_mul_f32 v{T[jj]}, v{a[jj]}, v{a[jj]}')
                for jj in range(4): ops.append(f'v_fma_f32 v{T[jj]}, v{T[jj]}, v{vCB[q]}, v{vCA[q]}')
                for jj in range(4): ops.append(f'v_mul_f32 v{T[jj]}, v{a[jj]}, v{T[jj]}')
                for jj in range(4): ops.append(f'v_exp_f32 v{T[jj]}, v{T[jj]}')
                for jj in range(4): ops.append(f'v_mul_f32 v{b[jj]}, v{a[jj]}, v{b[jj]}')
                for jj in range(4): ops.append(f'v_fma_f32 v{T[jj]}, v{T[jj]}, v{vV[q]}, v{vV[q]}')
                for jj in range(4): ops.append(f'v_rcp_f32 v{T[jj]}, v{T[jj]}')
                for jj in range(4): ops.append(f'v_mul_f32 v{b[jj]}, v{b[jj]}, v{T[jj]}')
                ops.append(f'v_cvt_pk_bf16_f32 v{vPK(q)+2*cc}, v{b[0]}, v{b[1]}')
                ops.append(f'v_cvt_pk_bf16_f32 v{vPK(q)+2*cc+1}, v{b[2]}, v{b[3]}')
        return ops
    def hh_write_full(wi):
        r = [(f'ds_write_b128 v{vHWF}, v[{vPK(q)}:{vPK(q)+3}] offset:{wi*4096 + q*1024}', ('HW', wi, q)) for q in range(2)]
        r += [f's_lshl_b32 s{sKS}, s{sFHW}, 11', f's_add_u32 s{sKS}, s{sKS}, {wi*4096}', f's_add_u32 s{sKS}, s{sKS}, s{sHG}']
        r += [(f'buffer_store_dwordx4 v[{vPK(q)}:{vPK(q)+3}], v{vL16}, s[{sHGS}:{sHGS+3}], s{sKS} offen offset:{q*1024} sc1', ('HG', wi, q)) for q in range(2)]
        return r
    def hh_write_half():
        return [f's_lshl_b32 s{sKS}, s{sFHW}, 3', f'v_add_u32 v{vT[0]}, s{sKS}, v{vHW}', f'v_add_u32 v{vT[1]}, s{sKS}, v{vL16}'] + \
               [(f'ds_write_b64 v{vT[0]}, v[{vPK(q)}:{vPK(q)+1}] offset:{8*2048 + q*1024}', ('HW', 'h', q)) for q in range(2)] + \
               [f's_add_u32 s{sKS}, s{sHG}, {8*2048}'] + \
               [(f'buffer_store_dwordx2 v[{vPK(q)}:{vPK(q)+1}], v{vT[1]}, s[{sHGS}:{sHGS+3}], s{sKS} offen offset:{q*1024} sc1', ('HG', 'h', q)) for q in range(2)]
    def p2_epilogue(k):
        ops = [f's_lshl_b32 s{sT2}, s{sNB[k]}, 4', f's_lshl_b32 s{sKS}, s{sFHW}, 11', f's_add_u32 s{sT2}, s{sT2}, s{sKS}', f's_add_u32 s{sT2}, s{sT2}, s{sPO}']
        n = 0
        for q in range(2):
            for pp in range(2):
                pk = vPK(n & 1); n += 1
                for h in range(2):
                    cc = 2*pp + h; a = acc2(k, cc, q)
                    ops.append(f'v_cvt_pk_bf16_f32 v{pk+2*h}, v{a}, v{a+1}')
                    ops.append(f'v_cvt_pk_bf16_f32 v{pk+2*h+1}, v{a+2}, v{a+3}')
                off = q*18*1024 + pp*1024
                if off < 4096:
                    ops.append(f'buffer_store_dwordx4 v[{pk}:{pk+3}], v{vL16}, s[{sP}:{sP+3}], s{sT2} offen offset:{off} {store_mod}')
                else:
                    ops.append(f's_add_u32 s{sKS}, s{sT2}, {off}')
                    ops.append(f'buffer_store_dwordx4 v[{pk}:{pk+3}], v{vL16}, s[{sP}:{sP+3}], s{sKS} offen {store_mod}')
        return ops
    def tail_epilogue():
        ops = [f's_lshl_b32 s{sT2}, s{sNT}, 4', f's_add_u32 s{sT2}, s{sT2}, s{sPO}', f's_lshl_b32 s{sKS}, s{sFHW}, 3', f'v_add_u32 v{vT[0]+8}, s{sKS}, v{vL16}']
        for q in range(2):
            a = accT(q); pk = vPK(q)
            ops += [f'v_cvt_pk_bf16_f32 v{pk}, v{a}, v{a+1}', f'v_cvt_pk_bf16_f32 v{pk+1}, v{a+2}, v{a+3}']
            if q: ops.append(f's_add_u32 s{sT2}, s{sT2}, {18*1024}')
            ops.append(f'buffer_store_dwordx2 v[{pk}:{pk+1}], v{vT[0]+8}, s[{sP}:{sP+3}], s{sT2} offen {store_mod}')
        return ops
    def partner_dma(x, tag):
        o = x*1024
        return [f's_mul_i32 s{sKS}, s{sMQ}, 18432', f's_add_u32 m0, s{sKS}, {HH + o}', f's_add_u32 s{sO2}, s{sHG2}, {o}',
                (f'buffer_load_dwordx4 v{vL16}, s[{sHGS}:{sHGS+3}], s{sO2} offen lds', (tag, x))]
    def flag_set(k):
        return [f's_lshl_b32 s{sKS}, s2, 8', f's_add_u32 s{sKS}, s{sKS}, {128*k}', f'v_mov_b32 v{vBS}, 1',
                f'buffer_store_dword v{vBS}, off, s[{sFL}:{sFL+3}], s{sKS} sc1']
    def flag_load(k):
        return [f's_xor_b32 s{sOFF}, s2, 8', f's_lshl_b32 s{sOFF}, s{sOFF}, 8', f's_add_u32 s{sOFF}, s{sOFF}, {128*k}',
                (f'buffer_load_dword v{vD1H}, off, s[{sFL}:{sFL+3}], s{sOFF} sc1', ('FL', k))]
    def flag_check(k):
        def fn():
            lab = f'{name}_fc{k}'
            e.wait(vm=[('FL', k)])
            keep = list(e.vmq)
            e.i(f's_mov_b32 s{sO2}, 0x40000')
            e.i(f'{lab}_spin:')
            e.i(f'v_readfirstlane_b32 s{sKS}, v{vD1H}')
            e.nop(4)
            e.i(f's_cmp_eq_u32 s{sKS}, 1')
            e.i(f's_cbranch_scc1 {lab}_ok')
            e.i(f's_sub_u32 s{sO2}, s{sO2}, 1')
            e.i(f's_cmp_eq_u32 s{sO2}, 0')
            e.i(f's_cbranch_scc1 {lab}_ok')
            e.i('s_sleep 2')
            e.i(f'buffer_load_dword v{vD1H}, off, s[{sFL}:{sFL+3}], s{sOFF} sc1')
            e.i('s_waitcnt vmcnt(0)')
            e.i(f's_branch {lab}_spin')
            e.i(f'{lab}_ok:')
            e.vmq = keep
        return [fn]
    def p2_dma_full_setup():
        T = [0, 1, 2]
        return [f'v_lshrrev_b32 v{T[0]}, 4, v{L}', f's_lshl_b32 s{sT2}, s{sMQ}, 2', f'v_add_u32 v{T[0]}, s{sT2}, v{T[0]}',
                f'v_and_b32 v{T[1]}, 7, v{T[0]}', f'v_lshlrev_b32 v{T[1]}, 1, v{T[1]}', f'v_and_b32 v{T[2]}, 15, v{L}',
                f'v_xor_b32 v{T[2]}, v{T[1]}, v{T[2]}', f'v_mul_u32_u24 v{T[0]}, 1152, v{T[0]}', f'v_lshl_add_u32 v{vD1}, v{T[2]}, 4, v{T[0]}']
    def p2_dma_half_setup():
        T = [136, 137, 138]
        return [f'v_lshrrev_b32 v{T[0]}, 2, v{L}', f'v_bfe_u32 v{T[1]}, v{L}, 4, 1', f'v_lshlrev_b32 v{T[1]}, 1, v{T[1]}',
                f'v_and_b32 v{T[2]}, 3, v{L}', f'v_xor_b32 v{T[2]}, v{T[1]}, v{T[2]}', f's_lshl_b32 s{sT2}, s{sMQ}, 4',
                f'v_add_u32 v{T[0]}, s{sT2}, v{T[0]}', f'v_mul_u32_u24 v{T[0]}, 1152, v{T[0]}', f'v_lshl_add_u32 v{vD1H}, v{T[2]}, 4, v{T[0]}']
    def p2_read_setup():
        return [f'v_lshrrev_b32 v0, 4, v{L}', f'v_bfe_u32 v1, v{L}, 2, 2', f'v_lshl_add_u32 v0, v0, 2, v1',
                'v_and_b32 v1, 7, v0', f's_lshl_b32 s{sKS}, s{sFHW}, 2', f'v_xor_b32 v1, s{sKS}, v1',
                'v_lshlrev_b32 v0, 8, v0', f'v_and_b32 v2, 3, v{L}', 'v_lshl_add_u32 v0, v2, 3, v0',
                f'v_lshl_add_u32 v{vR2[0]}, v1, 5, v0'] + [f'v_xor_b32 v{vR2[cc]}, {32*cc}, v{vR2[0]}' for cc in range(1, 4)]
    fill = [[] for _ in range(NT + 1)]
    def spread(ops, t0, t1):
        n = t1 - t0; m = len(ops)
        for k in range(n): fill[t0 + k] += ops[k*m//n:(k+1)*m//n]
    for wi in range(3):
        t0 = 18*(wi+1)
        spread(geglu_ops(wi & 1, 2), t0 + 1, t0 + 17)
        fill[t0 + 17] += hh_write_full(wi)
    spread(geglu_ops(1, 2), 72, 80); fill[80] += hh_write_full(3)
    spread(geglu_ops(0, 1), 81, 86); fill[86] += hh_write_half()
    HBLK = {74: (0,), 75: (1,), 76: (2,), 77: (3,), 78: (4,), 79: (5,), 82: (6, 7), 88: (8,)}
    t2 = 106 if p2order == 0 else 112
    HBLK2 = {100: (0, 1, 2), 101: (3, 4, 5), t2: (6, 7, 8)}
    BARX = {82: [('HW', 3, 0), ('HW', 3, 1)], 88: [('HW', 'h', 0), ('HW', 'h', 1)], 72: [('HW', 2, 0), ('HW', 2, 1)]}
    FS0, FS1 = fs
    BARV = {FS0: [('HG', wi, q) for wi in range(3) for q in range(2)], FS1: [('HG', wi, q) for wi in (3, 'h') for q in range(2)],
            100: [('PH', x) for x in range(12)], t2: [('PH2', x) for x in range(12, 18)]}
    if p2order == 0: spread(p2_epilogue(0), 111, 119)
    else: spread(p2_epilogue(0), 117, 120)
    spread(p2_epilogue(1), 120, 123)
    PDMA = {}
    for x in range(12): PDMA[86 + x] = partner_dma(x, 'PH')
    if p2order == 0:
        for x in range(12, 18): PDMA.setdefault(100 + (x - 12)//3, []).extend(partner_dma(x, 'PH2'))
        FLOAD = {82: 0, 96: 1}; FCHK = {85: 0, 99: 1}
    else:
        for x in range(12, 18): PDMA.setdefault(104 + (x - 12)//2, []).extend(partner_dma(x, 'PH2'))
        FLOAD = {82: 0, 100: 1}; FCHK = {85: 0, 103: 1}
    setup_full_t = 73 if P <= 7 else None
    assert 71 - P < setup_full_t < 81 - P
    setup_read_t = 73
    assert NA1 <= 4 or True
    setup_half_t = 89
    assert 80 - P < setup_half_t < 99 - P

    def barrier_point(tb, grp):
        vm = []
        if grp == 0:
            for t in range(tb, min(tb + BG, NT - 1) + 1): vm += [('A', t, 0), ('A', t, 1)]
            for t in range(tb, min(tb + BG, 17) + 1): vm += [('B', t, 0), ('B', t, 1)]
        vm += BARV.get(tb, [])
        e.wait(vm=vm, lg=BARX.get(tb, []))
        if 'nobar' not in exp or tb == 0: e.i('s_barrier')
        if grp == 0 and tb == FS0: emit(flag_set(0))
        if grp == 0 and tb == FS1: emit(flag_set(1))
    def stamp(x):
        if diag and x in stamps:
            k = stamps.index(x)
            e.i(f's_memtime s[{sST+2*k}:{sST+1+2*k}]')
    def stream(grp):
        rtag.clear(); bread.clear(); hread.clear(); cur[0] = grp
        if grp == 0:
            for t in range(max(P, PB)):
                if t < PB: emit(b_dma(t))
                if t < P: emit(a_dma(t))
        stats()
        barrier_point(0, grp)
        emit(read_b(0))
        nxt = 0
        for i in range(dist(0)): rd_half(i, 0); rd_half(i, 1)
        nxt = dist(0)
        for t in range(NT):
            e.c(f'---- step {t}')
            stamp(t)
            if t and (t % BG == 0 or t in BARX): barrier_point(t, grp)
            fr = frags(t)
            mem = []
            if grp == 0:
                if t + P < NT: mem += a_dma(t + P)
                if t + PB < 18: mem += b_dma(t + PB)
            lds = []
            if t + 1 < 18: lds += read_b(t + 1)
            lds += [read_h(b) for b in HBLK.get(t, ())]
            lds += [read_h2(b) for b in HBLK2.get(t, ())]
            if grp == pgrp: mem += PDMA.get(t, [])
            if grp == 1 and t in FLOAD: mem += flag_load(FLOAD[t])
            if warm and grp == 1 and t in warm:
                kind = warm[t]
                lab = f'{name}_wm{t}'
                if kind[0] == 'D':
                    mem += [f's_lshr_b32 s{sOFF}, s2, 3', f's_mul_i32 s{sOFF}, s{sOFF}, {162*128}', f's_and_b32 s{sO2}, s2, 7',
                            f's_mul_i32 s{sO2}, s{sO2}, {576*1152}', f's_add_u32 s{sOFF}, s{sOFF}, s{sO2}',
                            f's_lshl_b32 s{sO2}, s{sMQ}, 13', f's_add_u32 s{sOFF}, s{sOFF}, s{sO2}', f'v_lshlrev_b32 v{vD1}, 7, v{L}',
                            f'buffer_load_dword v{vD1H}, v{vD1}, s[{sWD}:{sWD+3}], s{sOFF} offen']
                else:
                    mem += [f's_lshr_b32 s{sOFF}, s2, 3', f's_mul_i32 s{sOFF}, s{sOFF}, {18*9216}', f's_and_b32 s{sO2}, s2, 7',
                            f's_mul_i32 s{sO2}, s{sO2}, 1152', f's_add_u32 s{sOFF}, s{sOFF}, s{sO2}', f's_add_u32 s{sOFF}, s{sOFF}, 512',
                            f'v_min_u32 v{vD1}, 17, v{L}', f'v_mul_u32_u24 v{vD1}, 9216, v{vD1}',
                            f'buffer_load_dword v{vD1H}, v{vD1}, s[{sWG}:{sWG+3}], s{sOFF} offen',
                            f'buffer_load_dword v{vBS}, v{vD1}, s[{sWU}:{sWU+3}], s{sOFF} offen']
            q = list(fill[t])
            if t == setup_read_t: q = p2_read_setup() + q
            if grp == 0 and t == setup_full_t: q = p2_dma_full_setup() + q
            if grp == 0 and t == setup_half_t: q = p2_dma_half_setup() + q
            if grp == 1 and ppf is not None and t >= ppf[0] and (t - ppf[0]) % ppf[1] == 0 and (t - ppf[0]) // ppf[1] < 5:
                k = (t - ppf[0]) // ppf[1]
                pre = []
                if k == 0:
                    pre += [f's_mul_i32 s{sOFF}, s{sRB}, 147456', f's_mul_i32 s{sO2}, s{sMQ}, {288*128}', f's_add_u32 s{sOFF}, s{sOFF}, s{sO2}',
                            f'v_lshlrev_b32 v{vD1}, 7, v{L}']
                else: pre += [f's_add_u32 s{sOFF}, s{sOFF}, 8192']
                pre += [f'buffer_load_dword v{vBS}, v{vD1}, s[{sP}:{sP+3}], s{sOFF} offen']
                mem += pre
            nm = 2*len(fr)
            if dmaslot == 0: emit(mem); mem = []
            q = lds + q
            n = 0
            for a, f in enumerate(fr):
                i = fidx[(t, a)]
                need = list(rtag[i])
                bq = f['mf'][0][1]
                if t < 18: need += bread[t]
                if t >= 81: need += hread.get(f['blk'], [])
                e.wait(lg=need)
                ra = fset(i)
                for k, (acc, breg, zero) in enumerate(f['mf']):
                    c = '0' if zero else f'v[{acc}:{acc+3}]'
                    e.i(f'v_mfma_f32_16x16x32_bf16 v[{acc}:{acc+3}], v[{ra}:{ra+3}], v[{breg}:{breg+3}], {c}')
                    tgt = i + dist(min(i + 1, len(flist) - 1))
                    while nxt <= tgt and nxt < len(flist) and nxt < tgt:
                        rd_half(nxt, 0); rd_half(nxt, 1); nxt += 1
                    if nxt < len(flist) and nxt == tgt:
                        rd_half(nxt, k)
                        if k == 1: nxt += 1
                    lo, hi = n*len(q)//nm, (n+1)*len(q)//nm
                    emit(q[lo:hi]); n += 1
                    if mem and n == dmaslot: emit(mem); mem = []
            emit(mem)
            if grp == 1 and t in FCHK: emit(flag_check(FCHK[t]))
        e.nop(8)
        emit(tail_epilogue())
        e.i('s_waitcnt vmcnt(0)')
        if diag:
            e.i(f's_memrealtime s[{sTS+2}:{sTS+3}]')
            e.i('s_waitcnt lgkmcnt(0)')
            srd(e, sHC, sPWS, sPWS+1, WS_TS + 2*0x10000, 0x10000)
            e.i(f's_lshl_b32 s{sT0}, s2, 3'); e.i(f's_add_u32 s{sT0}, s{sT0}, s{sw}'); e.i(f's_lshl_b32 s{sT0}, s{sT0}, 4')
            for k in range(4): e.i(f'v_mov_b32 v{k}, s{sTS+k}')
            e.i('v_mov_b32 v4, 0')
            e.i(f'buffer_store_dwordx4 v[0:3], v4, s[{sHC}:{sHC+3}], s{sT0} offen')
            if stamps:
                e.i(f's_memtime s[{sST+2*len(stamps)}:{sST+1+2*len(stamps)}]')
                e.i('s_waitcnt lgkmcnt(0)')
                srd(e, sHC, sPWS, sPWS+1, WS_TS + 4*0x10000, 0x40000)
                e.i(f's_lshl_b32 s{sT0}, s2, 3'); e.i(f's_add_u32 s{sT0}, s{sT0}, s{sw}'); e.i(f's_lshl_b32 s{sT0}, s{sT0}, 7')
                for k in range(len(stamps) + 1):
                    e.i(f'v_mov_b32 v0, s{sST+2*k}')
                    e.i(f'buffer_store_dword v0, v4, s[{sHC}:{sHC+3}], s{sT0} offen offset:{4*k}')
            e.i('s_waitcnt vmcnt(0)')
        e.i('s_endpgm')
    e.i(f's_cmp_ge_u32 s{sw}, 4')
    e.i(f's_cbranch_scc1 {name}_grpB')
    common_n = len(e.ins)
    save = (list(e.vmq), list(e.lgq))
    stream(0)
    nA = len(e.ins)
    e.i(f'{name}_grpB:')
    e.vmq, e.lgq = list(save[0]), list(save[1])
    stream(1)
    segs = [e.ins[:nA], e.ins[:common_n] + e.ins[nA:]]
    e.i(f'{name}_done:')
    e.i('s_endpgm')
    probs = sum((check(x, name) for x in segs), [])
    txt = '.p2align 8\n.type %s,@function\n' % name + e.text() + kernel_desc(name, 256, 100, 256)
    return txt, LDS, probs

if __name__ == '__main__':
    t, lds, pr = gen_k3()
    print(len(t), lds, len(pr))
    open('k3.s', 'w').write('.amdgcn_target "amdgcn-amd-amdhsa--gfx950"\n.text\n' + t)
```

```python
from asmlib import *
from common import *

def gen_k4(name='reduce_kernel', diag=False, load_mod='', store_mod=''):
    e = Emitter(name)
    sP, sHC, sHM, sO = 4, 8, 12, 16
    sPWS, sPO = 20, 22
    sw, sG, sT, sS, sT0 = 24, 25, 26, 27, 28
    sOFFJ = 32
    sTS = 48
    e.i(f'{name}:')
    e.i('s_cmp_ge_u32 s2, 576')
    e.i(f's_cbranch_scc1 {name}_done')
    if diag: e.i(f's_memrealtime s[{sTS}:{sTS+1}]')
    e.i(f's_load_dwordx2 s[{sPWS}:{sPWS+1}], s[0:1], {ARG_WS}')
    e.i(f's_load_dwordx2 s[{sPO}:{sPO+1}], s[0:1], {ARG_OUT}')
    e.i('v_lshrrev_b32 v1, 6, v0')
    e.i('v_and_b32 v2, 63, v0')
    e.i(f'v_readfirstlane_b32 s{sw}, v1')
    e.i('v_lshlrev_b32 v3, 4, v2')
    e.i('v_and_b32 v4, 15, v2')
    e.i('v_lshrrev_b32 v5, 4, v2')
    e.i(f's_lshl_b32 s{sG}, s2, 2')
    e.i(f's_add_u32 s{sG}, s{sG}, s{sw}')
    e.i(f's_mul_i32 s{sT}, s{sG}, 3641')
    e.i(f's_lshr_b32 s{sT}, s{sT}, 16')
    e.i(f's_mul_i32 s{sT0}, s{sT}, 18')
    e.i(f's_sub_u32 s{sS}, s{sG}, s{sT0}')
    e.i(f's_lshl_b32 s{sG}, s{sG}, 10')
    for j in range(NPART):
        e.i(f's_add_u32 s{sOFFJ+j}, s{sG}, {j*MAT_BYTES}')
    e.i(f's_lshl_b32 s{sT0}, s{sT}, 4')
    e.i(f'v_add_u32 v6, s{sT0}, v4')
    e.i('v_lshlrev_b32 v7, 2, v6')
    e.i('v_mul_u32_u24 v8, 1152, v6')
    e.i('v_and_b32 v9, 1, v5')
    e.i('v_lshlrev_b32 v9, 5, v9')
    e.i('v_lshrrev_b32 v10, 1, v5')
    e.i('v_lshl_add_u32 v9, v10, 4, v9')
    e.i('v_add_u32 v8, v8, v9')
    e.i(f's_lshl_b32 s{sT0}, s{sS}, 6')
    e.i(f'v_add_u32 v8, s{sT0}, v8')
    e.i('s_waitcnt lgkmcnt(0)')
    srd(e, sP, sPWS, sPWS+1, WS_P, NPART*MAT_BYTES)
    srd(e, sHC, sPWS, sPWS+1, WS_HC, MAT_BYTES)
    srd(e, sHM, sPWS, sPWS+1, WS_HM, S*4)
    srd(e, sO, sPO, sPO+1, 0, MAT_BYTES)
    th = e.i(f'buffer_load_dword v11, v7, s[{sHM}:{sHM+3}], 0 offen')
    tc = e.i(f'buffer_load_dwordx4 v[12:15], v3, s[{sHC}:{sHC+3}], s{sG} offen')
    tp = [e.i(f'buffer_load_dwordx4 v[{32+4*j}:{35+4*j}], v3, s[{sP}:{sP+3}], s{sOFFJ+j} offen {load_mod}') for j in range(NPART)]
    acc = list(range(16, 24))
    e.i('v_mov_b32 v24, 0xffff0000')
    e.wait(vm=[th, tc])
    for k in range(4):
        e.i(f'v_lshlrev_b32 v25, 16, v{12+k}')
        e.i(f'v_and_b32 v26, v24, v{12+k}')
        e.i(f'v_add_f32 v{acc[2*k]}, v11, v25')
        e.i(f'v_add_f32 v{acc[2*k+1]}, v11, v26')
    for j in range(NPART):
        e.wait(vm=[tp[j]])
        for k in range(4):
            r = 32 + 4*j + k
            e.i(f'v_lshlrev_b32 v{25+(k&1)*2}, 16, v{r}')
            e.i(f'v_and_b32 v{26+(k&1)*2}, v24, v{r}')
            e.i(f'v_add_f32 v{acc[2*k]}, v{acc[2*k]}, v{25+(k&1)*2}')
            e.i(f'v_add_f32 v{acc[2*k+1]}, v{acc[2*k+1]}, v{26+(k&1)*2}')
    for k in range(4):
        e.i(f'v_cvt_pk_bf16_f32 v{12+k}, v{acc[2*k]}, v{acc[2*k+1]}')
    e.nop(2)
    e.i('v_permlane16_swap_b32 v12, v14')
    e.i('v_permlane16_swap_b32 v13, v15')
    e.nop(1)
    e.i(f'buffer_store_dwordx4 v[12:15], v8, s[{sO}:{sO+3}], 0 offen {store_mod}')
    if diag:
        e.i('s_waitcnt vmcnt(0)')
        e.i(f's_memrealtime s[{sTS+2}:{sTS+3}]')
        e.i('s_waitcnt lgkmcnt(0)')
        srd(e, sHC, sPWS, sPWS+1, WS_TS + 3*0x10000, 0x10000)
        e.i(f's_lshl_b32 s{sT0}, s2, 2'); e.i(f's_add_u32 s{sT0}, s{sT0}, s{sw}'); e.i(f's_lshl_b32 s{sT0}, s{sT0}, 4')
        for k in range(4): e.i(f'v_mov_b32 v{k}, s{sTS+k}')
        e.i('v_mov_b32 v4, 0')
        e.i(f'buffer_store_dwordx4 v[0:3], v4, s[{sHC}:{sHC+3}], s{sT0} offen')
        e.i('s_waitcnt vmcnt(0)')
    e.i(f'{name}_done:')
    e.i('s_endpgm')
    probs = check(e.ins, name)
    txt = '.p2align 8\n.type %s,@function\n' % name + e.text() + kernel_desc(name, 96, 64, 96)
    return txt, 0, probs

if __name__ == '__main__':
    t, lds, pr = gen_k4()
    open('k4.s', 'w').write('.amdgcn_target "amdgcn-amd-amdhsa--gfx950"\n.text\n' + t)
    print(len(t), len(pr))
```

```python
import os
S = 2048; D = 576; F = 4608
WS_BASE = int(os.environ.get('WS_BASE', '0'), 0)
WS_O  = WS_BASE + 0x000000
WS_HC = WS_BASE + 0x240000
WS_SS = WS_BASE + 0x480000
WS_XM = WS_BASE + 0x4A0000
WS_HM = WS_BASE + 0x4A2000
WS_WB = WS_BASE + 0x4A4000
WS_TS = WS_BASE + 0x4B0000
WS_FL = WS_BASE + 0x540000
WS_P  = WS_BASE + 0x600000
WS_HG = WS_BASE + 0x1800000
NPART = 8
MAT_BYTES = 0x240000
ARG_X, ARG_WQKV, ARG_WO, ARG_BX, ARG_WG, ARG_WU, ARG_WD, ARG_OUT, ARG_DBG, ARG_WS = [8*i for i in range(10)]

def srd(e, s, lo, hi, off, size):
    if off:
        e.i(f's_add_u32 s{s}, s{lo}, {off}')
        e.i(f's_addc_u32 s{s+1}, s{hi}, 0')
    else:
        e.i(f's_mov_b32 s{s}, s{lo}')
        e.i(f's_mov_b32 s{s+1}, s{hi}')
    e.i(f's_mov_b32 s{s+2}, {size}')
    e.i(f's_mov_b32 s{s+3}, 0x20000')

def stamp_begin(e, s):
    e.i(f's_memrealtime s[{s}:{s+1}]')

def stamp_end(e, kidx, sbeg, send, ws_lo, ws_hi, ssrd, vtmp, wgid='s2', nw=8):
    e.i(f's_memrealtime s[{send}:{send+1}]')
    e.i('s_waitcnt lgkmcnt(0)')
    srd(e, ssrd, ws_lo, ws_hi, WS_TS + kidx*0x10000, 0x10000)
    return
```

```python
from asmlib import *
from common import *
import struct

C0 = -2.0 * 1.4426950408889634 * 0.7978845608028654
C1 = C0 * 0.044715
def f2u(x): return struct.unpack('<I', struct.pack('<f', x))[0]

def gen_k3(name='ffn_kernel', NS=8, BG=2, P=None, PB=None, NSB=8, diag=False, store_mod='', stamps=(), exp='',
           NA1=4, NA2=4, dmaslot=0, wevery=1, ppf=None, wmod='', bmod='', pgrp=1, fs=(76, 92), warm=None, p2order=0, warm0=False):
    if P is None: P = NS - BG
    if PB is None: PB = NSB - BG
    e = Emitter(name)
    RING = 0
    HH = NS * 8192
    LDS = HH + 73728
    assert NS in (8, 11)
    SC = 7 if NS == 11 else 0
    slot_of = lambda t: (t + SC) % NS
    HI = 65536
    vB = lambda q, s: (s*2 + q)*4
    acc1 = lambda st, mat, cc, q: 144 + 32*st + ((mat*2 + cc)*2 + q)*4
    acc2 = lambda k, cc, q: (176 if k == 0 else 144) + (cc*2 + q)*4
    accT = lambda q: 232 + 4*q
    vB2 = lambda q, s: 72 + (s*2 + q)*4
    ASET1 = [208, 212, 216, 220, 248 ]
    ASET2 = [208, 212, 216, 220, 136, 140, 144, 148]
    vPK = lambda q: 224 + 4*q
    vT = [232, 233, 234, 235]
    vCA = [236, 239]; vCB = [237, 240]; vV = [238, 241]
    vRA = [242, 243]
    vRH = 244
    vD1, vD1H = 245, 246
    vHW = 247
    vBS = 252
    vHWF = 253
    vR2 = [242, 243, 248, 249]
    vRAh = [248, 249]; vRHh = 250; vR2h = [240, 241, 251, 252]
    vL16 = 254
    vX = 255
    NA1 = min(NA1, 5); assert NA2 <= 6
    sWG, sWD, sHC, sP, sWU = 4, 8, 12, 16, 52
    sPG, sPU, sPD, sPWS = 20, 22, 24, 26
    sw, sWB, sRB, sJ, sROT = 28, 29, 30, 31, 32
    sFF, sFH = 33, 34
    sOFF, sBOFF, sT0 = 35, 36, 37
    sFB = 38
    sPO = 39
    sKS = 40
    sMQ, sFHW = 41, 42
    sT1, sT2, sO2 = 43, 44, 45
    sFR = [46, 47, 48, 49]
    sFR2 = [84, 85, 86, 87]; sFRH, sFRH2 = 88, 89
    sNB = [90, 91]; sNT = 92; sHG, sHG2 = 93, 94
    sFL = 64; sHGS = 68
    sTS = 56
    sST = 72
    e.i(f'{name}:')
    e.i('s_cmp_ge_u32 s2, 256')
    e.i(f's_cbranch_scc1 {name}_done')
    if diag: e.i(f's_memrealtime s[{sTS}:{sTS+1}]')
    e.i(f's_load_dwordx4 s[{sPG}:{sPG+3}], s[0:1], {ARG_WG}')
    e.i(f's_load_dwordx2 s[{sPD}:{sPD+1}], s[0:1], {ARG_WD}')
    e.i(f's_load_dwordx2 s[{sPWS}:{sPWS+1}], s[0:1], {ARG_WS}')
    e.i('v_lshrrev_b32 v1, 6, v0')
    e.i(f'v_and_b32 v{vX}, 63, v0')
    e.i(f'v_readfirstlane_b32 s{sw}, v1')
    e.i(f's_and_b32 s{sJ}, s2, 7')
    e.i(f's_lshl_b32 s{sJ}, s{sJ}, 1')
    e.i(f's_lshr_b32 s{sT0}, s2, 3')
    e.i(f's_and_b32 s{sT0}, s{sT0}, 1')
    e.i(f's_add_u32 s{sJ}, s{sJ}, s{sT0}')
    e.i(f's_lshr_b32 s{sRB}, s2, 4')
    e.i(f's_and_b32 s{sROT}, s{sRB}, 3')
    e.i(f's_mul_i32 s{sT1}, s{sJ}, 288')
    e.i(f's_and_b32 s{sT0}, s{sJ}, 1')
    e.i(f's_lshl_b32 s{sT2}, s{sT0}, 5')
    e.i(f's_add_u32 s{sFF}, s{sT1}, s{sT2}')
    e.i(f's_xor_b32 s{sT0}, s{sT0}, 1')
    e.i(f's_lshl_b32 s{sT2}, s{sT0}, 8')
    e.i(f's_add_u32 s{sFH}, s{sT1}, s{sT2}')
    e.i(f's_and_b32 s{sMQ}, s{sw}, 3')
    e.i(f's_lshl_b32 s{sWB}, s{sMQ}, 10')
    e.i(f's_lshr_b32 s{sFHW}, s{sw}, 2')
    for wi in range(4):
        e.i(f's_add_u32 s{sT0}, s{sROT}, {wi}')
        e.i(f's_and_b32 s{sT0}, s{sT0}, 3')
        e.i(f's_lshl_b32 s{sT0}, s{sT0}, 6')
        e.i(f's_add_u32 s{sT0}, s{sT0}, s{sFF}')
        e.i(f's_mul_i32 s{sFR[wi]}, s{sT0}, 1152')
    e.i(f's_mul_i32 s{sFRH}, s{sFH}, 1152')
    e.i(f's_xor_b32 s{sT1}, s{sJ}, 1')
    e.i(f's_mul_i32 s{sT2}, s{sT1}, 288')
    e.i(f's_and_b32 s{sT1}, s{sT1}, 1')
    e.i(f's_lshl_b32 s{sKS}, s{sT1}, 5')
    e.i(f's_add_u32 s{sKS}, s{sKS}, s{sT2}')
    e.i(f's_xor_b32 s{sT1}, s{sT1}, 1')
    e.i(f's_lshl_b32 s{sT1}, s{sT1}, 8')
    e.i(f's_add_u32 s{sT1}, s{sT1}, s{sT2}')
    e.i(f's_mul_i32 s{sFRH2}, s{sT1}, 1152')
    for wi in range(4):
        e.i(f's_add_u32 s{sT0}, s{sROT}, {wi}')
        e.i(f's_and_b32 s{sT0}, s{sT0}, 3')
        e.i(f's_lshl_b32 s{sT0}, s{sT0}, 6')
        e.i(f's_add_u32 s{sT0}, s{sT0}, s{sKS}')
        e.i(f's_mul_i32 s{sFR2[wi]}, s{sT0}, 1152')
    e.i(f's_and_b32 s{sT1}, s{sJ}, 1')
    e.i(f's_mul_i32 s{sT2}, s{sT1}, 640')
    e.i(f's_and_b32 s{sT0}, s{sRB}, 1')
    e.i(f's_lshl_b32 s{sT0}, s{sT0}, 8')
    e.i(f's_add_u32 s{sNB[0]}, s{sT2}, s{sT0}')
    e.i(f's_xor_b32 s{sT0}, s{sT0}, 256')
    e.i(f's_add_u32 s{sNB[1]}, s{sT2}, s{sT0}')
    e.i(f's_lshl_b32 s{sT1}, s{sT1}, 6')
    e.i(f's_add_u32 s{sNT}, s{sT1}, 512')
    e.i(f's_mul_i32 s{sHG}, s2, 73728')
    e.i(f's_xor_b32 s{sT0}, s2, 8')
    e.i(f's_mul_i32 s{sHG2}, s{sT0}, 73728')
    e.i(f's_mul_i32 s{sT0}, s{sMQ}, 18432')
    e.i(f's_add_u32 s{sHG}, s{sHG}, s{sT0}')
    e.i(f's_add_u32 s{sHG2}, s{sHG2}, s{sT0}')
    L = vX
    e.i(f'v_lshlrev_b32 v{vL16}, 4, v{L}')
    e.i(f'v_lshrrev_b32 v2, 4, v{L}')
    e.i(f'v_bfe_u32 v3, v{L}, 2, 2')
    e.i(f'v_and_b32 v4, 3, v{L}')
    e.i(f'v_lshl_add_u32 v5, v2, 2, v3')
    e.i('v_bfe_u32 v6, v5, 1, 2')
    e.i(f's_lshl_b32 s{sT0}, s{sFHW}, 1')
    e.i(f'v_xor_b32 v6, s{sT0}, v6')
    e.i('v_lshlrev_b32 v7, 7, v5')
    e.i('v_lshl_add_u32 v7, v4, 3, v7')
    e.i(f'v_lshl_add_u32 v{vRA[0]}, v6, 5, v7')
    e.i(f'v_xor_b32 v{vRA[1]}, 32, v{vRA[0]}')
    e.i('v_and_b32 v6, 1, v2')
    e.i(f'v_xor_b32 v6, s{sFHW}, v6')
    e.i('v_lshlrev_b32 v7, 6, v5')
    e.i('v_lshl_add_u32 v7, v4, 3, v7')
    e.i(f'v_lshl_add_u32 v{vRH}, v6, 5, v7')
    if NS > 8:
        for cc in range(2): e.i(f'v_add_u32 v{vRAh[cc]}, {HI}, v{vRA[cc]}')
        e.i(f'v_add_u32 v{vRHh}, {HI}, v{vRH}')
    e.i(f'v_lshrrev_b32 v6, 3, v{L}')
    e.i(f'v_bfe_u32 v7, v{L}, 4, 2')
    e.i('v_lshlrev_b32 v7, 1, v7')
    e.i(f'v_and_b32 v8, 7, v{L}')
    e.i('v_xor_b32 v8, v7, v8')
    e.i(f's_lshl_b32 s{sT0}, s{sMQ}, 3')
    e.i(f'v_add_u32 v9, s{sT0}, v6')
    e.i(f's_mov_b32 s{sT1}, 9216')
    e.i(f'v_mul_lo_u32 v9, v9, s{sT1}')
    e.i(f'v_lshl_add_u32 v{vD1}, v8, 4, v9')
    e.i(f'v_lshrrev_b32 v6, 2, v{L}')
    e.i(f'v_bfe_u32 v7, v{L}, 4, 1')
    e.i('v_lshlrev_b32 v7, 1, v7')
    e.i(f'v_and_b32 v8, 3, v{L}')
    e.i('v_xor_b32 v8, v7, v8')
    e.i(f's_lshl_b32 s{sT0}, s{sMQ}, 4')
    e.i(f'v_add_u32 v9, s{sT0}, v6')
    e.i(f'v_mul_lo_u32 v9, v9, s{sT1}')
    e.i(f'v_lshl_add_u32 v{vD1H}, v8, 4, v9')
    e.i(f's_mul_i32 s{sT0}, s{sMQ}, 18432')
    e.i(f's_add_u32 s{sT0}, s{sT0}, {HH}')
    e.i(f'v_add_u32 v{vHW}, s{sT0}, v{vL16}')
    e.i(f's_lshl_b32 s{sT0}, s{sFHW}, 11')
    e.i(f'v_add_u32 v{vHWF}, s{sT0}, v{vHW}')
    e.i(f's_lshl_b32 s{sT0}, s{sMQ}, 11')
    e.i(f's_add_u32 s{sT0}, s{sT0}, {HH}')
    e.i(f'v_add_u32 v{vBS}, s{sT0}, v{vL16}')
    e.i(f'v_and_b32 v6, 15, v{L}')
    e.i(f's_lshl_b32 s{sT0}, s{sRB}, 7')
    e.i(f's_lshl_b32 s{sT1}, s{sMQ}, 5')
    e.i(f's_add_u32 s{sT0}, s{sT0}, s{sT1}')
    e.i(f'v_add_u32 v6, s{sT0}, v6')
    e.i('v_lshlrev_b32 v6, 6, v6')
    e.i('v_lshl_add_u32 v6, v2, 4, v6')
    e.i('s_waitcnt lgkmcnt(0)')
    srd(e, sWG, sPG, sPG+1, 0, D*F*2)
    srd(e, sWU, sPU, sPU+1, 0, D*F*2)
    srd(e, sWD, sPD, sPD+1, 0, D*F*2)
    srd(e, sHC, sPWS, sPWS+1, WS_HC, MAT_BYTES)
    srd(e, sP, sPWS, sPWS+1, WS_SS, S*64)
    srd(e, sFL, sPWS, sPWS+1, WS_FL, 256*256)
    srd(e, sHGS, sPWS, sPWS+1, WS_HG, 256*73728)
    tss = [e.i(f'buffer_load_dwordx4 v[{16+4*q}:{19+4*q}], v6, s[{sP}:{sP+3}], 0 offen offset:{1024*q}') for q in range(2)]
    P2 = [('S', 0, 0, b) for b in range(9)] + [('S', 0, 1, b) for b in range(9)] + [('T', 0, ts) for ts in range(3)]
    if p2order == 0:
        P2 += [('S', 1, 0, b) for b in range(9)] + [('S', 1, 1, b) for b in range(9)] + [('T', 1, ts) for ts in range(3)]
    else:
        P2 += [('S', 1, 0, b) for b in range(6)] + [('S', 1, 1, b) for b in range(6)] + [('S', 1, 0, b) for b in range(6, 9)] + \
              [('S', 1, 1, b) for b in range(6, 9)] + [('T', 1, ts) for ts in range(3)]
    def a_dma(t):
        slot = slot_of(t)
        r = [f's_add_u32 m0, s{sWB}, {RING + slot*8192}']
        m2 = f's_add_u32 m0, s{sWB}, {RING + slot*8192 + 4096}'
        if t < 81:
            if t < 72:
                wi, s = divmod(t, 18)
                if s == 0:
                    r += [f's_add_u32 s{sT0}, s{sROT}, {wi}', f's_and_b32 s{sT0}, s{sT0}, 3', f's_lshl_b32 s{sT0}, s{sT0}, 7',
                          f's_lshl_b32 s{sT1}, s{sFF}, 1', f's_add_u32 s{sOFF}, s{sT1}, s{sT0}']
                else: r.append(f's_add_u32 s{sOFF}, s{sOFF}, {32*9216}')
                vo = vD1
            else:
                sp = t - 72
                if sp == 0: r.append(f's_lshl_b32 s{sOFF}, s{sFH}, 1')
                else: r.append(f's_add_u32 s{sOFF}, s{sOFF}, {64*9216}')
                vo = vD1H
            r.append((f'buffer_load_dwordx4 v{vo}, s[{sWG}:{sWG+3}], s{sOFF} offen {wmod} lds', ('A', t, 0)))
            r += [m2, 's_nop 0', (f'buffer_load_dwordx4 v{vo}, s[{sWU}:{sWU+3}], s{sOFF} offen {wmod} lds', ('A', t, 1))]
            return r
        d = P2[t - 81]; pas = d[1]
        FR = sFR2 if pas else sFR; FH = sFRH2 if pas else sFRH
        if d[0] == 'S':
            k, b = d[2], d[3]
            if b == 8: r.append(f's_add_u32 s{sOFF}, s{FH}, s{sNB[k]}')
            else:
                r.append(f's_add_u32 s{sOFF}, s{FR[b//2]}, s{sNB[k]}')
                if b & 1: r += [f's_add_u32 s{sOFF}, s{sOFF}, {32*1152}']
            r.append((f'buffer_load_dwordx4 v{vD1}, s[{sWD}:{sWD+3}], s{sOFF} offen {wmod} lds', ('A', t, 0)))
            r += [m2, f's_add_u32 s{sO2}, s{sOFF}, {16*1152}', (f'buffer_load_dwordx4 v{vD1}, s[{sWD}:{sWD+3}], s{sO2} offen {wmod} lds', ('A', t, 1))]
            return r
        ts = d[2]
        r.append(f's_add_u32 s{sOFF}, s{FR[2*ts] if ts < 2 else FH}, s{sNT}')
        r.append((f'buffer_load_dwordx4 v{vD1H}, s[{sWD}:{sWD+3}], s{sOFF} offen {wmod} lds', ('A', t, 0)))
        if ts < 2:
            r += [m2, f's_add_u32 s{sO2}, s{FR[2*ts+1]}, s{sNT}', (f'buffer_load_dwordx4 v{vD1H}, s[{sWD}:{sWD+3}], s{sO2} offen {wmod} lds', ('A', t, 1))]
        return r
    def b_dma(t):
        r = [f's_add_u32 m0, s{sWB}, {HH + (t % NSB)*8192}']
        if t == 0:
            r += [f's_lshl_b32 s{sBOFF}, s{sRB}, 3', f's_add_u32 s{sBOFF}, s{sBOFF}, s{sMQ}', f's_mul_i32 s{sBOFF}, s{sBOFF}, {18*1024}']
        else:
            r.append(f's_add_u32 s{sBOFF}, s{sBOFF}, 1024')
        r.append((f'buffer_load_dwordx4 v{vL16}, s[{sHC}:{sHC+3}], s{sBOFF} offen {bmod} lds', ('B', t, 0)))
        r += [f's_add_u32 m0, s{sWB}, {HH + (t % NSB)*8192 + 4096}', f's_add_u32 s{sO2}, s{sBOFF}, {4*18*1024}',
              (f'buffer_load_dwordx4 v{vL16}, s[{sHC}:{sHC+3}], s{sO2} offen {bmod} lds', ('B', t, 1))]
        return r
    cur = [0]
    def emit(lst):
        for x in lst:
            txt = x[0] if isinstance(x, tuple) else x
            if isinstance(txt, str):
                if 'nodma' in exp and ' lds' in txt and 'buffer_load' in txt and len(e.ins) > 300: continue
                if 'novalu' in exp and txt.startswith('v_') and len(e.ins) > 300: continue
                if 'nostore' in exp and txt.startswith('buffer_store') and f's[{sP}:' in txt: continue
                if 'stskip%d' % cur[0] in exp and txt.startswith('buffer_store'): continue
            if isinstance(x, tuple): e.i(x[0], x[1])
            elif callable(x): x()
            else: e.i(x)
    def stats():
        e.wait(vm=tss)
        e.i('v_cmp_gt_u32 vcc, 2, v2')
        e.i('v_cmp_gt_u32 s[50:51], 3, v2')
        e.nop(1)
        for q in range(2):
            b = 16 + 4*q
            for k in (1, 2, 3): e.i(f'v_cndmask_b32 v{b+k}, 0, v{b+k}, vcc')
            e.i(f'v_cndmask_b32 v{b}, 0, v{b}, s[50:51]')
            e.i(f'v_add_f32 v{b}, v{b}, v{b+1}')
            e.i(f'v_add_f32 v{b+2}, v{b+2}, v{b+3}')
            e.i(f'v_add_f32 v{b}, v{b}, v{b+2}')
        for swp in ('v_permlane16_swap_b32', 'v_permlane32_swap_b32'):
            for q in range(2): e.i(f'v_mov_b32 v{17+4*q}, v{16+4*q}')
            e.nop(2)
            for q in range(2): e.i(f'{swp} v{16+4*q}, v{17+4*q}')
            e.nop(1)
            for q in range(2): e.i(f'v_add_f32 v{16+4*q}, v{16+4*q}, v{17+4*q}')
            e.nop(1)
        e.i(f's_mov_b32 s{sT0}, {f2u(1.0/576)}')
        e.i(f's_mov_b32 s{sT1}, {f2u(C0)}')
        e.i(f's_mov_b32 s{sT2}, {f2u(C1)}')
        for q in range(2):
            b = 16 + 4*q
            e.i(f'v_mov_b32 v{b+1}, {f2u(1e-5)}')
            e.i(f'v_fma_f32 v{vV[q]}, v{b}, s{sT0}, v{b+1}')
            e.i(f'v_rsq_f32 v{b}, v{vV[q]}')
            e.nop(1)
            e.i(f'v_mul_f32 v{vCA[q]}, s{sT1}, v{b}')
            e.i(f'v_mul_f32 v{b+1}, v{b}, v{b}')
            e.i(f'v_mul_f32 v{b+1}, v{b+1}, v{b}')
            e.i(f'v_mul_f32 v{vCB[q]}, s{sT2}, v{b+1}')
        e.i(f's_lshr_b32 s{sT0}, s{sJ}, 1')
        e.i(f's_mul_i32 s{sT0}, s{sT0}, {MAT_BYTES}')
        e.i(f's_add_u32 s{sT0}, s{sT0}, {WS_P}')
        e.i(f's_add_u32 s{sP}, s{sPWS}, s{sT0}')
        e.i(f's_addc_u32 s{sP+1}, s{sPWS+1}, 0')
        e.i(f's_mov_b32 s{sP+2}, {MAT_BYTES}')
        e.i(f's_mov_b32 s{sP+3}, 0x20000')
        e.i(f's_lshl_b32 s{sT0}, s{sRB}, 3')
        e.i(f's_lshl_b32 s{sT1}, s{sMQ}, 1')
        e.i(f's_add_u32 s{sT0}, s{sT0}, s{sT1}')
        e.i(f's_mul_i32 s{sPO}, s{sT0}, {18*1024}')

    NT = 123
    def frags(t):
        slot = RING + slot_of(t)*8192
        hi = slot >= HI
        if hi: slot -= HI
        out = []
        if t < 72:
            wi, s = divmod(t, 18); st = wi & 1
            for mat in range(2):
                for cc in range(2):
                    out.append(dict(ar=(vRAh if hi else vRA)[cc], off=slot + mat*4096, off2=2048,
                                    mf=[(acc1(st, mat, cc, q), vB(q, s), s == 0) for q in range(2)]))
        elif t < 81:
            sp = t - 72
            for kp in range(2):
                s = 2*sp + kp
                for mat in range(2):
                    out.append(dict(ar=(vRHh if hi else vRH), off=slot + mat*4096 + kp*2048, off2=1024,
                                    mf=[(acc1(0, mat, 0, q), vB(q, s), s == 0) for q in range(2)]))
        else:
            d = P2[t - 81]; pas = d[1]
            BR = vB2 if pas else vB
            if d[0] == 'S':
                k, b = d[2], d[3]
                for cc in range(4):
                    out.append(dict(ar=(vR2h if hi else vR2)[cc], off=slot, off2=4096, blk=(pas, b),
                                    mf=[(acc2(k, cc, q), BR(q, b), pas == 0 and b == 0) for q in range(2)]))
            else:
                ts = d[2]
                for kq in range(4):
                    b = 4*ts + kq
                    if b > 8: continue
                    out.append(dict(ar=(vRHh if hi else vRH), off=slot + kq*2048, off2=1024, blk=(pas, b),
                                    mf=[(accT(q), BR(q, b), pas == 0 and b == 0) for q in range(2)]))
        return out
    flist = [(t, a) for t in range(NT) for a in range(len(frags(t)))]
    fidx = {k: i for i, k in enumerate(flist)}
    SWITCH = len(flist) + 100
    def fset(i):
        if i < SWITCH: return ASET1[i % NA1] if NA1 <= 4 or True else None
        return ASET2[(i - SWITCH) % NA2]
    def dist(i):
        return (NA1 if i < SWITCH else NA2) - 1
    rtag = {}; bread = {}; hread = {}
    def rd_half(i, h):
        t, a = flist[i]; f = frags(t)[a]; ra = fset(i)
        if 'noread' in exp and t > 0:
            rtag.setdefault(i, []); return
        tg = e.i(f'ds_read_b64_tr_b16 v[{ra+2*h}:{ra+2*h+1}], v{f["ar"]} offset:{f["off"] + h*f["off2"]}')
        rtag.setdefault(i, []).append(tg)
    def read_b(t):
        def fn():
            bread[t] = [e.i(f'ds_read_b128 v[{vB(q,t)}:{vB(q,t)+3}], v{vBS} offset:{(t % NSB)*8192 + q*1024}') for q in range(2)]
        return [fn]
    def read_h(b):
        def fn():
            hread[(0, b)] = [e.i(f'ds_read_b128 v[{vB(q,b)}:{vB(q,b)+3}], v{vHW} offset:{(b*2+q)*1024}') for q in range(2)]
        return fn
    def read_h2(b):
        def fn():
            hread[(1, b)] = [e.i(f'ds_read_b128 v[{vB2(q,b)}:{vB2(q,b)+3}], v{vHW} offset:{(b*2+q)*1024}') for q in range(2)]
        return fn
    def geglu_ops(st, ncc):
        ops = []
        for q in range(2):
            for cc in range(ncc):
                a = [acc1(st, 0, cc, q) + jj for jj in range(4)]
                b = [acc1(st, 1, cc, q) + jj for jj in range(4)]
                T = vT
                for jj in range(4): ops.append(f'v_mul_f32 v{T[jj]}, v{a[jj]}, v{a[jj]}')
                for jj in range(4): ops.append(f'v_fma_f32 v{T[jj]}, v{T[jj]}, v{vCB[q]}, v{vCA[q]}')
                for jj in range(4): ops.append(f'v_mul_f32 v{T[jj]}, v{a[jj]}, v{T[jj]}')
                for jj in range(4): ops.append(f'v_exp_f32 v{T[jj]}, v{T[jj]}')
                for jj in range(4): ops.append(f'v_mul_f32 v{b[jj]}, v{a[jj]}, v{b[jj]}')
                for jj in range(4): ops.append(f'v_fma_f32 v{T[jj]}, v{T[jj]}, v{vV[q]}, v{vV[q]}')
                for jj in range(4): ops.append(f'v_rcp_f32 v{T[jj]}, v{T[jj]}')
                for jj in range(4): ops.append(f'v_mul_f32 v{b[jj]}, v{b[jj]}, v{T[jj]}')
                ops.append(f'v_cvt_pk_bf16_f32 v{vPK(q)+2*cc}, v{b[0]}, v{b[1]}')
                ops.append(f'v_cvt_pk_bf16_f32 v{vPK(q)+2*cc+1}, v{b[2]}, v{b[3]}')
        return ops
    def hh_write_full(wi):
        r = [(f'ds_write_b128 v{vHWF}, v[{vPK(q)}:{vPK(q)+3}] offset:{wi*4096 + q*1024}', ('HW', wi, q)) for q in range(2)]
        r += [f's_lshl_b32 s{sKS}, s{sFHW}, 11', f's_add_u32 s{sKS}, s{sKS}, {wi*4096}', f's_add_u32 s{sKS}, s{sKS}, s{sHG}']
        r += [(f'buffer_store_dwordx4 v[{vPK(q)}:{vPK(q)+3}], v{vL16}, s[{sHGS}:{sHGS+3}], s{sKS} offen offset:{q*1024} sc1', ('HG', wi, q)) for q in range(2)]
        return r
    def hh_write_half():
        return [f's_lshl_b32 s{sKS}, s{sFHW}, 3', f'v_add_u32 v{vT[0]}, s{sKS}, v{vHW}', f'v_add_u32 v{vT[1]}, s{sKS}, v{vL16}'] + \
               [(f'ds_write_b64 v{vT[0]}, v[{vPK(q)}:{vPK(q)+1}] offset:{8*2048 + q*1024}', ('HW', 'h', q)) for q in range(2)] + \
               [f's_add_u32 s{sKS}, s{sHG}, {8*2048}'] + \
               [(f'buffer_store_dwordx2 v[{vPK(q)}:{vPK(q)+1}], v{vT[1]}, s[{sHGS}:{sHGS+3}], s{sKS} offen offset:{q*1024} sc1', ('HG', 'h', q)) for q in range(2)]
    def p2_epilogue(k):
        ops = [f's_lshl_b32 s{sT2}, s{sNB[k]}, 4', f's_lshl_b32 s{sKS}, s{sFHW}, 11', f's_add_u32 s{sT2}, s{sT2}, s{sKS}', f's_add_u32 s{sT2}, s{sT2}, s{sPO}']
        n = 0
        for q in range(2):
            for pp in range(2):
                pk = vPK(n & 1); n += 1
                for h in range(2):
                    cc = 2*pp + h; a = acc2(k, cc, q)
                    ops.append(f'v_cvt_pk_bf16_f32 v{pk+2*h}, v{a}, v{a+1}')
                    ops.append(f'v_cvt_pk_bf16_f32 v{pk+2*h+1}, v{a+2}, v{a+3}')
                off = q*18*1024 + pp*1024
                if off < 4096:
                    ops.append(f'buffer_store_dwordx4 v[{pk}:{pk+3}], v{vL16}, s[{sP}:{sP+3}], s{sT2} offen offset:{off} {store_mod}')
                else:
                    ops.append(f's_add_u32 s{sKS}, s{sT2}, {off}')
                    ops.append(f'buffer_store_dwordx4 v[{pk}:{pk+3}], v{vL16}, s[{sP}:{sP+3}], s{sKS} offen {store_mod}')
        return ops
    def tail_epilogue():
        ops = [f's_lshl_b32 s{sT2}, s{sNT}, 4', f's_add_u32 s{sT2}, s{sT2}, s{sPO}', f's_lshl_b32 s{sKS}, s{sFHW}, 3', f'v_add_u32 v253, s{sKS}, v{vL16}']
        for q in range(2):
            a = accT(q); pk = vPK(q)
            ops += [f'v_cvt_pk_bf16_f32 v{pk}, v{a}, v{a+1}', f'v_cvt_pk_bf16_f32 v{pk+1}, v{a+2}, v{a+3}']
            if q: ops.append(f's_add_u32 s{sT2}, s{sT2}, {18*1024}')
            ops.append(f'buffer_store_dwordx2 v[{pk}:{pk+1}], v253, s[{sP}:{sP+3}], s{sT2} offen {store_mod}')
        return ops
    def partner_dma(x, tag):
        o = x*1024
        return [f's_mul_i32 s{sKS}, s{sMQ}, 18432', f's_add_u32 m0, s{sKS}, {HH + o}', f's_add_u32 s{sO2}, s{sHG2}, {o}',
                (f'buffer_load_dwordx4 v{vL16}, s[{sHGS}:{sHGS+3}], s{sO2} offen lds', (tag, x))]
    def flag_set(k):
        return [f's_lshl_b32 s{sKS}, s2, 8', f's_add_u32 s{sKS}, s{sKS}, {128*k}', f'v_mov_b32 v{252 if k == 0 else 253}, 1',
                f'buffer_store_dword v{252 if k == 0 else 253}, off, s[{sFL}:{sFL+3}], s{sKS} sc1']
    def flag_load(k):
        return [f's_xor_b32 s{sOFF}, s2, 8', f's_lshl_b32 s{sOFF}, s{sOFF}, 8', f's_add_u32 s{sOFF}, s{sOFF}, {128*k}',
                (f'buffer_load_dword v{vD1H}, off, s[{sFL}:{sFL+3}], s{sOFF} sc1', ('FL', k))]
    def flag_check(k):
        def fn():
            lab = f'{name}_fc{k}'
            e.wait(vm=[('FL', k)])
            keep = list(e.vmq)
            e.i(f's_mov_b32 s{sO2}, 0x40000')
            e.i(f'{lab}_spin:')
            e.i(f'v_readfirstlane_b32 s{sKS}, v{vD1H}')
            e.nop(4)
            e.i(f's_cmp_eq_u32 s{sKS}, 1')
            e.i(f's_cbranch_scc1 {lab}_ok')
            e.i(f's_sub_u32 s{sO2}, s{sO2}, 1')
            e.i(f's_cmp_eq_u32 s{sO2}, 0')
            e.i(f's_cbranch_scc1 {lab}_ok')
            e.i('s_sleep 2')
            e.i(f'buffer_load_dword v{vD1H}, off, s[{sFL}:{sFL+3}], s{sOFF} sc1')
            e.i('s_waitcnt vmcnt(0)')
            e.i(f's_branch {lab}_spin')
            e.i(f'{lab}_ok:')
            e.vmq = keep
        return [fn]
    def p2_dma_full_setup():
        T = [251, 252]
        return [f'v_lshrrev_b32 v{T[0]}, 4, v{L}', f's_lshl_b32 s{sT2}, s{sMQ}, 2', f'v_add_u32 v{T[0]}, s{sT2}, v{T[0]}',
                f'v_and_b32 v{T[1]}, 7, v{T[0]}', f'v_lshlrev_b32 v{T[1]}, 1, v{T[1]}', f'v_and_b32 v{vD1}, 15, v{L}',
                f'v_xor_b32 v{vD1}, v{T[1]}, v{vD1}', f'v_mul_u32_u24 v{T[0]}, 1152, v{T[0]}', f'v_lshl_add_u32 v{vD1}, v{vD1}, 4, v{T[0]}']
    def p2_dma_half_setup():
        T = [136, 137, 138]
        return [f'v_lshrrev_b32 v{T[0]}, 2, v{L}', f'v_bfe_u32 v{T[1]}, v{L}, 4, 1', f'v_lshlrev_b32 v{T[1]}, 1, v{T[1]}',
                f'v_and_b32 v{T[2]}, 3, v{L}', f'v_xor_b32 v{T[2]}, v{T[1]}, v{T[2]}', f's_lshl_b32 s{sT2}, s{sMQ}, 4',
                f'v_add_u32 v{T[0]}, s{sT2}, v{T[0]}', f'v_mul_u32_u24 v{T[0]}, 1152, v{T[0]}', f'v_lshl_add_u32 v{vD1H}, v{T[2]}, 4, v{T[0]}']
    def p2_read_setup():
        return [f'v_lshrrev_b32 v0, 4, v{L}', f'v_bfe_u32 v1, v{L}, 2, 2', f'v_lshl_add_u32 v0, v0, 2, v1',
                'v_and_b32 v1, 7, v0', f's_lshl_b32 s{sKS}, s{sFHW}, 2', f'v_xor_b32 v1, s{sKS}, v1',
                'v_lshlrev_b32 v0, 8, v0', f'v_and_b32 v2, 3, v{L}', 'v_lshl_add_u32 v0, v2, 3, v0',
                f'v_lshl_add_u32 v{vR2[0]}, v1, 5, v0'] + [f'v_xor_b32 v{vR2[cc]}, {32*cc}, v{vR2[0]}' for cc in range(1, 4)]
    fill = [[] for _ in range(NT + 1)]
    def spread(ops, t0, t1):
        n = t1 - t0; m = len(ops)
        for k in range(n): fill[t0 + k] += ops[k*m//n:(k+1)*m//n]
    for wi in range(3):
        t0 = 18*(wi+1)
        spread(geglu_ops(wi & 1, 2), t0 + 1, t0 + 17)
        fill[t0 + 17] += hh_write_full(wi)
    spread(geglu_ops(1, 2), 72, 80); fill[80] += hh_write_full(3)
    spread(geglu_ops(0, 1), 81, 86); fill[86] += hh_write_half()
    HBLK = {74: (0,), 75: (1,), 76: (2,), 77: (3,), 78: (4,), 79: (5,), 82: (6, 7), 88: (8,)}
    t2 = 106 if p2order == 0 else 112
    HBLK2 = {100: (0, 1, 2), 101: (3, 4, 5), t2: (6, 7, 8)}
    BARX = {82: [('HW', 3, 0), ('HW', 3, 1)], 88: [('HW', 'h', 0), ('HW', 'h', 1)], 72: [('HW', 2, 0), ('HW', 2, 1)]}
    FS0, FS1 = fs
    BARV = {FS0: [('HG', wi, q) for wi in range(3) for q in range(2)], FS1: [('HG', wi, q) for wi in (3, 'h') for q in range(2)],
            100: [('PH', x) for x in range(12)], t2: [('PH2', x) for x in range(12, 18)]}
    if p2order == 0: spread(p2_epilogue(0), 111, 119)
    else: spread(p2_epilogue(0), 117, 120)
    spread(p2_epilogue(1), 120, 123)
    PDMA = {}
    for x in range(12): PDMA[86 + x] = partner_dma(x, 'PH')
    if p2order == 0:
        for x in range(12, 18): PDMA.setdefault(100 + (x - 12)//3, []).extend(partner_dma(x, 'PH2'))
        FLOAD = {82: 0, 96: 1}; FCHK = {85: 0, 99: 1}
    else:
        for x in range(12, 18): PDMA.setdefault(104 + (x - 12)//2, []).extend(partner_dma(x, 'PH2'))
        FLOAD = {82: 0, 100: 1}; FCHK = {85: 0, 103: 1}
    setup_full_t = 81 - P - 2
    assert 71 - P < setup_full_t < 81 - P
    setup_read_t = 73
    assert NA1 <= 4 or True
    setup_half_t = 89
    assert 80 - P < setup_half_t < 99 - P

    def barrier_point(tb, grp):
        vm = []
        if grp == 0:
            for t in range(tb, min(tb + BG, NT - 1) + 1): vm += [('A', t, 0), ('A', t, 1)]
            for t in range(tb, min(tb + BG, 17) + 1): vm += [('B', t, 0), ('B', t, 1)]
        vm += BARV.get(tb, [])
        e.wait(vm=vm, lg=BARX.get(tb, []))
        if 'nobar' not in exp or tb == 0: e.i('s_barrier')
        if grp == 0 and tb == FS0: emit(flag_set(0))
        if grp == 0 and tb == FS1: emit(flag_set(1))
    def stamp(x):
        if diag and x in stamps:
            k = stamps.index(x)
            e.i(f's_memtime s[{sST+2*k}:{sST+1+2*k}]')
    def stream(grp):
        rtag.clear(); bread.clear(); hread.clear(); cur[0] = grp
        if grp == 0:
            for t in range(max(P, PB)):
                if t < PB: emit(b_dma(t))
                if t < P: emit(a_dma(t))
        if grp == 1 and warm0:
            e.i(f's_lshr_b32 s{sOFF}, s2, 3')
            e.i(f's_mul_i32 s{sOFF}, s{sOFF}, 162')
            e.i(f's_and_b32 s{sO2}, s{sMQ}, 1')
            e.i(f's_mul_i32 s{sO2}, s{sO2}, 81')
            e.i(f's_add_u32 s{sOFF}, s{sOFF}, s{sO2}')
            e.i(f's_cmp_lt_u32 s{sMQ}, 2')
            for k in range(2): e.i(f's_cselect_b32 s{60+k}, s{sWG+k}, s{sWU+k}')
            e.i(f's_mov_b32 s62, {D*F*2}')
            e.i('s_mov_b32 s63, 0x20000')
            e.i(f's_and_b32 s{sO2}, s2, 7')
            e.i(f's_mul_i32 s{sO2}, s{sO2}, 1152')
            for k in range(2):
                e.i(f'v_add_u32 v10, s{sOFF}, v{L}')
                if k: e.i('v_add_u32 v10, 64, v10')
                e.i('v_min_u32 v10, 5183, v10')
                e.i('v_mul_u32_u24 v11, 7282, v10')
                e.i('v_lshrrev_b32 v11, 16, v11')
                e.i('v_mul_u32_u24 v12, 9, v11')
                e.i('v_sub_u32 v12, v10, v12')
                e.i('v_mul_u32_u24 v11, 9216, v11')
                e.i('v_lshl_add_u32 v11, v12, 7, v11')
                e.i(f'buffer_load_dword v{vD1H}, v11, s[60:63], s{sO2} offen')
        stats()
        barrier_point(0, grp)
        emit(read_b(0))
        nxt = 0
        for i in range(dist(0)): rd_half(i, 0); rd_half(i, 1)
        nxt = dist(0)
        for t in range(NT):
            e.c(f'---- step {t}')
            stamp(t)
            if t and (t % BG == 0 or t in BARX): barrier_point(t, grp)
            fr = frags(t)
            mem = []
            if grp == 0:
                if t + P < NT: mem += a_dma(t + P)
                if t + PB < 18: mem += b_dma(t + PB)
            lds = []
            if t + 1 < 18: lds += read_b(t + 1)
            lds += [read_h(b) for b in HBLK.get(t, ())]
            lds += [read_h2(b) for b in HBLK2.get(t, ())]
            if grp == pgrp: mem += PDMA.get(t, [])
            if grp == 1 and t in FLOAD: mem += flag_load(FLOAD[t])
            if warm and grp == 1 and t in warm:
                kind = warm[t]
                lab = f'{name}_wm{t}'
                if kind[0] == 'D':
                    mem += [f's_lshr_b32 s{sOFF}, s2, 3', f's_mul_i32 s{sOFF}, s{sOFF}, {162*128}', f's_and_b32 s{sO2}, s2, 7',
                            f's_mul_i32 s{sO2}, s{sO2}, {576*1152}', f's_add_u32 s{sOFF}, s{sOFF}, s{sO2}',
                            f's_lshl_b32 s{sO2}, s{sMQ}, 13', f's_add_u32 s{sOFF}, s{sOFF}, s{sO2}', f'v_lshlrev_b32 v{vD1}, 7, v{L}',
                            f'buffer_load_dword v{vD1H}, v{vD1}, s[{sWD}:{sWD+3}], s{sOFF} offen']
                else:
                    mem += [f's_lshr_b32 s{sOFF}, s2, 3', f's_mul_i32 s{sOFF}, s{sOFF}, {18*9216}', f's_and_b32 s{sO2}, s2, 7',
                            f's_mul_i32 s{sO2}, s{sO2}, 1152', f's_add_u32 s{sOFF}, s{sOFF}, s{sO2}', f's_add_u32 s{sOFF}, s{sOFF}, 512',
                            f'v_min_u32 v{vD1}, 17, v{L}', f'v_mul_u32_u24 v{vD1}, 9216, v{vD1}',
                            f'buffer_load_dword v{vD1H}, v{vD1}, s[{sWG}:{sWG+3}], s{sOFF} offen',
                            f'buffer_load_dword v{vD1H}, v{vD1}, s[{sWU}:{sWU+3}], s{sOFF} offen']
            q = list(fill[t])
            if t == setup_read_t: q = p2_read_setup() + q
            if t == 87 and NS > 8: q = [f'v_add_u32 v{vR2h[cc]}, {HI}, v{vR2[cc]}' for cc in range(4)] + q
            if grp == 0 and t == setup_full_t: q = p2_dma_full_setup() + q
            if grp == 0 and t == setup_half_t: q = p2_dma_half_setup() + q
            if grp == 1 and ppf is not None and t >= ppf[0] and (t - ppf[0]) % ppf[1] == 0 and (t - ppf[0]) // ppf[1] < 5:
                k = (t - ppf[0]) // ppf[1]
                pre = []
                if k == 0:
                    pre += [f's_mul_i32 s{sOFF}, s{sRB}, 147456', f's_mul_i32 s{sO2}, s{sMQ}, {288*128}', f's_add_u32 s{sOFF}, s{sOFF}, s{sO2}',
                            f'v_lshlrev_b32 v{vD1}, 7, v{L}']
                else: pre += [f's_add_u32 s{sOFF}, s{sOFF}, 8192']
                pre += [f'buffer_load_dword v{vBS}, v{vD1}, s[{sP}:{sP+3}], s{sOFF} offen']
                mem += pre
            nm = 2*len(fr)
            if dmaslot == 0: emit(mem); mem = []
            q = lds + q
            n = 0
            for a, f in enumerate(fr):
                i = fidx[(t, a)]
                need = list(rtag[i])
                bq = f['mf'][0][1]
                if t < 18: need += bread[t]
                if t >= 81: need += hread.get(f['blk'], [])
                e.wait(lg=need)
                ra = fset(i)
                for k, (acc, breg, zero) in enumerate(f['mf']):
                    c = '0' if zero else f'v[{acc}:{acc+3}]'
                    e.i(f'v_mfma_f32_16x16x32_bf16 v[{acc}:{acc+3}], v[{ra}:{ra+3}], v[{breg}:{breg+3}], {c}')
                    tgt = i + dist(min(i + 1, len(flist) - 1))
                    while nxt <= tgt and nxt < len(flist) and nxt < tgt:
                        rd_half(nxt, 0); rd_half(nxt, 1); nxt += 1
                    if nxt < len(flist) and nxt == tgt:
                        rd_half(nxt, k)
                        if k == 1: nxt += 1
                    lo, hi = n*len(q)//nm, (n+1)*len(q)//nm
                    emit(q[lo:hi]); n += 1
                    if mem and n == dmaslot: emit(mem); mem = []
            emit(mem)
            if grp == 1 and t in FCHK: emit(flag_check(FCHK[t]))
        e.nop(8)
        emit(tail_epilogue())
        e.i('s_waitcnt vmcnt(0)')
        if diag:
            e.i(f's_memrealtime s[{sTS+2}:{sTS+3}]')
            e.i('s_waitcnt lgkmcnt(0)')
            srd(e, sHC, sPWS, sPWS+1, WS_TS + 2*0x10000, 0x10000)
            e.i(f's_lshl_b32 s{sT0}, s2, 3'); e.i(f's_add_u32 s{sT0}, s{sT0}, s{sw}'); e.i(f's_lshl_b32 s{sT0}, s{sT0}, 4')
            for k in range(4): e.i(f'v_mov_b32 v{k}, s{sTS+k}')
            e.i('v_mov_b32 v4, 0')
            e.i(f'buffer_store_dwordx4 v[0:3], v4, s[{sHC}:{sHC+3}], s{sT0} offen')
            if stamps:
                e.i(f's_memtime s[{sST+2*len(stamps)}:{sST+1+2*len(stamps)}]')
                e.i('s_waitcnt lgkmcnt(0)')
                srd(e, sHC, sPWS, sPWS+1, WS_TS + 4*0x10000, 0x40000)
                e.i(f's_lshl_b32 s{sT0}, s2, 3'); e.i(f's_add_u32 s{sT0}, s{sT0}, s{sw}'); e.i(f's_lshl_b32 s{sT0}, s{sT0}, 7')
                for k in range(len(stamps) + 1):
                    e.i(f'v_mov_b32 v0, s{sST+2*k}')
                    e.i(f'buffer_store_dword v0, v4, s[{sHC}:{sHC+3}], s{sT0} offen offset:{4*k}')
            e.i('s_waitcnt vmcnt(0)')
        e.i('s_endpgm')
    e.i(f's_cmp_ge_u32 s{sw}, 4')
    e.i(f's_cbranch_scc1 {name}_grpB')
    common_n = len(e.ins)
    save = (list(e.vmq), list(e.lgq))
    stream(0)
    nA = len(e.ins)
    e.i(f'{name}_grpB:')
    e.vmq, e.lgq = list(save[0]), list(save[1])
    stream(1)
    segs = [e.ins[:nA], e.ins[:common_n] + e.ins[nA:]]
    e.i(f'{name}_done:')
    e.i('s_endpgm')
    probs = sum((check(x, name) for x in segs), [])
    txt = '.p2align 8\n.type %s,@function\n' % name + e.text() + kernel_desc(name, 256, 100, 256)
    return txt, LDS, probs

if __name__ == '__main__':
    t, lds, pr = gen_k3()
    print(len(t), lds, len(pr))
    open('k3.s', 'w').write('.amdgcn_target "amdgcn-amd-amdhsa--gfx950"\n.text\n' + t)
```

```python
import os
S = 2048; D = 576; F = 4608
WS_BASE = int(os.environ.get('WS_BASE', '0'), 0)
WS_O  = WS_BASE + 0x000000
WS_HC = WS_BASE + 0x240000
WS_SS = WS_BASE + 0x560000
WS_XM = WS_BASE + 0x4A0000
WS_HM = WS_BASE + 0x4A2000
WS_WB = WS_BASE + 0x4A4000
WS_TS = WS_BASE + 0x4B0000
WS_FL = WS_BASE + 0x540000
WS_P  = WS_BASE + 0x600000
WS_HG = WS_BASE + 0x1800000
NPART = 8
MAT_BYTES = 0x240000
ARG_X, ARG_WQKV, ARG_WO, ARG_BX, ARG_WG, ARG_WU, ARG_WD, ARG_OUT, ARG_DBG, ARG_WS = [8*i for i in range(10)]

def srd(e, s, lo, hi, off, size):
    if off:
        e.i(f's_add_u32 s{s}, s{lo}, {off}')
        e.i(f's_addc_u32 s{s+1}, s{hi}, 0')
    else:
        e.i(f's_mov_b32 s{s}, s{lo}')
        e.i(f's_mov_b32 s{s+1}, s{hi}')
    e.i(f's_mov_b32 s{s+2}, {size}')
    e.i(f's_mov_b32 s{s+3}, 0x20000')

def stamp_begin(e, s):
    e.i(f's_memrealtime s[{s}:{s+1}]')

def stamp_end(e, kidx, sbeg, send, ws_lo, ws_hi, ssrd, vtmp, wgid='s2', nw=8):
    e.i(f's_memrealtime s[{send}:{send+1}]')
    e.i('s_waitcnt lgkmcnt(0)')
    srd(e, ssrd, ws_lo, ws_hi, WS_TS + kidx*0x10000, 0x10000)
    return
```

```python
from asmlib import *
from common import *
import struct, math
def f2u(x): return struct.unpack('<I', struct.pack('<f', x))[0]

def gen_k1(name='attn_kernel', diag=False, store_mod='', prefetch=False, stamps=False, pf_t=(14, 14, 14), wmod='', xmod='', rotate=True, lprio=0, aprio=0, exp='', small_mod='', xmap=True, LEAD=3):
    e = Emitter(name)
    NS = 5; SLOT = 24576
    slot_of = lambda t: t % NS
    X0 = NS*SLOT; XSL = 10240; NSX = 3
    QS, KS, VS, OS = 0, 15360, 30720, 56320
    CS = X0 + NSX*XSL; ST = CS + 1024
    LDS = ST + 1024
    sX, sW, sO, sM = 4, 8, 12, 16
    sPX, sPW, sPWO, sPWS = 20, 22, 24, 26
    sPG, sPU, sPD = 28, 30, 32
    sw, sHG, sRB, sT0, sT1, sT2, sOFF, sMB = 34, 35, 36, 37, 38, 39, 40, 41
    sONE, sTILE, sR2, sK, sU = 42, 43, 44, 45, 46
    sTS = 48
    sST = 82
    vL, vG = 252, 253
    e.i(f'{name}:')
    e.i('s_cmp_ge_u32 s2, 256')
    e.i(f's_cbranch_scc1 {name}_done')
    if diag: e.i(f's_memrealtime s[{sTS}:{sTS+1}]')
    e.i(f's_load_dwordx4 s[{sPX}:{sPX+3}], s[0:1], {ARG_X}')
    e.i(f's_load_dwordx2 s[{sPWO}:{sPWO+1}], s[0:1], {ARG_WO}')
    e.i(f's_load_dwordx2 s[{sPWS}:{sPWS+1}], s[0:1], {ARG_WS}')
    if prefetch:
        e.i(f's_load_dwordx4 s[{sPG}:{sPG+3}], s[0:1], {ARG_WG}')
        e.i(f's_load_dwordx2 s[{sPD}:{sPD+1}], s[0:1], {ARG_WD}')
    e.i('v_lshrrev_b32 v1, 6, v0')
    e.i(f'v_and_b32 v{vL}, 63, v0')
    e.i(f'v_readfirstlane_b32 s{sw}, v1')
    if xmap:
        e.i(f's_lshr_b32 s{sT0}, s2, 3')
        e.i(f's_and_b32 s{sHG}, s2, 3')
        e.i(f's_lshl_b32 s{sHG}, s{sHG}, 1')
        e.i(f's_and_b32 s{sT1}, s{sT0}, 1')
        e.i(f's_add_u32 s{sHG}, s{sHG}, s{sT1}')
        e.i(f's_lshr_b32 s{sRB}, s{sT0}, 1')
        e.i(f's_and_b32 s{sT1}, s2, 4')
        e.i(f's_lshl_b32 s{sT1}, s{sT1}, 2')
        e.i(f's_add_u32 s{sRB}, s{sRB}, s{sT1}')
    else:
        e.i(f's_and_b32 s{sHG}, s2, 7')
        e.i(f's_lshr_b32 s{sRB}, s2, 3')
    e.i(f'v_lshrrev_b32 v{vG}, 4, v{vL}')
    if rotate:
        e.i(f's_mul_i32 s{sT0}, s{sRB}, 57')
        e.i(f's_lshr_b32 s{sT0}, s{sT0}, 9')
        e.i(f's_mul_i32 s{sT0}, s{sT0}, 9')
        e.i(f's_sub_u32 s{sR2}, s{sRB}, s{sT0}')
    else:
        e.i(f's_mov_b32 s{sR2}, 0')
    e.i(f's_cmp_eq_u32 s{sw}, 7')
    e.i(f's_cbranch_scc1 {name}_ld1')
    e.i(f's_cmp_eq_u32 s{sw}, 6')
    e.i(f's_cbranch_scc1 {name}_ld0')
    e.i(f's_cmp_eq_u32 s{sw}, 5')
    e.i(f's_cbranch_scc1 {name}_a1')
    e.i(f's_cmp_eq_u32 s{sw}, 4')
    e.i(f's_cbranch_scc1 {name}_a0')
    e.i(f's_bitcmp1_b32 s{sw}, 0')
    e.i(f's_cbranch_scc1 {name}_m0')
    common_n = len(e.ins)
    save = (list(e.vmq), list(e.lgq))
    def stamp(k):
        if diag and stamps: e.i(f's_memtime s[{sST+2*k}:{sST+1+2*k}]')
    def srds():
        e.i('s_waitcnt lgkmcnt(0)')
        srd(e, sX, sPX, sPX+1, 0, MAT_BYTES)
        srd(e, sW, sPW, sPW+1, 0, D*3*D*2)
    def finish(nst):
        if diag:
            e.i('s_mov_b64 exec, -1')
            e.i('s_waitcnt vmcnt(0)')
            e.i(f's_memrealtime s[{sTS+2}:{sTS+3}]')
            e.i('s_waitcnt lgkmcnt(0)')
            srd(e, sM, sPWS, sPWS+1, WS_TS + 0*0x10000, 0x10000)
            e.i(f's_lshl_b32 s{sT0}, s2, 3'); e.i(f's_add_u32 s{sT0}, s{sT0}, s{sw}'); e.i(f's_lshl_b32 s{sT0}, s{sT0}, 4')
            for k in range(4): e.i(f'v_mov_b32 v{k}, s{sTS+k}')
            e.i('v_mov_b32 v4, 0')
            e.i(f'buffer_store_dwordx4 v[0:3], v4, s[{sM}:{sM+3}], s{sT0} offen')
            if stamps:
                e.i(f's_memtime s[{sST+2*nst}:{sST+1+2*nst}]')
                e.i('s_waitcnt lgkmcnt(0)')
                srd(e, sM, sPWS, sPWS+1, WS_TS + 4*0x10000, 0x40000)
                e.i(f's_lshl_b32 s{sT0}, s2, 3'); e.i(f's_add_u32 s{sT0}, s{sT0}, s{sw}'); e.i(f's_lshl_b32 s{sT0}, s{sT0}, 7')
                for k in range(nst + 1):
                    e.i(f'v_mov_b32 v0, s{sST+2*k}')
                    e.i(f'buffer_store_dword v0, v4, s[{sM}:{sM+3}], s{sT0} offen offset:{4*k}')
            e.i('s_waitcnt vmcnt(0)')
        e.i('s_endpgm')

    def copy_piece(base, a, tag):
        e.i(f's_lshl_b32 s{sT0}, s{sw}, 6')
        e.i(f'v_add_u32 v{a}, s{sT0}, v{vL}')
        if base: e.i(f'v_add_u32 v{a}, {base}, v{a}')
        e.i(f'v_and_b32 v{a+1}, 15, v{a}')
        e.i(f'v_lshrrev_b32 v{a}, 4, v{a}')
        e.i(f'v_mul_u32_u24 v{a+2}, 57, v{a}')
        e.i(f'v_lshrrev_b32 v{a+2}, 9, v{a+2}')
        e.i(f'v_mul_u32_u24 v{a+3}, 9, v{a+2}')
        e.i(f'v_sub_u32 v{a}, v{a}, v{a+3}')
        e.i(f'v_lshl_add_u32 v{a+3}, v{a+2}, 4, v{a+1}')
        e.i(f'v_mul_u32_u24 v{a+3}, 144, v{a+3}')
        e.i(f'v_lshl_add_u32 v{a+3}, v{a}, 4, v{a+3}')
        e.i(f'ds_read_b128 v[{a+4}:{a+7}], v{a+3} offset:{OS}', tag)
        e.i(f's_mul_i32 s{sT1}, s{sHG}, 9')
        e.i(f'v_add_u32 v{a}, s{sT1}, v{a}')
        e.i(f's_lshl_b32 s{sT1}, s{sRB}, 2')
        e.i(f'v_add_u32 v{a+2}, s{sT1}, v{a+2}')
        e.i(f'v_mul_u32_u24 v{a+2}, 72, v{a+2}')
        e.i(f'v_add_u32 v{a+2}, v{a+2}, v{a}')
        e.i(f'v_lshl_add_u32 v{a+2}, v{a+2}, 4, v{a+1}')
        e.i(f'v_lshlrev_b32 v{a+2}, 4, v{a+2}')
        e.wait(lg=[tag])
        e.i(f'buffer_store_dwordx4 v[{a+4}:{a+7}], v{a+2}, s[{sO}:{sO+3}], 0 offen {store_mod}')
    def final_copy(extra):
        srd(e, sO, sPWS, sPWS+1, WS_O, MAT_BYTES)
        copy_piece(0, 200, 'oc0')
        if extra:
            e.i(f's_cmp_lg_u32 s{sw}, 0')
            e.i(f's_cbranch_scc1 {name}_nox2')
            copy_piece(512, 208, 'oc1')
            e.i(f'{name}_nox2:')

    ALL = [(mat, c) for mat in range(3) for c in range(5)]
    def compute(kind):
        aux = kind in ('a0', 'a1')
        nq = 1 if aux else 2
        subs = ALL[:8] if kind in ('m0', 'a0') else ALL[8:]
        nsub = len(subs)
        own = 1 if kind == 'm1' else 0
        NB = 3
        vB = lambda q, s: ((s % NB)*nq + q)*4
        acc = lambda k, q: 144 + (k*nq + q)*4
        NA = 8 if not aux else 10; DIST = 6 if not aux else 7
        vA = lambda k: 100 + 4*k
        vRA = [232, 233, 234, 235, 236]
        vONE, vAS, vAQ = 240, 244, 248
        vT0 = 237
        vQK = lambda c: 40 + c; vVA = lambda c: 48 + c
        vSTA, vCSA, vOA, vM = 56, 57, 58, 59
        vP = [254, 255]
        sSUB = 47
        stamp(0)
        if aux:
            if aprio: e.i(f's_setprio {aprio}')
            e.i(f's_mov_b32 s{sTILE}, 0')
        else:
            e.i(f's_lshr_b32 s{sTILE}, s{sw}, 1')
            e.i(f's_lshl_b32 s{sTILE}, s{sTILE}, 1')
            e.i(f's_add_u32 s{sTILE}, s{sTILE}, 1')
        T = 60
        e.i(f'v_and_b32 v{vM}, 15, v{vL}')
        e.i(f's_lshl_b32 s{sT1}, s{sTILE}, 4')
        e.i(f'v_add_u32 v{T+10}, s{sT1}, v{vM}')
        e.i(f'v_lshlrev_b32 v{T+11}, 7, v{T+10}')
        e.i(f'v_add_u32 v{T+11}, {X0}, v{T+11}')
        e.i(f'v_and_b32 v{T+12}, 7, v{vM}')
        for par in range(2):
            e.i(f'v_add_u32 v{T+13}, {4*par}, v{vG}')
            e.i(f'v_xor_b32 v{T+13}, v{T+13}, v{T+12}')
            e.i(f'v_lshl_add_u32 v{vP[par]}, v{T+13}, 4, v{T+11}')
        e.i(f'v_bfe_u32 v{T+1}, v{vL}, 2, 2')
        e.i(f'v_lshl_add_u32 v{T+2}, v{vG}, 3, v{T+1}')
        e.i(f'v_lshlrev_b32 v{T+2}, 8, v{T+2}')
        e.i(f'v_and_b32 v{T+3}, 1, v{vG}')
        e.i(f'v_lshl_or_b32 v{T+3}, v{T+3}, 2, v{T+1}')
        e.i(f'v_lshlrev_b32 v{T+3}, 1, v{T+3}')
        e.i(f'v_and_b32 v{T+4}, 3, v{vL}')
        e.i(f's_lshl_b32 s{sT0}, s{sHG}, 4')
        for c in range(5):
            a_, b_, c_, d_ = T+5, T+6, T+7, T+8
            e.i(f'v_add_u32 v{a_}, {4*c}, v{T+4}')
            e.i(f'v_mul_u32_u24 v{b_}, 52, v{a_}')
            e.i(f'v_lshrrev_b32 v{b_}, 8, v{b_}')
            e.i(f'v_mul_u32_u24 v{c_}, 5, v{b_}')
            e.i(f'v_sub_u32 v{c_}, v{a_}, v{c_}')
            e.i(f'v_mul_u32_u24 v{d_}, 36, v{b_}')
            e.i(f'v_and_b32 v{b_}, 1, v{b_}')
            e.i(f'v_lshlrev_b32 v{b_}, 2, v{b_}')
            e.i(f'v_sub_u32 v{d_}, v{d_}, v{b_}')
            e.i(f'v_lshl_add_u32 v{d_}, v{c_}, 3, v{d_}')
            e.i(f'v_add_u32 v{d_}, s{sT0}, v{d_}')
            e.i(f'v_lshrrev_b32 v{c_}, 4, v{d_}')
            e.i(f'v_xor_b32 v{c_}, v{c_}, v{T+3}')
            e.i(f'v_and_b32 v{d_}, 8, v{d_}')
            e.i(f'v_lshl_add_u32 v{c_}, v{c_}, 4, v{d_}')
            e.i(f'v_add_u32 v{vRA[c]}, v{c_}, v{T+2}')
        for k in range(4): e.i(f'v_mov_b32 v{vONE+k}, 0x3f803f80')
        e.i(f'v_mul_u32_u24 v{T+1}, 48, v{T+10}')
        e.i(f'v_mul_u32_u24 v{T+2}, 80, v{T+10}')
        cl = sorted(set(c for _, c in subs))
        for c in cl:
            e.i(f'v_add_u32 v{T+3}, {4*c}, v{vG}')
            e.i(f'v_mul_u32_u24 v{T+4}, 52, v{T+3}')
            e.i(f'v_lshrrev_b32 v{T+4}, 8, v{T+4}')
            e.i(f'v_mul_u32_u24 v{T+5}, 5, v{T+4}')
            e.i(f'v_sub_u32 v{T+5}, v{T+3}, v{T+5}')
            e.i(f'v_mul_u32_u24 v{T+6}, 3840, v{T+4}')
            e.i(f'v_lshl_add_u32 v{T+6}, v{T+5}, 3, v{T+6}')
            e.i(f'v_add_u32 v{vQK(c)}, v{T+6}, v{T+1}')
            e.i(f'v_mul_u32_u24 v{T+6}, 6400, v{T+4}')
            e.i(f'v_lshl_add_u32 v{T+6}, v{T+5}, 4, v{T+6}')
            e.i(f'v_add_u32 v{vVA(c)}, v{T+6}, v{T+2}')
        e.i(f'v_lshlrev_b32 v{vSTA}, 3, v{T+10}')
        e.i(f'v_add_u32 v{vSTA}, {ST}, v{vSTA}')
        e.i(f'v_lshlrev_b32 v{vCSA}, 4, v{vG}')
        e.i(f'v_add_u32 v{vCSA}, {CS}, v{vCSA}')
        if aux:
            e.i(f'v_and_b32 v{vOA}, 7, v{vL}')
            e.i(f'v_lshlrev_b32 v{vOA}, 4, v{vOA}')
            e.i(f'v_add_u32 v{vOA}, {X0}, v{vOA}')
        e.i('s_waitcnt lgkmcnt(0)')
        stamp(1)
        bt = {}
        def read_b(t):
            xo = ((t >> 1) % NSX)*XSL
            if aux and t % 2 == 0:
                e.i(f'ds_write_b128 v{vOA}, v[{vONE}:{vONE+3}] offset:{xo}')
            bt[t] = [e.i(f'ds_read_b128 v[{vB(q,t)}:{vB(q,t)+3}], v{vP[t & 1]} offset:{xo + q*2048}') for q in range(nq)]
        flist = [(t, k) for t in range(18) for k in range(nsub)]
        rt = {}
        seen = set()
        def rd(i, both=True):
            t, k = flist[i]; slot = slot_of(t)
            if k == 0:
                e.i('s_barrier')
                if t == 0: stamp(2)
                read_b(t)
            ci = subs[k][1]
            if t > 0 and (t, ci) not in seen:
                d = (slot - slot_of(t - 1))*SLOT
                if d > 0: e.i(f'v_add_u32 v{vRA[ci]}, {d}, v{vRA[ci]}')
                else: e.i(f'v_subrev_u32 v{vRA[ci]}, {-d}, v{vRA[ci]}')
            seen.add((t, ci))
            if 'noread' in exp and t > 0:
                rt[i] = []; return
            off = subs[k][0]*8192; ra = vA(i % NA)
            rt[i] = [e.i(f'ds_read_b64_tr_b16 v[{ra}:{ra+1}], v{vRA[ci]} offset:{off}')]
            if both: rd2(i)
        def rd2(i):
            t, k = flist[i]
            if 'noread' in exp and t > 0: return
            ci = subs[k][1]; off = subs[k][0]*8192; ra = vA(i % NA)
            rt[i].append(e.i(f'ds_read_b64_tr_b16 v[{ra+2}:{ra+3}], v{vRA[ci]} offset:{off + 1024}'))
        S0 = 24
        fin = [f'v_and_b32 v{S0+1}, 3, v{vM}', f'v_lshrrev_b32 v{S0+2}, 2, v{vM}',
               f'v_cmp_eq_u32 s[56:57], 1, v{S0+1}', f'v_cmp_eq_u32 s[58:59], 2, v{S0+1}', f'v_cmp_eq_u32 s[60:61], 3, v{S0+1}',
               f'v_cmp_eq_u32 s[62:63], v{S0+2}, v{vG}', 's_nop 0',
               f'v_cndmask_b32 v{S0+3}, v{vAQ}, v{vAQ+1}, s[56:57]', f'v_cndmask_b32 v{S0+3}, v{S0+3}, v{vAQ+2}, s[58:59]',
               f'v_cndmask_b32 v{S0+3}, v{S0+3}, v{vAQ+3}, s[60:61]', f'v_cndmask_b32 v{S0+3}, 0, v{S0+3}, s[62:63]']
        for swp in ('v_permlane16_swap_b32', 'v_permlane32_swap_b32'):
            fin += [f'v_mov_b32 v{S0+4}, v{S0+3}', 's_nop 1', f'{swp} v{S0+3}, v{S0+4}', 's_nop 0', f'v_add_f32 v{S0+3}, v{S0+3}, v{S0+4}']
        fin += [f's_mov_b32 s{sT0}, {f2u(1.0/576)}', f'v_mul_f32 v{S0+5}, s{sT0}, v{vAS}', f'v_mul_f32 v{S0+3}, s{sT0}, v{S0+3}',
                f'v_fma_f32 v{S0+3}, -v{S0+5}, v{S0+5}, v{S0+3}', f'v_max_f32 v{S0+3}, 0, v{S0+3}', f'v_add_f32 v{S0+3}, {f2u(1e-5)}, v{S0+3}',
                f'v_rsq_f32 v{S0+7}, v{S0+3}', f'v_add_u32 v{S0+9}, {128*own}, v{vSTA}', f'v_mul_f32 v{S0+6}, v{S0+5}, v{S0+7}',
                f'ds_write_b64 v{S0+9}, v[{S0+6}:{S0+7}]']
        for k in range(min(DIST, nsub)): rd(k)
        nxt = min(DIST, nsub)
        for i, (t, k) in enumerate(flist):
            if k == 0: e.wait(lg=bt[t])
            e.wait(lg=rt[i])
            ra = vA(i % NA)
            if k == 0 and 'nostats' not in exp:
                b = vB(own, t)
                cs_ = '0' if t == 0 else f'v[{vAS}:{vAS+3}]'
                cq_ = '0' if t == 0 else f'v[{vAQ}:{vAQ+3}]'
                e.i(f'v_mfma_f32_16x16x32_bf16 v[{vAS}:{vAS+3}], v[{vONE}:{vONE+3}], v[{b}:{b+3}], {cs_}')
                e.i(f'v_mfma_f32_16x16x32_bf16 v[{vAQ}:{vAQ+3}], v[{b}:{b+3}], v[{b}:{b+3}], {cq_}')
            for q in range(nq):
                a = acc(k, q)
                cc = '0' if t == 0 else f'v[{a}:{a+3}]'
                e.i(f'v_mfma_f32_16x16x32_bf16 v[{a}:{a+3}], v[{ra}:{ra+3}], v[{vB(q,t)}:{vB(q,t)+3}], {cc}')
                if q == 0:
                    if nxt < len(flist): rd(nxt, both=aux); pend2 = nxt; nxt += 1
                    else: pend2 = None
                elif pend2 is not None: rd2(pend2)
            if t == 17 and k >= 3:
                n = len(fin); m_ = nsub - 3
                for x in fin[(k-3)*n//m_:(k-2)*n//m_]: e.i(x)
        if not aux:
            e.i(f's_cmp_lg_u32 s{sHG}, 0')
            e.i(f's_cbranch_scc1 {name}_noxm_{kind}')
            srd(e, sM, sPWS, sPWS+1, WS_XM, S*4)
            e.i(f's_lshl_b32 s{sT1}, s{sRB}, 6')
            e.i(f's_add_u32 s{sT2}, s{sTILE}, {own}')
            e.i(f's_lshl_b32 s{sT2}, s{sT2}, 4')
            e.i(f's_add_u32 s{sT1}, s{sT1}, s{sT2}')
            e.i(f's_sub_u32 s{sT1}, s{sT1}, 16')
            e.i(f'v_add_u32 v{S0+8}, s{sT1}, v{vM}')
            e.i(f'v_lshlrev_b32 v{S0+8}, 2, v{S0+8}')
            e.i(f'buffer_store_dword v{S0+5}, v{S0+8}, s[{sM}:{sM+3}], 0 offen {small_mod}')
            e.i(f'{name}_noxm_{kind}:')
        stamp(3)
        e.nop(6)
        if aux:
            e.i('s_mov_b32 exec_lo, 0x00010001')
            e.i('s_mov_b32 exec_hi, 0x00010001')
            for k, (mat, c) in enumerate(subs): e.i(f'ds_write_b128 v{vCSA}, v[{acc(k,0)}:{acc(k,0)+3}] offset:{64*(mat*5 + c)}')
            e.i('s_mov_b64 exec, -1')
        e.wait_all(vm=False)
        e.i('s_barrier')
        st = [e.i(f'ds_read_b64 v[{4+2*q}:{5+2*q}], v{vSTA} offset:{128*q}') for q in range(nq)]
        cst = {}
        for k in range(nsub):
            mat, c = subs[k]
            if aux and mat == 0: continue
            cst[k] = e.i(f'ds_read_b128 v[{64+4*k}:{67+4*k}], v{vCSA} offset:{64*(mat*5 + c)}')
        e.wait(lg=st)
        for k in range(nsub):
            mat, c = subs[k]
            if aux and mat == 0: continue
            e.wait(lg=[cst[k]])
            for q in range(nq):
                a = acc(k, q); tmp = 8 + 4*((k*nq + q) & 1)
                for j in (0, 2): e.i(f'v_pk_mul_f32 v[{tmp+j}:{tmp+j+1}], v[{64+4*k+j}:{64+4*k+j+1}], v[{4+2*q}:{5+2*q}] op_sel_hi:[1,0]')
                for j in (0, 2): e.i(f'v_pk_fma_f32 v[{a+j}:{a+j+1}], v[{a+j}:{a+j+1}], v[{4+2*q}:{5+2*q}], v[{tmp+j}:{tmp+j+1}] op_sel:[0,1,0] op_sel_hi:[1,1,1] neg_lo:[0,0,1] neg_hi:[0,0,1]')
                pk = 16 + 2*((k*nq + q) & 1)
                if mat == 2:
                    e.i(f'ds_write_b128 v{vVA(c)}, v[{a}:{a+3}] offset:{VS + 1280*q}')
                else:
                    e.i(f'v_cvt_pk_bf16_f32 v{pk}, v{a}, v{a+1}')
                    e.i(f'v_cvt_pk_bf16_f32 v{pk+1}, v{a+2}, v{a+3}')
                    e.i(f'ds_write_b64 v{vQK(c)}, v[{pk}:{pk+1}] offset:{(QS if mat == 0 else KS) + 768*q}')
        e.wait_all(vm=False)
        e.i('s_barrier')
        stamp(4)
        if not aux: attention(kind)
        stamp(5)
        e.wait_all(vm=False)
        e.i('s_barrier')
        final_copy(extra=(kind == 'm1'))
        finish(6)

    def attention(kind):
        vQ = 0; vK = lambda k: 12 + 10*k
        vS = 92
        vV = lambda b: 100 + 20*b
        vO = 160
        aQ, aK, aV = 180, 181, 182
        e.i(f's_mul_i32 s{sT0}, s{sw}, 3840')
        e.i(f'v_mul_u32_u24 v{aQ}, 48, v{vL}')
        e.i(f'v_add_u32 v{aQ}, s{sT0}, v{aQ}')
        e.i(f'v_add_u32 v{aK}, {2*48}, v{aQ}')
        e.i(f'v_add_u32 v{aQ}, {16*48}, v{aQ}')
        e.i(f'v_mul_u32_u24 v{aV}, 80, v{vL}')
        e.i(f's_mul_i32 s{sT0}, s{sw}, 6400')
        e.i(f's_add_u32 s{sT0}, s{sT0}, {2*80}')
        e.i(f'v_add_u32 v{aV}, s{sT0}, v{aV}')
        def rd10(dst, addr, off, tag):
            return [e.i(f'ds_read_b128 v[{dst}:{dst+3}], v{addr} offset:{off}', (tag, 0)),
                    e.i(f'ds_read_b128 v[{dst+4}:{dst+7}], v{addr} offset:{off+16}', (tag, 1)),
                    e.i(f'ds_read_b64 v[{dst+8}:{dst+9}], v{addr} offset:{off+32}', (tag, 2))]
        tq = rd10(vQ, aQ, QS, 'q')
        tk = {}
        for k in range(4): tk[k] = rd10(vK(k), aK, KS + 96*(7 - k), ('k', k))
        e.i(f's_and_b32 s{sT0}, s{sw}, 1')
        e.i(f's_sub_u32 s{sT1}, s{sT0}, 1')
        e.i(f's_not_b32 s{sT2}, s{sT1}')
        e.i(f's_lshl_b32 s{sT0}, s{sRB}, 6')
        e.i(f'v_add_u32 v183, s{sT0}, v{vL}')
        for k in range(1, 8): e.i(f'v_cmp_le_u32 s[{64+2*k}:{65+2*k}], {2*k}, v183')
        e.wait(lg=tq)
        e.i(f'v_and_b32 v{vQ}, s{sT1}, v{vQ}')
        e.i(f'v_and_b32 v{vQ+9}, s{sT2}, v{vQ+9}')
        def vread(k, b):
            return [e.i(f'ds_read_b128 v[{vV(b)+4*x}:{vV(b)+4*x+3}], v{aV} offset:{VS + 160*(7 - k) + 16*x}', ('v', k, x)) for x in range(5)]
        tv = {}
        for k in range(8):
            if k + 4 < 8: tk[k+4] = rd10(vK(k+4), aK, KS + 96*(7 - k - 4), ('k', k+4))
            if k == 6: tv[0] = vread(0, 0)
            if k == 7: tv[1] = vread(1, 1)
            e.wait(lg=tk[k])
            e.i(f'v_dot2_f32_bf16 v{vS+k}, v{vQ}, v{vK(k)}, 0')
            for x in range(1, 10):
                e.i(f'v_dot2_f32_bf16 v{vS+k}, v{vQ+x}, v{vK(k)+x}, v{vS+k}')
        e.i(f'v_mov_b32 v184, {f2u(-1e30)}')
        e.nop(2)
        for k in range(1, 8):
            e.i(f'v_cndmask_b32 v{vS+k}, v184, v{vS+k}, s[{64+2*k}:{65+2*k}]')
        e.i(f'v_max3_f32 v185, v{vS}, v{vS+1}, v{vS+2}')
        e.i(f'v_max3_f32 v185, v185, v{vS+3}, v{vS+4}')
        e.i(f'v_max3_f32 v185, v185, v{vS+5}, v{vS+6}')
        e.i(f'v_max_f32 v185, v185, v{vS+7}')
        e.i(f's_mov_b32 s{sT0}, {f2u(18**-0.5 * 1.4426950408889634)}')
        e.i(f'v_mul_f32 v185, s{sT0}, v185')
        for k in range(8): e.i(f'v_fma_f32 v{vS+k}, v{vS+k}, s{sT0}, -v185')
        for k in range(8): e.i(f'v_exp_f32 v{vS+k}, v{vS+k}')
        e.nop(1)
        e.i(f'v_add_f32 v186, v{vS}, v{vS+1}')
        e.i(f'v_add_f32 v187, v{vS+2}, v{vS+3}')
        e.i(f'v_add_f32 v188, v{vS+4}, v{vS+5}')
        e.i(f'v_add_f32 v189, v{vS+6}, v{vS+7}')
        e.i('v_add_f32 v186, v186, v187')
        e.i('v_add_f32 v188, v188, v189')
        e.i('v_add_f32 v186, v186, v188')
        e.i('v_rcp_f32 v186, v186')
        e.nop(1)
        for k in range(8): e.i(f'v_mul_f32 v{vS+k}, v{vS+k}, v186')
        for k in range(8):
            if k + 2 < 8: tv[k+2] = vread(k + 2, (k + 2) % 3)
            e.wait(lg=tv[k])
            pp = vS + (k & ~1)
            sel = 'op_sel:[0,1,0] op_sel_hi:[1,1,1]' if k & 1 else 'op_sel_hi:[1,0,1]'
            for x in range(0, 20, 2):
                if k == 0: e.i(f'v_pk_mul_f32 v[{vO+x}:{vO+x+1}], v[{vV(0)+x}:{vV(0)+x+1}], v[{pp}:{pp+1}] op_sel_hi:[1,0]')
                else: e.i(f'v_pk_fma_f32 v[{vO+x}:{vO+x+1}], v[{vV(k % 3)+x}:{vV(k % 3)+x+1}], v[{pp}:{pp+1}], v[{vO+x}:{vO+x+1}] {sel}')
        odd = 1 if kind == 'm0' else 0
        for x in range(9): e.i(f'v_cvt_pk_bf16_f32 v{x}, v{vO+2*(x+odd)}, v{vO+2*(x+odd)+1}')
        e.i(f'v_mul_u32_u24 v184, 144, v{vL}')
        e.i(f's_mul_i32 s{sT0}, s{sw}, 36')
        e.i(f'v_add_u32 v184, s{sT0}, v184')
        for x in range(9): e.i(f'ds_write_b32 v184, v{x} offset:{OS + 4*x}')

    def loader(role):
        if lprio: e.i(f's_setprio {lprio}')
        vD = lambda i: 100 + i
        e.i(f'v_lshrrev_b32 v2, 4, v{vL}')
        e.i(f'v_and_b32 v3, 15, v{vL}')
        e.i('v_mul_u32_u24 v5, 3456, v2')
        e.i(f's_lshl_b32 s{sT2}, s{sHG}, 7')
        e.i(f'v_add_u32 v5, s{sT2}, v5')
        for par in range(2):
            e.i(f'v_or_b32 v4, {4*par}, v2')
            e.i('v_lshlrev_b32 v4, 1, v4')
            e.i('v_xor_b32 v4, v4, v3')
            e.i(f'v_lshl_add_u32 v{6+par}, v4, 4, v5')
        for i in range(24):
            mat, k = i >> 3, i & 7
            c = mat*1152 + k*13824 - (i & 3)*1024
            e.i(f'v_add_u32 v{vD(i)}, {c & 0xffffffff}, v{6 + ((k >> 1) & 1)}')
        e.i(f's_mul_i32 s{sK}, s{sR2}, {2*110592}')
        vXO = lambda i: 60 + i
        e.i(f'v_lshrrev_b32 v2, 3, v{vL}')
        e.i(f'v_and_b32 v3, 7, v{vL}')
        e.i('v_xor_b32 v3, v3, v2')
        e.i(f's_lshl_b32 s{sT0}, s{sRB}, 6')
        e.i(f's_sub_u32 s{sT0}, s{sT0}, 16')
        e.i(f'v_add_u32 v2, s{sT0}, v2')
        for i in range(10):
            e.i(f'v_add_u32 v4, {8*i}, v2')
            e.i('v_max_i32 v4, 0, v4')
            e.i('v_mul_u32_u24 v4, 72, v4')
            e.i(f'v_add_lshl_u32 v{vXO(i)}, v4, v3, 4')
        srds()
        def dma(t):
            slot = slot_of(t)
            if t > 0:
                e.i(f's_add_u32 s{sK}, s{sK}, 110592')
                e.i(f's_cmp_ge_u32 s{sK}, {18*110592}')
                e.i(f's_cselect_b32 s{sOFF}, {18*110592}, 0')
                e.i(f's_sub_u32 s{sK}, s{sK}, s{sOFF}')
            for i in range(12*role, 12*role + 12):
                if 'nodma' in exp and t > 5: continue
                if i % 4 == 0:
                    e.i(f's_mov_b32 m0, {slot*SLOT + i*1024}')
                    e.i('s_nop 0')
                e.i(f'buffer_load_dwordx4 v{vD(i)}, s[{sW}:{sW+3}], s{sK} offen offset:{(i & 3)*1024} {wmod} lds', ('A', t, i))
        def xdma(c):
            e.i(f's_add_u32 s{sU}, s{sR2}, {c}')
            e.i(f's_cmp_ge_u32 s{sU}, 9')
            e.i(f's_cselect_b32 s{sT0}, 9, 0')
            e.i(f's_sub_u32 s{sU}, s{sU}, s{sT0}')
            e.i(f's_lshl_b32 s{sU}, s{sU}, 7')
            for i in range(5*role, 5*role + 5):
                e.i(f's_mov_b32 m0, {X0 + (c % NSX)*XSL + i*1024}')
                e.i('s_nop 0')
                e.i(f'buffer_load_dwordx4 v{vXO(i)}, s[{sX}:{sX+3}], s{sU} offen {xmod} lds', ('X', c, i))
        A = lambda t: [('A', t, i) for i in range(12*role, 12*role + 12)]
        Xc = lambda c: [('X', c, i) for i in range(5*role, 5*role + 5)]
        xdma(0)
        for t in range(LEAD): dma(t)
        if role == 0:
            srd(e, sM, sPWS, sPWS+1, WS_FL, 256*256)
            e.i(f'v_lshlrev_b32 v8, 2, v{vL}')
            e.i('v_mov_b32 v9, 0')
            e.i(f's_lshl_b32 s{sT0}, s2, 8')
            e.i(f'buffer_store_dword v9, v8, s[{sM}:{sM+3}], s{sT0} offen sc1')
        for t in range(0, 18):
            e.wait(vm=A(t) + Xc(t >> 1))
            e.i('s_barrier')
            if t % 2 == 0 and t//2 + 1 < 9: xdma(t//2 + 1)
            if t + LEAD < 18: dma(t + LEAD)
            if prefetch and role == 0 and t in pf_t:
                k = pf_t.index(t)
                mat, part = divmod(k, 3)
                if part == 0:
                    ptr = (sPG, sPU, sPD)[mat]
                    srd(e, sO, ptr, ptr+1, 0, D*F*2)
                    e.i(f's_mul_i32 s{sT2}, s2, {162*128}')
                    e.i(f'v_lshlrev_b32 v9, 7, v{vL}')
                e.i(f'buffer_load_dword v{40+k}, v9, s[{sO}:{sO+3}], s{sT2} offen')
                e.i(f's_add_u32 s{sT2}, s{sT2}, 8192')
            if t == 14 and role == 1:
                srd(e, sM, sPWO, sPWO+1, 0, D*D*2)
                e.i(f'v_lshrrev_b32 v10, 4, v{vL}')
                e.i(f's_lshl_b32 s{sT0}, s2, 2')
                e.i(f'v_add_u32 v10, s{sT0}, v10')
                e.i('v_mul_u32_u24 v11, 1152, v10')
                e.i(f'v_and_b32 v12, 15, v{vL}')
                e.i('v_mul_u32_u24 v12, 72, v12')
                e.i('v_add_u32 v11, v11, v12')
                tw = [e.i(f'buffer_load_dwordx2 v[{14+2*k}:{15+2*k}], v11, s[{sM}:{sM+3}], 0 offen offset:{8*k}') for k in range(9)]
        e.i('s_barrier')
        if role == 1:
            e.wait(vm=tw)
            e.i(f's_mov_b32 s{sONE}, 0x3f803f80')
            e.i('v_mov_b32 v6, 0')
            for k in range(18): e.i(f'v_dot2_f32_bf16 v6, v{14+k}, s{sONE}, v6')
            for r in (8, 4, 2, 1):
                e.nop(3)
                e.i(f'v_add_f32_dpp v6, v6, v6 row_ror:{r} row_mask:0xf bank_mask:0xf')
            e.i(f's_mov_b32 s{sT0}, {f2u(1.0/576)}')
            e.i(f'v_mul_f32 v6, s{sT0}, v6')
            e.i('v_cvt_pk_bf16_f32 v6, v6, v6')
            srd(e, sM, sPWS, sPWS+1, WS_WB, 1152)
            e.i('v_lshlrev_b32 v7, 1, v10')
            e.i('s_mov_b32 exec_lo, 0x00010001')
            e.i('s_mov_b32 exec_hi, 0x00010001')
            e.i(f'buffer_store_short v6, v7, s[{sM}:{sM+3}], 0 offen {small_mod}')
            e.i('s_mov_b64 exec, -1')
        e.i('s_barrier')
        e.i('s_barrier')
        final_copy(extra=False)
        finish(6)

    segs = []
    for lab, fn in ((None, lambda: compute('m1')), ('m0', lambda: compute('m0')), ('a0', lambda: compute('a0')), ('a1', lambda: compute('a1')), ('ld0', lambda: loader(0)), ('ld1', lambda: loader(1))):
        n0 = len(e.ins)
        if lab: e.i(f'{name}_{lab}:')
        e.vmq, e.lgq = list(save[0]), list(save[1])
        fn()
        segs.append(e.ins[:common_n] + e.ins[n0:])
    e.i(f'{name}_done:')
    e.i('s_endpgm')
    probs = sum((check(x, name) for x in segs), [])
    nb = [sum(1 for x in sg if x.kind == 'barrier') for sg in segs]
    assert len(set(nb)) == 1, nb
    txt = '.p2align 8\n.type %s,@function\n' % name + e.text() + kernel_desc(name, 256, 96, 256)
    return txt, LDS, probs

if __name__ == '__main__':
    t, lds, pr = gen_k1()
    open('k1.s', 'w').write('.amdgcn_target "amdgcn-amd-amdhsa--gfx950"\n.text\n' + t)
    print(len(t), lds, len(pr))
```

```python
from asmlib import *
from common import *
import struct
def f2u(x): return struct.unpack('<I', struct.pack('<f', x))[0]

NWG2 = 216
def gen_k2(name='oproj_kernel', diag=False, store_mod='', wmod='', omod='', xmod='', stamps=False, FIRST=3, small_mod='', codepf=None):
    e = Emitter(name)
    NST = 6; KPS = 3
    WB = 73728
    MS = WB + 1152 + 128
    XS = WB + 2048
    BS = XS + 12288
    NBS = 4; BSL = 6*KPS*1024
    LDS = BS + NBS*BSL
    sWO, sO, sX, sWS = 4, 8, 12, 16
    sPX, sPWO, sPWS = 20, 22, 24
    sw, sTB, sNW, sT, sT0, sT1, sOFF, sCH = 26, 27, 28, 29, 30, 31, 32, 33
    sHC, sSS = 36, 40
    sTS = 48; sST = 52
    def stamp(k):
        if diag and stamps: e.i(f's_memtime s[{sST+2*k}:{sST+1+2*k}]')
    NSET = 3
    vB = lambda st, q: 8*st + 4*q
    vA = lambda st, c: 24 + 12*st + 4*c
    vACC = lambda q, c: 60 + (q*2 + c)*4
    vAW = 76
    vX = lambda q, c: 80 + (q*2 + c)*2
    vXM = [88, 89]
    vRA = [90, 91]; vRB = [92, 93]
    vL, vL16, vROW, vG, vWA, vOFF, vXA, vBA, vM = 94, 95, 96, 97, 98, 99, 100, 101, 102
    e.i(f'{name}:')
    e.i(f's_cmp_ge_u32 s2, {NWG2}')
    e.i(f's_cbranch_scc1 {name}_done')
    if diag: e.i(f's_memrealtime s[{sTS}:{sTS+1}]')
    e.i(f's_load_dwordx2 s[{sPX}:{sPX+1}], s[0:1], {ARG_X}')
    if codepf: code_prefetch(e, name, codepf[0], codepf[1], 3, 72, 116, 118)
    e.i(f's_load_dwordx2 s[{sPWO}:{sPWO+1}], s[0:1], {ARG_WO}')
    e.i(f's_load_dwordx2 s[{sPWS}:{sPWS+1}], s[0:1], {ARG_WS}')
    stamp(0)
    e.i('v_lshrrev_b32 v1, 6, v0')
    e.i(f'v_and_b32 v{vL}, 63, v0')
    e.i(f'v_readfirstlane_b32 s{sw}, v1')
    e.i(f's_lshr_b32 s{sT0}, s2, 3')
    e.i(f's_mul_i32 s{sT1}, s{sT0}, 57')
    e.i(f's_lshr_b32 s{sT1}, s{sT1}, 9')
    e.i(f's_mul_i32 s{sNW}, s{sT1}, 9')
    e.i(f's_sub_u32 s{sNW}, s{sT0}, s{sNW}')
    e.i(f's_mul_i32 s{sT1}, s{sT1}, 5')
    e.i(f's_and_b32 s{sTB}, s2, 7')
    e.i(f's_lshl_b32 s{sTB}, s{sTB}, 4')
    e.i(f's_add_u32 s{sTB}, s{sTB}, s{sT1}')
    e.i(f'v_lshlrev_b32 v{vL16}, 4, v{vL}')
    e.i(f's_cmp_eq_u32 s{sw}, 6')
    e.i(f's_cbranch_scc1 {name}_ld0')
    e.i(f's_cmp_eq_u32 s{sw}, 7')
    e.i(f's_cbranch_scc1 {name}_ld1')
    common_n = len(e.ins); save = (list(e.vmq), list(e.lgq))
    def finish():
        if diag:
            e.i('s_mov_b64 exec, -1')
            e.i('s_waitcnt vmcnt(0)')
            e.i(f's_memrealtime s[{sTS+2}:{sTS+3}]')
            e.i('s_waitcnt lgkmcnt(0)')
            srd(e, sHC, sPWS, sPWS+1, WS_TS + 1*0x10000, 0x10000)
            e.i(f's_lshl_b32 s{sT0}, s2, 3'); e.i(f's_add_u32 s{sT0}, s{sT0}, s{sw}'); e.i(f's_lshl_b32 s{sT0}, s{sT0}, 4')
            for k in range(4): e.i(f'v_mov_b32 v{k}, s{sTS+k}')
            e.i('v_mov_b32 v4, 0')
            e.i(f'buffer_store_dwordx4 v[0:3], v4, s[{sHC}:{sHC+3}], s{sT0} offen')
            if stamps:
                e.i(f's_memtime s[{sST+14}:{sST+15}]')
                e.i('s_waitcnt lgkmcnt(0)')
                srd(e, sHC, sPWS, sPWS+1, WS_TS + 4*0x10000, 0x40000)
                e.i(f's_lshl_b32 s{sT0}, s2, 3'); e.i(f's_add_u32 s{sT0}, s{sT0}, s{sw}'); e.i(f's_lshl_b32 s{sT0}, s{sT0}, 7')
                for k in range(8):
                    e.i(f'v_mov_b32 v0, s{sST+2*k}')
                    e.i(f'buffer_store_dword v0, v4, s[{sHC}:{sHC+3}], s{sT0} offen offset:{4*k}')
            e.i('s_waitcnt vmcnt(0)')
        e.i('s_endpgm')

    def compute():
        e.i(f's_and_b32 s{sCH}, s{sw}, 1')
        e.i(f's_and_b32 s{sT}, s{sw}, 6')
        e.i(f's_mul_i32 s{sT1}, s{sT}, {KPS*1024}')
        e.i(f's_add_u32 s{sT1}, s{sT1}, {BS}')
        e.i(f'v_add_u32 v{vBA}, s{sT1}, v{vL16}')
        e.i(f'v_lshrrev_b32 v{vG}, 4, v{vL}')
        e.i(f'v_and_b32 v{vM}, 15, v{vL}')
        e.i(f's_add_u32 s{sT0}, s{sTB}, s{sT}')
        e.i(f's_lshl_b32 s{sT0}, s{sT0}, 4')
        e.i(f'v_add_u32 v{vROW}, s{sT0}, v{vM}')
        e.i(f'v_lshlrev_b32 v110, 2, v{vROW}')
        e.i('s_waitcnt lgkmcnt(0)')
        srd(e, sWS, sPWS, sPWS+1, WS_XM, S*4)
        txm = [e.i(f'buffer_load_dword v{vXM[q]}, v110, s[{sWS}:{sWS+3}], 0 offen offset:{64*q}') for q in range(2)]
        e.i(f'v_bfe_u32 v112, v{vL}, 2, 2')
        e.i(f'v_lshl_add_u32 v113, v{vG}, 3, v112')
        e.i('v_lshlrev_b32 v113, 7, v113')
        e.i(f'v_and_b32 v114, 3, v{vL}')
        e.i('v_lshl_add_u32 v113, v114, 3, v113')
        e.i('v_lshrrev_b32 v112, 1, v112')
        e.i(f'v_and_b32 v114, 1, v{vG}')
        e.i('v_lshl_or_b32 v112, v114, 1, v112')
        e.i(f's_lshl_b32 s{sT0}, s{sCH}, 1')
        e.i(f'v_xor_b32 v112, s{sT0}, v112')
        e.i(f'v_lshl_add_u32 v{vRA[0]}, v112, 5, v113')
        e.i(f'v_xor_b32 v{vRA[1]}, 32, v{vRA[0]}')
        for c in range(2): e.i(f'v_add_u32 v{vRB[c]}, 0x10000, v{vRA[c]}')
        e.i(f'v_lshlrev_b32 v{vWA}, 4, v{vG}')
        e.i(f'v_add_u32 v{vWA}, {WB}, v{vWA}')
        e.i(f's_lshl_b32 s{sT0}, s{sT}, 4')
        e.i(f'v_add_u32 v112, s{sT0}, v{vM}')
        e.i('v_lshlrev_b32 v112, 7, v112')
        e.i(f'v_lshrrev_b32 v113, 1, v{vG}')
        e.i(f's_lshl_b32 s{sT0}, s{sCH}, 2')
        e.i(f'v_or_b32 v113, s{sT0}, v113')
        e.i(f'v_and_b32 v114, 7, v{vM}')
        e.i('v_xor_b32 v113, v113, v114')
        e.i('v_lshl_add_u32 v112, v113, 4, v112')
        e.i(f'v_and_b32 v114, 1, v{vG}')
        e.i('v_lshl_add_u32 v112, v114, 3, v112')
        e.i(f'v_add_u32 v{vXA}, {XS}, v112')
        srd(e, sHC, sPWS, sPWS+1, WS_HC, MAT_BYTES)
        srd(e, sSS, sPWS, sPWS+1, WS_SS, S*128)
        stamp(1)
        rt = {}
        def reads(s):
            st = s % NSET; tg = []
            R = vRA if s < 16 else vRB
            base = (s if s < 16 else s - 16)*4096
            bo = ((s // KPS) % NBS)*BSL + (s % KPS)*1024
            for c in range(2):
                tg.append(e.i(f'ds_read_b64_tr_b16 v[{vA(st,c)}:{vA(st,c)+1}], v{R[c]} offset:{base}'))
                tg.append(e.i(f'ds_read_b64_tr_b16 v[{vA(st,c)+2}:{vA(st,c)+3}], v{R[c]} offset:{base + 512}'))
            for q in range(2):
                tg.append(e.i(f'ds_read_b128 v[{vB(st,q)}:{vB(st,q)+3}], v{vBA} offset:{bo + q*KPS*1024}'))
            tg.append(e.i(f'ds_read_b128 v[{vA(st,2)}:{vA(st,2)+3}], v{vWA} offset:{64*s}'))
            rt[s] = tg
        def pre(s):
            if s % KPS == 0:
                e.i('s_barrier')
                if s == 0: stamp(2)
            reads(s)
        pre(0); pre(1)
        tx = []
        def body(ch):
            for s in range(18):
                e.wait(lg=rt[s])
                sset = s % NSET
                for q in range(2):
                    for c in range(2):
                        a = vACC(q, c)
                        cc = '0' if s == 0 else f'v[{a}:{a+3}]'
                        e.i(f'v_mfma_f32_16x16x32_bf16 v[{a}:{a+3}], v[{vA(sset,c)}:{vA(sset,c)+3}], v[{vB(sset,q)}:{vB(sset,q)+3}], {cc}')
                cc = '0' if s == 0 else f'v[{vAW}:{vAW+3}]'
                e.i(f'v_mfma_f32_16x16x32_bf16 v[{vAW}:{vAW+3}], v[{vA(sset,2)}:{vA(sset,2)+3}], v[{vB(sset,ch)}:{vB(sset,ch)+3}], {cc}')
                if s + 2 < 18: pre(s + 2)
                if s == 16:
                    for q in range(2):
                        for c in range(2):
                            e.i(f'v_xor_b32 v{vOFF}, {32*c}, v{vXA}')
                            tx.append(e.i(f'ds_read_b64 v[{vX(q,c)}:{vX(q,c)+1}], v{vOFF} offset:{q*2048}'))
        return body, txm, tx, rt
    def compute_tail(ch, txm, tx):
        stamp(3)
        e.wait(vm=txm, lg=tx)
        e.nop(8)
        e.i(f'v_add_f32 v110, v{vXM[ch]}, v{vAW}')
        e.i(f's_add_u32 s{sT0}, s{sT}, {ch}')
        e.i(f's_lshl_b32 s{sT0}, s{sT0}, 6')
        e.i(f's_add_u32 s{sT0}, s{sT0}, {MS}')
        e.i(f'v_lshl_add_u32 v111, v{vM}, 2, s{sT0}')
        e.i('ds_write_b32 v111, v110', 'mw')
        e.wait(lg=['mw'])
        e.i('s_barrier')
        o = 1 - ch
        t2 = e.i(f'ds_read_b32 v{vXM[o]}, v111 offset:{64}') if ch == 0 else None
        if ch == 1:
            e.i('v_subrev_u32 v111, 64, v111')
            t2 = e.i(f'ds_read_b32 v{vXM[o]}, v111')
        e.i(f'v_mov_b32 v{vXM[ch]}, v110')
        e.i('v_mov_b32 v0, 0xffff0000')
        e.wait(lg=[t2])
        for q in range(2):
            for c in range(2):
                a = vACC(q, c); x = vX(q, c)
                e.i(f'v_lshlrev_b32 v1, 16, v{x}')
                e.i(f'v_and_b32 v2, v0, v{x}')
                e.i(f'v_lshlrev_b32 v3, 16, v{x+1}')
                e.i(f'v_and_b32 v4, v0, v{x+1}')
                for j in range(4): e.i(f'v_sub_f32 v{1+j}, v{1+j}, v{vXM[q]}')
                for j in range(4): e.i(f'v_add_f32 v{a+j}, v{a+j}, v{1+j}')
        for q in range(2):
            for c in range(2):
                a = vACC(q, c)
                e.i(f'v_cvt_pk_bf16_f32 v{8+4*q+2*c}, v{a}, v{a+1}')
                e.i(f'v_cvt_pk_bf16_f32 v{9+4*q+2*c}, v{a+2}, v{a+3}')
        e.i(f's_add_u32 s{sT0}, s{sTB}, s{sT}')
        e.i(f's_mul_i32 s{sT0}, s{sT0}, 18')
        e.i(f's_lshl_b32 s{sT1}, s{sNW}, 1')
        e.i(f's_add_u32 s{sT0}, s{sT0}, s{sT1}')
        e.i(f's_add_u32 s{sT0}, s{sT0}, {ch}')
        e.i(f's_lshl_b32 s{sT0}, s{sT0}, 10')
        e.i(f'buffer_store_dwordx4 v[8:11], v{vL16}, s[{sHC}:{sHC+3}], s{sT0} offen {store_mod}')
        e.i(f's_add_u32 s{sT0}, s{sT0}, {18*1024}')
        e.i(f'buffer_store_dwordx4 v[12:15], v{vL16}, s[{sHC}:{sHC+3}], s{sT0} offen {store_mod}')
        for q in range(2):
            a = vACC(q, 0)
            e.i(f'v_mul_f32 v{16+2*q}, v{a}, v{a}')
            e.i(f'v_mul_f32 v{17+2*q}, v{a+1}, v{a+1}')
            for k in range(2, 8): e.i(f'v_fma_f32 v{16+2*q+(k&1)}, v{a+k}, v{a+k}, v{16+2*q+(k&1)}')
            e.i(f'v_add_f32 v{16+2*q}, v{16+2*q}, v{17+2*q}')
        for swp in ('v_permlane16_swap_b32', 'v_permlane32_swap_b32'):
            for q in range(2): e.i(f'v_mov_b32 v{17+2*q}, v{16+2*q}')
            e.nop(2)
            for q in range(2): e.i(f'{swp} v{16+2*q}, v{17+2*q}')
            e.nop(1)
            for q in range(2): e.i(f'v_add_f32 v{16+2*q}, v{16+2*q}, v{17+2*q}')
        e.i(f'v_lshlrev_b32 v5, 7, v{vROW}')
        e.i(f's_lshl_b32 s{sT0}, s{sNW}, 3')
        e.i(f's_add_u32 s{sT0}, s{sT0}, {4*ch}')
        e.i(f'v_add_u32 v5, s{sT0}, v5')
        e.i(f'v_lshlrev_b32 v4, 2, v{vROW}')
        srd(e, sWS, sPWS, sPWS+1, WS_HM, S*4)
        e.i('s_mov_b64 exec, 0xffff')
        e.i(f'buffer_store_dword v16, v5, s[{sSS}:{sSS+3}], 0 offen {small_mod}')
        e.i(f'buffer_store_dword v18, v5, s[{sSS}:{sSS+3}], 0 offen offset:2048 {small_mod}')
        if ch == 0:
            e.i(f's_cmp_lg_u32 s{sNW}, 0')
            e.i(f's_cbranch_scc1 {name}_nohm')
            e.i(f'buffer_store_dword v{vXM[0]}, v4, s[{sWS}:{sWS+3}], 0 offen {small_mod}')
            e.i(f'buffer_store_dword v{vXM[1]}, v4, s[{sWS}:{sWS+3}], 0 offen offset:64 {small_mod}')
            e.i(f'{name}_nohm:')
        stamp(4); stamp(5); stamp(6)
        finish()

    def loader(role):
        e.i(f'v_lshrrev_b32 v6, 3, v{vL}')
        e.i(f'v_and_b32 v8, 7, v{vL}')
        if role == 0:
            e.i(f'v_bfe_u32 v7, v{vL}, 4, 1')
            e.i('v_mul_u32_u24 v9, 1152, v6')
            e.i(f's_lshl_b32 s{sT0}, s{sNW}, 7')
            e.i(f'v_add_u32 v9, s{sT0}, v9')
            for j in range(4):
                par = j & 1
                e.i(f'v_or_b32 v20, {2*par}, v7')
                e.i('v_lshlrev_b32 v20, 1, v20')
                e.i('v_xor_b32 v20, v20, v8')
                e.i('v_lshl_add_u32 v20, v20, 4, v9')
                e.i(f'v_add_u32 v{10+j}, {j*9216 - j*1024}, v20')
            e.i('s_waitcnt lgkmcnt(0)')
            srd(e, sWO, sPWO, sPWO+1, 0, D*D*2)
            srd(e, sWS, sPWS, sPWS+1, WS_WB, 1152)
            e.i(f's_mov_b32 m0, {WB}')
            e.i('s_nop 0')
            e.i(f'buffer_load_dwordx4 v{vL16}, s[{sWS}:{sWS+3}], 0 offen lds', 'wb0')
            e.i('s_mov_b64 exec, 0xff')
            e.i(f'buffer_load_dwordx4 v{vL16}, s[{sWS}:{sWS+3}], 0 offen offset:1024 lds', 'wb1')
            e.i('s_mov_b64 exec, -1')
            def adma(st):
                for i in range(12*st, 12*st + 12):
                    if i % 4 == 0:
                        e.i(f's_mov_b32 m0, {i*1024}')
                        e.i(f's_mov_b32 s{sOFF}, {i*9216}')
                    e.i(f'buffer_load_dwordx4 v{10 + (i & 3)}, s[{sWO}:{sWO+3}], s{sOFF} offen offset:{(i & 3)*1024} {wmod} lds', ('A', i))
            A = lambda st: [('A', i) for i in range(12*st, 12*st + 12)]
            for st in range(FIRST): adma(st)
            nxa = FIRST
            for st in range(NST):
                e.wait(vm=['wb0', 'wb1'] + A(st))
                e.i('s_barrier')
                while nxa < NST and nxa <= st + FIRST + 1: adma(nxa); nxa += 1
        else:
            e.i('v_xor_b32 v20, v6, v8')
            e.i('v_and_b32 v20, 7, v20')
            e.i(f's_mul_i32 s{sT1}, s{sTB}, {16*1152}')
            e.i(f's_lshl_b32 s{sT0}, s{sNW}, 7')
            e.i(f's_add_u32 s{sT1}, s{sT1}, s{sT0}')
            e.i('v_mul_u32_u24 v21, 1152, v6')
            e.i('v_lshl_add_u32 v21, v20, 4, v21')
            e.i(f'v_add_u32 v21, s{sT1}, v21')
            e.i(f's_mul_i32 s{sT}, s{sTB}, {18*1024}')
            e.i('s_waitcnt lgkmcnt(0)')
            srd(e, sX, sPX, sPX+1, 0, MAT_BYTES)
            srd(e, sO, sPWS, sPWS+1, WS_O, MAT_BYTES)
            def xdma():
                for i in range(12):
                    e.i(f's_mov_b32 m0, {XS + i*1024}')
                    e.i(f's_mov_b32 s{sOFF}, {i*8*1152}')
                    e.i(f'buffer_load_dwordx4 v21, s[{sX}:{sX+3}], s{sOFF} offen {xmod} lds', ('X', i))
            def bdma(st):
                for w in range(6):
                    e.i(f's_mov_b32 m0, {BS + (st % NBS)*BSL + w*KPS*1024}')
                    e.i(f's_add_u32 s{sOFF}, s{sT}, {(w*18 + KPS*st)*1024}')
                    for k in range(KPS):
                        e.i(f'buffer_load_dwordx4 v{vL16}, s[{sO}:{sO+3}], s{sOFF} offen offset:{k*1024} {omod} lds', ('B', st, w, k))
            Bt = lambda st: [('B', st, w, k) for w in range(6) for k in range(KPS)]
            for st in range(FIRST): bdma(st)
            nxt = FIRST
            for st in range(NST):
                vm = Bt(st)
                if st == NST - 1: vm += [('X', i) for i in range(12)]
                e.wait(vm=vm)
                e.i('s_barrier')
                while nxt < NST and (nxt < NBS or st >= nxt - NBS + 2): bdma(nxt); nxt += 1
                if st == 1: xdma()
        e.i('s_barrier')
        stamp(1); stamp(2); stamp(3); stamp(4); stamp(5); stamp(6)
        finish()

    segs = []
    body, txm, tx, rt = compute()
    mid_n = len(e.ins); save2 = (list(e.vmq), list(e.lgq)); rt0 = dict(rt)
    e.i(f's_cmp_eq_u32 s{sCH}, 1')
    e.i(f's_cbranch_scc1 {name}_ch1')
    mid_n = len(e.ins)
    body(0); compute_tail(0, txm, tx)
    segs.append(list(e.ins))
    n0 = len(e.ins)
    e.i(f'{name}_ch1:')
    e.vmq, e.lgq = list(save2[0]), list(save2[1]); rt.clear(); rt.update(rt0); del tx[:]
    body(1); compute_tail(1, txm, tx)
    segs.append(e.ins[:mid_n] + e.ins[n0:])
    for lab, fn in (('ld0', lambda: loader(0)), ('ld1', lambda: loader(1))):
        n0 = len(e.ins)
        e.i(f'{name}_{lab}:')
        e.vmq, e.lgq = list(save[0]), list(save[1])
        fn()
        segs.append(e.ins[:common_n] + e.ins[n0:])
    e.i(f'{name}_done:')
    e.i('s_endpgm')
    probs = sum((check(x, name) for x in segs), [])
    nb = [sum(1 for x in sg if x.kind == 'barrier') for sg in segs]
    assert len(set(nb)) == 1, nb
    txt = '.p2align 8\n.type %s,@function\n' % name + e.text() + kernel_desc(name, 120, 96, 120)
    return txt, LDS, probs

if __name__ == '__main__':
    t, lds, pr = gen_k2()
    open('k2.s', 'w').write('.amdgcn_target "amdgcn-amd-amdhsa--gfx950"\n.text\n' + t)
    print(len(t), lds, len(pr))
```

```python
from asmlib import *
from common import *
import struct

C0 = -2.0 * 1.4426950408889634 * 0.7978845608028654
C1 = C0 * 0.044715
def f2u(x): return struct.unpack('<I', struct.pack('<f', x))[0]

def gen_k3(name='ffn_kernel', NS=8, BG=2, P=None, PB=None, NSB=8, diag=False, store_mod='', stamps=(), exp='',
           NA1=4, NA2=4, dmaslot=0, wevery=1, ppf=None, wmod='', bmod='', pgrp=1, fs=(76, 94), warm=None, p2order=2, warm0=False, tail_mod=None, hgh_mod='sc1', hgb=False, pfmod='', codepf=None):
    if P is None: P = NS - BG
    if tail_mod is None: tail_mod = store_mod
    if PB is None: PB = NSB - BG
    e = Emitter(name)
    RING = 0
    HH = NS * 8192
    LDS = HH + 73728
    assert NS in (8, 11)
    SC = 7 if NS == 11 else 0
    slot_of = lambda t: (t + SC) % NS
    HI = 65536
    vB = lambda q, s: (s*2 + q)*4
    acc1 = lambda st, mat, cc, q: 144 + 32*st + ((mat*2 + cc)*2 + q)*4
    acc2 = lambda k, cc, q: (176 if k == 0 else 144) + (cc*2 + q)*4
    accT = lambda q: 232 + 4*q
    vB2 = lambda q, s: 72 + (s*2 + q)*4
    ASET1 = [208, 212, 216, 220, 248 ]
    ASET2 = [208, 212, 216, 220, 136, 140, 144, 148]
    vPK = lambda q: 224 + 4*q
    vT = [232, 233, 234, 235]
    vCA = [236, 239]; vCB = [237, 240]; vV = [238, 241]
    vRA = [242, 243]
    vRH = 244
    vD1, vD1H = 245, 246
    vHW = 247
    vBS = 252
    vHWF = 253
    vR2 = [242, 243, 248, 249]
    vRAh = [248, 249]; vRHh = 250; vR2h = [240, 241, 251, 252]
    vL16 = 254
    vX = 255
    NA1 = min(NA1, 5); assert NA2 <= 6
    sWG, sWD, sHC, sP, sWU = 4, 8, 12, 16, 52
    sPG, sPU, sPD, sPWS = 20, 22, 24, 26
    sw, sWB, sRB, sJ, sROT = 28, 29, 30, 31, 32
    sFF, sFH = 33, 34
    sOFF, sBOFF, sT0 = 35, 36, 37
    sFB = 38
    sPO = 39
    sKS = 40
    sMQ, sFHW = 41, 42
    sT1, sT2, sO2 = 43, 44, 45
    sFR = [46, 47, 48, 49]
    sFR2 = [84, 85, 86, 87]; sFRH, sFRH2 = 88, 89
    sNB = [90, 91]; sNT = 92; sHG, sHG2 = 93, 94
    sFL = 64; sHGS = 68
    sTS = 56
    sST = 72
    e.i(f'{name}:')
    e.i('s_cmp_ge_u32 s2, 256')
    e.i(f's_cbranch_scc1 {name}_done')
    if diag: e.i(f's_memrealtime s[{sTS}:{sTS+1}]')
    e.i(f's_load_dwordx4 s[{sPG}:{sPG+3}], s[0:1], {ARG_WG}')
    if codepf: code_prefetch(e, name, codepf[0], codepf[1], 4, 60, 40, 42)
    e.i(f's_load_dwordx2 s[{sPD}:{sPD+1}], s[0:1], {ARG_WD}')
    e.i(f's_load_dwordx2 s[{sPWS}:{sPWS+1}], s[0:1], {ARG_WS}')
    e.i('v_lshrrev_b32 v1, 6, v0')
    e.i(f'v_and_b32 v{vX}, 63, v0')
    e.i(f'v_readfirstlane_b32 s{sw}, v1')
    e.i(f's_and_b32 s{sJ}, s2, 7')
    e.i(f's_lshl_b32 s{sJ}, s{sJ}, 1')
    e.i(f's_lshr_b32 s{sT0}, s2, 3')
    e.i(f's_and_b32 s{sT0}, s{sT0}, 1')
    e.i(f's_add_u32 s{sJ}, s{sJ}, s{sT0}')
    e.i(f's_lshr_b32 s{sRB}, s2, 4')
    e.i(f's_and_b32 s{sROT}, s{sRB}, 3')
    e.i(f's_mul_i32 s{sT1}, s{sJ}, 288')
    e.i(f's_and_b32 s{sT0}, s{sJ}, 1')
    e.i(f's_lshl_b32 s{sT2}, s{sT0}, 5')
    e.i(f's_add_u32 s{sFF}, s{sT1}, s{sT2}')
    e.i(f's_xor_b32 s{sT0}, s{sT0}, 1')
    e.i(f's_lshl_b32 s{sT2}, s{sT0}, 8')
    e.i(f's_add_u32 s{sFH}, s{sT1}, s{sT2}')
    e.i(f's_and_b32 s{sMQ}, s{sw}, 3')
    e.i(f's_lshl_b32 s{sWB}, s{sMQ}, 10')
    e.i(f's_lshr_b32 s{sFHW}, s{sw}, 2')
    for wi in range(4):
        e.i(f's_add_u32 s{sT0}, s{sROT}, {wi}')
        e.i(f's_and_b32 s{sT0}, s{sT0}, 3')
        e.i(f's_lshl_b32 s{sT0}, s{sT0}, 6')
        e.i(f's_add_u32 s{sT0}, s{sT0}, s{sFF}')
        e.i(f's_mul_i32 s{sFR[wi]}, s{sT0}, 1152')
    e.i(f's_mul_i32 s{sFRH}, s{sFH}, 1152')
    e.i(f's_xor_b32 s{sT1}, s{sJ}, 1')
    e.i(f's_mul_i32 s{sT2}, s{sT1}, 288')
    e.i(f's_and_b32 s{sT1}, s{sT1}, 1')
    e.i(f's_lshl_b32 s{sKS}, s{sT1}, 5')
    e.i(f's_add_u32 s{sKS}, s{sKS}, s{sT2}')
    e.i(f's_xor_b32 s{sT1}, s{sT1}, 1')
    e.i(f's_lshl_b32 s{sT1}, s{sT1}, 8')
    e.i(f's_add_u32 s{sT1}, s{sT1}, s{sT2}')
    e.i(f's_mul_i32 s{sFRH2}, s{sT1}, 1152')
    for wi in range(4):
        e.i(f's_add_u32 s{sT0}, s{sROT}, {wi}')
        e.i(f's_and_b32 s{sT0}, s{sT0}, 3')
        e.i(f's_lshl_b32 s{sT0}, s{sT0}, 6')
        e.i(f's_add_u32 s{sT0}, s{sT0}, s{sKS}')
        e.i(f's_mul_i32 s{sFR2[wi]}, s{sT0}, 1152')
    e.i(f's_and_b32 s{sT1}, s{sJ}, 1')
    e.i(f's_mul_i32 s{sT2}, s{sT1}, 640')
    e.i(f's_and_b32 s{sT0}, s{sRB}, 1')
    e.i(f's_lshl_b32 s{sT0}, s{sT0}, 8')
    e.i(f's_add_u32 s{sNB[0]}, s{sT2}, s{sT0}')
    e.i(f's_xor_b32 s{sT0}, s{sT0}, 256')
    e.i(f's_add_u32 s{sNB[1]}, s{sT2}, s{sT0}')
    e.i(f's_lshl_b32 s{sT1}, s{sT1}, 6')
    e.i(f's_add_u32 s{sNT}, s{sT1}, 512')
    e.i(f's_mul_i32 s{sHG}, s2, 73728')
    e.i(f's_xor_b32 s{sT0}, s2, 8')
    e.i(f's_mul_i32 s{sHG2}, s{sT0}, 73728')
    e.i(f's_mul_i32 s{sT0}, s{sMQ}, 18432')
    e.i(f's_add_u32 s{sHG}, s{sHG}, s{sT0}')
    e.i(f's_add_u32 s{sHG2}, s{sHG2}, s{sT0}')
    L = vX
    e.i(f'v_lshlrev_b32 v{vL16}, 4, v{L}')
    e.i(f'v_lshrrev_b32 v2, 4, v{L}')
    e.i(f'v_bfe_u32 v3, v{L}, 2, 2')
    e.i(f'v_and_b32 v4, 3, v{L}')
    e.i(f'v_lshl_add_u32 v5, v2, 2, v3')
    e.i('v_bfe_u32 v6, v5, 1, 2')
    e.i(f's_lshl_b32 s{sT0}, s{sFHW}, 1')
    e.i(f'v_xor_b32 v6, s{sT0}, v6')
    e.i('v_lshlrev_b32 v7, 7, v5')
    e.i('v_lshl_add_u32 v7, v4, 3, v7')
    e.i(f'v_lshl_add_u32 v{vRA[0]}, v6, 5, v7')
    e.i(f'v_xor_b32 v{vRA[1]}, 32, v{vRA[0]}')
    e.i('v_and_b32 v6, 1, v2')
    e.i(f'v_xor_b32 v6, s{sFHW}, v6')
    e.i('v_lshlrev_b32 v7, 6, v5')
    e.i('v_lshl_add_u32 v7, v4, 3, v7')
    e.i(f'v_lshl_add_u32 v{vRH}, v6, 5, v7')
    if NS > 8:
        for cc in range(2): e.i(f'v_add_u32 v{vRAh[cc]}, {HI}, v{vRA[cc]}')
        e.i(f'v_add_u32 v{vRHh}, {HI}, v{vRH}')
    e.i(f'v_lshrrev_b32 v6, 3, v{L}')
    e.i(f'v_bfe_u32 v7, v{L}, 4, 2')
    e.i('v_lshlrev_b32 v7, 1, v7')
    e.i(f'v_and_b32 v8, 7, v{L}')
    e.i('v_xor_b32 v8, v7, v8')
    e.i(f's_lshl_b32 s{sT0}, s{sMQ}, 3')
    e.i(f'v_add_u32 v9, s{sT0}, v6')
    e.i(f's_mov_b32 s{sT1}, 9216')
    e.i(f'v_mul_lo_u32 v9, v9, s{sT1}')
    e.i(f'v_lshl_add_u32 v{vD1}, v8, 4, v9')
    e.i(f'v_lshrrev_b32 v6, 2, v{L}')
    e.i(f'v_bfe_u32 v7, v{L}, 4, 1')
    e.i('v_lshlrev_b32 v7, 1, v7')
    e.i(f'v_and_b32 v8, 3, v{L}')
    e.i('v_xor_b32 v8, v7, v8')
    e.i(f's_lshl_b32 s{sT0}, s{sMQ}, 4')
    e.i(f'v_add_u32 v9, s{sT0}, v6')
    e.i(f'v_mul_lo_u32 v9, v9, s{sT1}')
    e.i(f'v_lshl_add_u32 v{vD1H}, v8, 4, v9')
    e.i(f's_mul_i32 s{sT0}, s{sMQ}, 18432')
    e.i(f's_add_u32 s{sT0}, s{sT0}, {HH}')
    e.i(f'v_add_u32 v{vHW}, s{sT0}, v{vL16}')
    e.i(f's_lshl_b32 s{sT0}, s{sFHW}, 11')
    e.i(f'v_add_u32 v{vHWF}, s{sT0}, v{vHW}')
    e.i(f's_lshl_b32 s{sT0}, s{sMQ}, 11')
    e.i(f's_add_u32 s{sT0}, s{sT0}, {HH}')
    e.i(f'v_add_u32 v{vBS}, s{sT0}, v{vL16}')
    e.i(f'v_and_b32 v6, 15, v{L}')
    e.i(f's_lshl_b32 s{sT0}, s{sRB}, 7')
    e.i(f's_lshl_b32 s{sT1}, s{sMQ}, 5')
    e.i(f's_add_u32 s{sT0}, s{sT0}, s{sT1}')
    e.i(f'v_add_u32 v6, s{sT0}, v6')
    e.i('v_lshlrev_b32 v6, 7, v6')
    e.i('v_lshl_add_u32 v6, v2, 5, v6')
    e.i('s_waitcnt lgkmcnt(0)')
    srd(e, sWG, sPG, sPG+1, 0, D*F*2)
    srd(e, sWU, sPU, sPU+1, 0, D*F*2)
    srd(e, sWD, sPD, sPD+1, 0, D*F*2)
    srd(e, sHC, sPWS, sPWS+1, WS_HC, MAT_BYTES)
    srd(e, sP, sPWS, sPWS+1, WS_SS, S*128)
    srd(e, sFL, sPWS, sPWS+1, WS_FL, 256*256)
    srd(e, sHGS, sPWS, sPWS+1, WS_HG, 256*73728)
    tss = [e.i(f'buffer_load_dwordx4 v[{16+8*q+4*h}:{19+8*q+4*h}], v6, s[{sP}:{sP+3}], 0 offen offset:{2048*q + 16*h}') for q in range(2) for h in range(2)]
    P2 = [('S', 0, 0, b) for b in range(9)] + [('S', 0, 1, b) for b in range(9)] + [('T', 0, ts) for ts in range(3)]
    if p2order == 2:
        P2 += [('S', 1, 0, b) for b in range(6)] + [('S', 1, 1, b) for b in range(3)] + [('S', 1, 0, b) for b in range(6, 9)] + \
              [('S', 1, 1, b) for b in range(3, 9)] + [('T', 1, ts) for ts in range(3)]
    elif p2order == 0:
        P2 += [('S', 1, 0, b) for b in range(9)] + [('S', 1, 1, b) for b in range(9)] + [('T', 1, ts) for ts in range(3)]
    else:
        P2 += [('S', 1, 0, b) for b in range(6)] + [('S', 1, 1, b) for b in range(6)] + [('S', 1, 0, b) for b in range(6, 9)] + \
              [('S', 1, 1, b) for b in range(6, 9)] + [('T', 1, ts) for ts in range(3)]
    def a_dma(t):
        slot = slot_of(t)
        r = [f's_add_u32 m0, s{sWB}, {RING + slot*8192}']
        m2 = f's_add_u32 m0, s{sWB}, {RING + slot*8192 + 4096}'
        if t < 81:
            if t < 72:
                wi, s = divmod(t, 18)
                if s == 0:
                    r += [f's_add_u32 s{sT0}, s{sROT}, {wi}', f's_and_b32 s{sT0}, s{sT0}, 3', f's_lshl_b32 s{sT0}, s{sT0}, 7',
                          f's_lshl_b32 s{sT1}, s{sFF}, 1', f's_add_u32 s{sOFF}, s{sT1}, s{sT0}']
                else: r.append(f's_add_u32 s{sOFF}, s{sOFF}, {32*9216}')
                vo = vD1
            else:
                sp = t - 72
                if sp == 0: r.append(f's_lshl_b32 s{sOFF}, s{sFH}, 1')
                else: r.append(f's_add_u32 s{sOFF}, s{sOFF}, {64*9216}')
                vo = vD1H
            r.append((f'buffer_load_dwordx4 v{vo}, s[{sWG}:{sWG+3}], s{sOFF} offen {wmod} lds', ('A', t, 0)))
            r += [m2, 's_nop 0', (f'buffer_load_dwordx4 v{vo}, s[{sWU}:{sWU+3}], s{sOFF} offen {wmod} lds', ('A', t, 1))]
            return r
        d = P2[t - 81]; pas = d[1]
        FR = sFR2 if pas else sFR; FH = sFRH2 if pas else sFRH
        if d[0] == 'S':
            k, b = d[2], d[3]
            if b == 8: r.append(f's_add_u32 s{sOFF}, s{FH}, s{sNB[k]}')
            else:
                r.append(f's_add_u32 s{sOFF}, s{FR[b//2]}, s{sNB[k]}')
                if b & 1: r += [f's_add_u32 s{sOFF}, s{sOFF}, {32*1152}']
            r.append((f'buffer_load_dwordx4 v{vD1}, s[{sWD}:{sWD+3}], s{sOFF} offen {wmod} lds', ('A', t, 0)))
            r += [m2, f's_add_u32 s{sO2}, s{sOFF}, {16*1152}', (f'buffer_load_dwordx4 v{vD1}, s[{sWD}:{sWD+3}], s{sO2} offen {wmod} lds', ('A', t, 1))]
            return r
        ts = d[2]
        r.append(f's_add_u32 s{sOFF}, s{FR[2*ts] if ts < 2 else FH}, s{sNT}')
        r.append((f'buffer_load_dwordx4 v{vD1H}, s[{sWD}:{sWD+3}], s{sOFF} offen {wmod} lds', ('A', t, 0)))
        if ts < 2:
            r += [m2, f's_add_u32 s{sO2}, s{FR[2*ts+1]}, s{sNT}', (f'buffer_load_dwordx4 v{vD1H}, s[{sWD}:{sWD+3}], s{sO2} offen {wmod} lds', ('A', t, 1))]
        return r
    def b_dma(t):
        r = [f's_add_u32 m0, s{sWB}, {HH + (t % NSB)*8192}']
        if t == 0:
            r += [f's_lshl_b32 s{sBOFF}, s{sRB}, 3', f's_add_u32 s{sBOFF}, s{sBOFF}, s{sMQ}', f's_mul_i32 s{sBOFF}, s{sBOFF}, {18*1024}']
        else:
            r.append(f's_add_u32 s{sBOFF}, s{sBOFF}, 1024')
        r.append((f'buffer_load_dwordx4 v{vL16}, s[{sHC}:{sHC+3}], s{sBOFF} offen {bmod} lds', ('B', t, 0)))
        r += [f's_add_u32 m0, s{sWB}, {HH + (t % NSB)*8192 + 4096}', f's_add_u32 s{sO2}, s{sBOFF}, {4*18*1024}',
              (f'buffer_load_dwordx4 v{vL16}, s[{sHC}:{sHC+3}], s{sO2} offen {bmod} lds', ('B', t, 1))]
        return r
    cur = [0]
    def emit(lst):
        for x in lst:
            txt = x[0] if isinstance(x, tuple) else x
            if isinstance(txt, str):
                if 'nodma' in exp and ' lds' in txt and 'buffer_load' in txt and len(e.ins) > 300: continue
                if 'novalu' in exp and txt.startswith('v_') and len(e.ins) > 300: continue
                if 'nostore' in exp and txt.startswith('buffer_store') and f's[{sP}:' in txt: continue
                if 'stskip%d' % cur[0] in exp and txt.startswith('buffer_store'): continue
            if isinstance(x, tuple): e.i(x[0], x[1])
            elif callable(x): x()
            else: e.i(x)
    def stats():
        e.wait(vm=tss)
        e.i('v_cmp_gt_u32 vcc, 2, v2')
        e.i('v_cmp_gt_u32 s[50:51], 3, v2')
        e.nop(1)
        for q in range(2):
            b = 16 + 8*q
            for k in range(2, 8): e.i(f'v_cndmask_b32 v{b+k}, 0, v{b+k}, vcc')
            for k in range(2): e.i(f'v_cndmask_b32 v{b+k}, 0, v{b+k}, s[50:51]')
            for k in range(4): e.i(f'v_add_f32 v{b+k}, v{b+k}, v{b+4+k}')
            e.i(f'v_add_f32 v{b}, v{b}, v{b+1}')
            e.i(f'v_add_f32 v{b+2}, v{b+2}, v{b+3}')
            e.i(f'v_add_f32 v{32+4*q}, v{b}, v{b+2}')
        e.i('v_mov_b32 v16, v32')
        e.i('v_mov_b32 v20, v36')
        for swp in ('v_permlane16_swap_b32', 'v_permlane32_swap_b32'):
            for q in range(2): e.i(f'v_mov_b32 v{17+4*q}, v{16+4*q}')
            e.nop(2)
            for q in range(2): e.i(f'{swp} v{16+4*q}, v{17+4*q}')
            e.nop(1)
            for q in range(2): e.i(f'v_add_f32 v{16+4*q}, v{16+4*q}, v{17+4*q}')
            e.nop(1)
        e.i(f's_mov_b32 s{sT0}, {f2u(1.0/576)}')
        e.i(f's_mov_b32 s{sT1}, {f2u(C0)}')
        e.i(f's_mov_b32 s{sT2}, {f2u(C1)}')
        for q in range(2):
            b = 16 + 4*q
            e.i(f'v_mov_b32 v{b+1}, {f2u(1e-5)}')
            e.i(f'v_fma_f32 v{vV[q]}, v{b}, s{sT0}, v{b+1}')
            e.i(f'v_rsq_f32 v{b}, v{vV[q]}')
            e.nop(1)
            e.i(f'v_mul_f32 v{vCA[q]}, s{sT1}, v{b}')
            e.i(f'v_mul_f32 v{b+1}, v{b}, v{b}')
            e.i(f'v_mul_f32 v{b+1}, v{b+1}, v{b}')
            e.i(f'v_mul_f32 v{vCB[q]}, s{sT2}, v{b+1}')
        e.i(f's_lshr_b32 s{sT0}, s{sJ}, 1')
        e.i(f's_mul_i32 s{sT0}, s{sT0}, {MAT_BYTES}')
        e.i(f's_add_u32 s{sT0}, s{sT0}, {WS_P}')
        e.i(f's_add_u32 s{sP}, s{sPWS}, s{sT0}')
        e.i(f's_addc_u32 s{sP+1}, s{sPWS+1}, 0')
        e.i(f's_mov_b32 s{sP+2}, {MAT_BYTES}')
        e.i(f's_mov_b32 s{sP+3}, 0x20000')
        e.i(f's_lshl_b32 s{sT0}, s{sRB}, 3')
        e.i(f's_lshl_b32 s{sT1}, s{sMQ}, 1')
        e.i(f's_add_u32 s{sT0}, s{sT0}, s{sT1}')
        e.i(f's_mul_i32 s{sPO}, s{sT0}, {18*1024}')

    NT = 123
    def frags(t):
        slot = RING + slot_of(t)*8192
        hi = slot >= HI
        if hi: slot -= HI
        out = []
        if t < 72:
            wi, s = divmod(t, 18); st = wi & 1
            for mat in range(2):
                for cc in range(2):
                    out.append(dict(ar=(vRAh if hi else vRA)[cc], off=slot + mat*4096, off2=2048,
                                    mf=[(acc1(st, mat, cc, q), vB(q, s), s == 0) for q in range(2)]))
        elif t < 81:
            sp = t - 72
            for kp in range(2):
                s = 2*sp + kp
                for mat in range(2):
                    out.append(dict(ar=(vRHh if hi else vRH), off=slot + mat*4096 + kp*2048, off2=1024,
                                    mf=[(acc1(0, mat, 0, q), vB(q, s), s == 0) for q in range(2)]))
        else:
            d = P2[t - 81]; pas = d[1]
            BR = vB2 if pas else vB
            if d[0] == 'S':
                k, b = d[2], d[3]
                for cc in range(4):
                    out.append(dict(ar=(vR2h if hi else vR2)[cc], off=slot, off2=4096, blk=(pas, b),
                                    mf=[(acc2(k, cc, q), BR(q, b), pas == 0 and b == 0) for q in range(2)]))
            else:
                ts = d[2]
                for kq in range(4):
                    b = 4*ts + kq
                    if b > 8: continue
                    out.append(dict(ar=(vRHh if hi else vRH), off=slot + kq*2048, off2=1024, blk=(pas, b),
                                    mf=[(accT(q), BR(q, b), pas == 0 and b == 0) for q in range(2)]))
        return out
    flist = [(t, a) for t in range(NT) for a in range(len(frags(t)))]
    fidx = {k: i for i, k in enumerate(flist)}
    SWITCH = len(flist) + 100
    def fset(i):
        if i < SWITCH: return ASET1[i % NA1] if NA1 <= 4 or True else None
        return ASET2[(i - SWITCH) % NA2]
    def dist(i):
        return (NA1 if i < SWITCH else NA2) - 1
    rtag = {}; bread = {}; hread = {}
    def rd_half(i, h):
        t, a = flist[i]; f = frags(t)[a]; ra = fset(i)
        if 'noread' in exp and t > 0:
            rtag.setdefault(i, []); return
        tg = e.i(f'ds_read_b64_tr_b16 v[{ra+2*h}:{ra+2*h+1}], v{f["ar"]} offset:{f["off"] + h*f["off2"]}')
        rtag.setdefault(i, []).append(tg)
    def read_b(t):
        def fn():
            bread[t] = [e.i(f'ds_read_b128 v[{vB(q,t)}:{vB(q,t)+3}], v{vBS} offset:{(t % NSB)*8192 + q*1024}') for q in range(2)]
        return [fn]
    def read_h(b):
        def fn():
            hread[(0, b)] = [e.i(f'ds_read_b128 v[{vB(q,b)}:{vB(q,b)+3}], v{vHW} offset:{(b*2+q)*1024}') for q in range(2)]
        return fn
    def read_h2(b):
        def fn():
            hread[(1, b)] = [e.i(f'ds_read_b128 v[{vB2(q,b)}:{vB2(q,b)+3}], v{vHW} offset:{(b*2+q)*1024}') for q in range(2)]
        return fn
    def geglu_ops(st, ncc):
        ops = []
        for q in range(2):
            for cc in range(ncc):
                a = [acc1(st, 0, cc, q) + jj for jj in range(4)]
                b = [acc1(st, 1, cc, q) + jj for jj in range(4)]
                T = vT
                for jj in range(4): ops.append(f'v_mul_f32 v{T[jj]}, v{a[jj]}, v{a[jj]}')
                for jj in range(4): ops.append(f'v_fma_f32 v{T[jj]}, v{T[jj]}, v{vCB[q]}, v{vCA[q]}')
                for jj in range(4): ops.append(f'v_mul_f32 v{T[jj]}, v{a[jj]}, v{T[jj]}')
                for jj in range(4): ops.append(f'v_exp_f32 v{T[jj]}, v{T[jj]}')
                for jj in range(4): ops.append(f'v_mul_f32 v{b[jj]}, v{a[jj]}, v{b[jj]}')
                for jj in range(4): ops.append(f'v_fma_f32 v{T[jj]}, v{T[jj]}, v{vV[q]}, v{vV[q]}')
                for jj in range(4): ops.append(f'v_rcp_f32 v{T[jj]}, v{T[jj]}')
                for jj in range(4): ops.append(f'v_mul_f32 v{b[jj]}, v{b[jj]}, v{T[jj]}')
                ops.append(f'v_cvt_pk_bf16_f32 v{vPK(q)+2*cc}, v{b[0]}, v{b[1]}')
                ops.append(f'v_cvt_pk_bf16_f32 v{vPK(q)+2*cc+1}, v{b[2]}, v{b[3]}')
        return ops
    def hh_write_full(wi, grp):
        r = [(f'ds_write_b128 v{vHWF}, v[{vPK(q)}:{vPK(q)+3}] offset:{wi*4096 + q*1024}', ('HW', wi, q)) for q in range(2)]
        if grp == 1 or not hgb:
            r += [f's_lshl_b32 s{sKS}, s{sFHW}, 11', f's_add_u32 s{sKS}, s{sKS}, {wi*4096}', f's_add_u32 s{sKS}, s{sKS}, s{sHG}']
            r += [(f'buffer_store_dwordx4 v[{vPK(q)}:{vPK(q)+3}], v{vL16}, s[{sHGS}:{sHGS+3}], s{sKS} offen offset:{q*1024} sc1', ('HG', wi, q)) for q in range(2)]
        return r
    def hg_store_other(wi):
        tags = []
        def rd():
            tags.extend(e.i(f'ds_read_b128 v[{vPK(q)}:{vPK(q)+3}], v{vHW} offset:{wi*4096 + q*1024}') for q in range(2))
        def wt(): e.wait(lg=tags)
        return [rd], [wt, f's_add_u32 s{sKS}, s{sHG}, {wi*4096}'] + \
               [(f'buffer_store_dwordx4 v[{vPK(q)}:{vPK(q)+3}], v{vL16}, s[{sHGS}:{sHGS+3}], s{sKS} offen offset:{q*1024} sc1', ('HGA', wi, q)) for q in range(2)]
    def hh_write_half():
        return [f's_lshl_b32 s{sKS}, s{sFHW}, 3', f'v_add_u32 v{vT[0]}, s{sKS}, v{vHW}'] + \
               [(f'ds_write_b64 v{vT[0]}, v[{vPK(q)}:{vPK(q)+1}] offset:{8*2048 + q*1024}', ('HW', 'h', q)) for q in range(2)]
    def hg_store_half():
        def fn(): e.wait(lg=hread[(0, 8)])
        return [fn, f's_add_u32 s{sKS}, s{sHG}, {8*2048}'] + \
               [(f'buffer_store_dwordx4 v[{vB(q,8)}:{vB(q,8)+3}], v{vL16}, s[{sHGS}:{sHGS+3}], s{sKS} offen offset:{q*1024} sc1', ('HG', 'h', q)) for q in range(2)]
    def p2_epilogue(k):
        ops = [f's_lshl_b32 s{sT2}, s{sNB[k]}, 4', f's_lshl_b32 s{sKS}, s{sFHW}, 11', f's_add_u32 s{sT2}, s{sT2}, s{sKS}', f's_add_u32 s{sT2}, s{sT2}, s{sPO}']
        n = 0
        for q in range(2):
            for pp in range(2):
                pk = vPK(n & 1); n += 1
                for h in range(2):
                    cc = 2*pp + h; a = acc2(k, cc, q)
                    ops.append(f'v_cvt_pk_bf16_f32 v{pk+2*h}, v{a}, v{a+1}')
                    ops.append(f'v_cvt_pk_bf16_f32 v{pk+2*h+1}, v{a+2}, v{a+3}')
                off = q*18*1024 + pp*1024
                if off < 4096:
                    ops.append(f'buffer_store_dwordx4 v[{pk}:{pk+3}], v{vL16}, s[{sP}:{sP+3}], s{sT2} offen offset:{off} {store_mod}')
                else:
                    ops.append(f's_add_u32 s{sKS}, s{sT2}, {off}')
                    ops.append(f'buffer_store_dwordx4 v[{pk}:{pk+3}], v{vL16}, s[{sP}:{sP+3}], s{sKS} offen {store_mod}')
        return ops
    def tail_epilogue():
        ops = [f's_lshl_b32 s{sT2}, s{sNT}, 4', f's_add_u32 s{sT2}, s{sT2}, s{sPO}', f's_lshl_b32 s{sKS}, s{sFHW}, 3', f'v_add_u32 v253, s{sKS}, v{vL16}']
        for q in range(2):
            a = accT(q); pk = vPK(q)
            ops += [f'v_cvt_pk_bf16_f32 v{pk}, v{a}, v{a+1}', f'v_cvt_pk_bf16_f32 v{pk+1}, v{a+2}, v{a+3}']
            if q: ops.append(f's_add_u32 s{sT2}, s{sT2}, {18*1024}')
            ops.append(f'buffer_store_dwordx2 v[{pk}:{pk+1}], v253, s[{sP}:{sP+3}], s{sT2} offen {tail_mod}')
        return ops
    def partner_dma(x, tag):
        o = x*1024
        return [f's_mul_i32 s{sKS}, s{sMQ}, 18432', f's_add_u32 m0, s{sKS}, {HH + o}', f's_add_u32 s{sO2}, s{sHG2}, {o}',
                (f'buffer_load_dwordx4 v{vL16}, s[{sHGS}:{sHGS+3}], s{sO2} offen lds', (tag, x))]
    def flag_set(k):
        return [f's_lshl_b32 s{sKS}, s2, 8', f's_add_u32 s{sKS}, s{sKS}, {128*k}', f'v_mov_b32 v{252 if k == 0 else 253}, 1',
                f'buffer_store_dword v{252 if k == 0 else 253}, off, s[{sFL}:{sFL+3}], s{sKS} sc1']
    def flag_load(k):
        return [f's_xor_b32 s{sOFF}, s2, 8', f's_lshl_b32 s{sOFF}, s{sOFF}, 8', f's_add_u32 s{sOFF}, s{sOFF}, {128*k}',
                (f'buffer_load_dword v{vD1H}, off, s[{sFL}:{sFL+3}], s{sOFF} sc1', ('FL', k))]
    def flag_check(k):
        def fn():
            lab = f'{name}_fc{k}'
            e.wait(vm=[('FL', k)])
            keep = list(e.vmq)
            e.i(f's_mov_b32 s{sO2}, 0x40000')
            e.i(f'{lab}_spin:')
            e.i(f'v_readfirstlane_b32 s{sKS}, v{vD1H}')
            e.nop(4)
            e.i(f's_cmp_eq_u32 s{sKS}, 1')
            e.i(f's_cbranch_scc1 {lab}_ok')
            e.i(f's_sub_u32 s{sO2}, s{sO2}, 1')
            e.i(f's_cmp_eq_u32 s{sO2}, 0')
            e.i(f's_cbranch_scc1 {lab}_ok')
            e.i('s_sleep 2')
            e.i(f'buffer_load_dword v{vD1H}, off, s[{sFL}:{sFL+3}], s{sOFF} sc1')
            e.i('s_waitcnt vmcnt(0)')
            e.i(f's_branch {lab}_spin')
            e.i(f'{lab}_ok:')
            e.vmq = keep
        return [fn]
    def p2_dma_full_setup():
        T = [251, 252]
        return [f'v_lshrrev_b32 v{T[0]}, 4, v{L}', f's_lshl_b32 s{sT2}, s{sMQ}, 2', f'v_add_u32 v{T[0]}, s{sT2}, v{T[0]}',
                f'v_and_b32 v{T[1]}, 7, v{T[0]}', f'v_lshlrev_b32 v{T[1]}, 1, v{T[1]}', f'v_and_b32 v{vD1}, 15, v{L}',
                f'v_xor_b32 v{vD1}, v{T[1]}, v{vD1}', f'v_mul_u32_u24 v{T[0]}, 1152, v{T[0]}', f'v_lshl_add_u32 v{vD1}, v{vD1}, 4, v{T[0]}']
    def p2_dma_half_setup():
        T = [136, 137, 138]
        return [f'v_lshrrev_b32 v{T[0]}, 2, v{L}', f'v_bfe_u32 v{T[1]}, v{L}, 4, 1', f'v_lshlrev_b32 v{T[1]}, 1, v{T[1]}',
                f'v_and_b32 v{T[2]}, 3, v{L}', f'v_xor_b32 v{T[2]}, v{T[1]}, v{T[2]}', f's_lshl_b32 s{sT2}, s{sMQ}, 4',
                f'v_add_u32 v{T[0]}, s{sT2}, v{T[0]}', f'v_mul_u32_u24 v{T[0]}, 1152, v{T[0]}', f'v_lshl_add_u32 v{vD1H}, v{T[2]}, 4, v{T[0]}']
    def p2_read_setup():
        return [f'v_lshrrev_b32 v0, 4, v{L}', f'v_bfe_u32 v1, v{L}, 2, 2', f'v_lshl_add_u32 v0, v0, 2, v1',
                'v_and_b32 v1, 7, v0', f's_lshl_b32 s{sKS}, s{sFHW}, 2', f'v_xor_b32 v1, s{sKS}, v1',
                'v_lshlrev_b32 v0, 8, v0', f'v_and_b32 v2, 3, v{L}', 'v_lshl_add_u32 v0, v2, 3, v0',
                f'v_lshl_add_u32 v{vR2[0]}, v1, 5, v0'] + [f'v_xor_b32 v{vR2[cc]}, {32*cc}, v{vR2[0]}' for cc in range(1, 4)]
    fill = [[] for _ in range(NT + 1)]
    gfill = [[[] for _ in range(NT + 1)] for _ in range(2)]
    def spread(ops, t0, t1):
        n = t1 - t0; m = len(ops)
        for k in range(n): fill[t0 + k] += ops[k*m//n:(k+1)*m//n]
    gs = 2 if hgb else 1
    for wi in range(3):
        t0 = 18*(wi+1)
        spread(geglu_ops(wi & 1, 2), t0 + 1, t0 + 17)
        for g in range(2): gfill[g][t0 + 17] += hh_write_full(wi, g)
    spread(geglu_ops(1, 2), 72, 80)
    for g in range(2): gfill[g][80] += hh_write_full(3, g)
    if hgb:
        for wi, tb in ((0, 36), (1, 54), (2, 72), (3, 82)):
            rd_, st_ = hg_store_other(wi)
            gfill[1][tb] = rd_ + gfill[1][tb]
            gfill[1][tb + 1] = st_ + gfill[1][tb + 1]
    spread(geglu_ops(0, 1), 81, 86); fill[86] += hh_write_half()
    HBLK = {74: (0,), 75: (1,), 76: (2,), 77: (3,), 78: (4,), 79: (5,), 82: (6, 7), 88: (8,)}
    t2 = {0: 106, 1: 112, 2: 108}[p2order]
    HBLK2 = {100: (0, 1, 2), 101: (3, 4, 5), t2: (6, 7, 8)}
    BARX = {82: [('HW', 3, 0), ('HW', 3, 1)], 88: [('HW', 'h', 0), ('HW', 'h', 1)], 72: [('HW', 2, 0), ('HW', 2, 1)],
            36: [('HW', 0, 0), ('HW', 0, 1)], 54: [('HW', 1, 0), ('HW', 1, 1)]}
    FS0, FS1 = fs if not hgb else (80, fs[1])
    BARV = {FS0: [(k, wi, q) for k in ('HG', 'HGA') for wi in range(3) for q in range(2)],
            FS1: [(k, wi, q) for k in ('HG', 'HGA') for wi in (3, 'h') for q in range(2)],
            100: [('PH', x) for x in range(12)], t2: [('PH2', x) for x in range(12, 18)]}
    e0 = {0: 111, 1: 117, 2: 114}[p2order]
    spread(p2_epilogue(0), e0, min(e0 + 8, 120))
    spread(p2_epilogue(1), 120, 123)
    PDMA = {}
    if hgb:
        for x in range(12): PDMA.setdefault(88 + x//2, []).extend(partner_dma(x, 'PH'))
    else:
        for x in range(12): PDMA[86 + x] = partner_dma(x, 'PH')
    f1 = {0: 97, 1: 100, 2: 99}[p2order]
    c1 = {0: 99, 1: 103, 2: 101}[p2order]
    for x in range(12, 18): PDMA.setdefault(c1 + 1 + (x - 12)//3, []).extend(partner_dma(x, 'PH2'))
    FLOAD = {(85 if hgb else 82): 0, f1: 1}; FCHK = {(87 if hgb else 85): 0, c1: 1}
    setup_full_t = 81 - P - 2
    assert 71 - P < setup_full_t < 81 - P
    setup_read_t = 73
    assert NA1 <= 4 or True
    setup_half_t = 89
    assert 80 - P < setup_half_t < 99 - P

    gfirst = lambda g, t: list(gfill[g][t]) if t in (36, 37, 54, 55, 72, 73, 82, 83) else []
    glast = lambda g, t: list(gfill[g][t]) if t not in (36, 37, 54, 55, 72, 73, 82, 83) else []
    def barrier_point(tb, grp):
        vm = []
        if grp == 0:
            for t in range(tb, min(tb + BG, NT - 1) + 1): vm += [('A', t, 0), ('A', t, 1)]
            for t in range(tb, min(tb + BG, 17) + 1): vm += [('B', t, 0), ('B', t, 1)]
        vm += BARV.get(tb, [])
        e.wait(vm=vm, lg=BARX.get(tb, []))
        if 'nobar' not in exp or tb == 0: e.i('s_barrier')
        if grp == 0 and tb == FS0: emit(flag_set(0))
        if grp == 0 and tb == FS1: emit(flag_set(1))
    def stamp(x):
        if diag and x in stamps:
            k = stamps.index(x)
            e.i(f's_memtime s[{sST+2*k}:{sST+1+2*k}]')
    def stream(grp):
        rtag.clear(); bread.clear(); hread.clear(); cur[0] = grp
        if grp == 0:
            for t in range(max(P, PB)):
                if t < PB: emit(b_dma(t))
                if t < P: emit(a_dma(t))
        if grp == 1 and warm0:
            e.i(f's_lshr_b32 s{sOFF}, s2, 3')
            e.i(f's_mul_i32 s{sOFF}, s{sOFF}, 162')
            e.i(f's_and_b32 s{sO2}, s{sMQ}, 1')
            e.i(f's_mul_i32 s{sO2}, s{sO2}, 81')
            e.i(f's_add_u32 s{sOFF}, s{sOFF}, s{sO2}')
            e.i(f's_cmp_lt_u32 s{sMQ}, 2')
            for k in range(2): e.i(f's_cselect_b32 s{60+k}, s{sWG+k}, s{sWU+k}')
            e.i(f's_mov_b32 s62, {D*F*2}')
            e.i('s_mov_b32 s63, 0x20000')
            e.i(f's_and_b32 s{sO2}, s2, 7')
            e.i(f's_mul_i32 s{sO2}, s{sO2}, 1152')
            for k in range(2):
                e.i(f'v_add_u32 v10, s{sOFF}, v{L}')
                if k: e.i('v_add_u32 v10, 64, v10')
                e.i('v_min_u32 v10, 5183, v10')
                e.i('v_mul_u32_u24 v11, 7282, v10')
                e.i('v_lshrrev_b32 v11, 16, v11')
                e.i('v_mul_u32_u24 v12, 9, v11')
                e.i('v_sub_u32 v12, v10, v12')
                e.i('v_mul_u32_u24 v11, 9216, v11')
                e.i('v_lshl_add_u32 v11, v12, 7, v11')
                e.i(f'buffer_load_dword v{vD1H}, v11, s[60:63], s{sO2} offen {pfmod}')
        stats()
        barrier_point(0, grp)
        emit(read_b(0))
        nxt = 0
        for i in range(dist(0)): rd_half(i, 0); rd_half(i, 1)
        nxt = dist(0)
        for t in range(NT):
            e.c(f'---- step {t}')
            stamp(t)
            if t and (t % BG == 0 or t in BARX): barrier_point(t, grp)
            fr = frags(t)
            mem = []
            if grp == 0:
                if t + P < NT: mem += a_dma(t + P)
                if t + PB < 18: mem += b_dma(t + PB)
            lds = []
            if t + 1 < 18: lds += read_b(t + 1)
            lds += [read_h(b) for b in HBLK.get(t, ())]
            lds += [read_h2(b) for b in HBLK2.get(t, ())]
            if grp == pgrp: mem += PDMA.get(t, [])
            if grp == 1 and t in FLOAD: mem += flag_load(FLOAD[t])
            if warm and grp == 1 and t in warm:
                kind = warm[t]
                lab = f'{name}_wm{t}'
                if kind[0] == 'D':
                    mem += [f's_lshr_b32 s{sOFF}, s2, 3', f's_mul_i32 s{sOFF}, s{sOFF}, {162*128}', f's_and_b32 s{sO2}, s2, 7',
                            f's_mul_i32 s{sO2}, s{sO2}, {576*1152}', f's_add_u32 s{sOFF}, s{sOFF}, s{sO2}',
                            f's_lshl_b32 s{sO2}, s{sMQ}, 13', f's_add_u32 s{sOFF}, s{sOFF}, s{sO2}', f'v_lshlrev_b32 v{vD1}, 7, v{L}',
                            f'buffer_load_dword v{vD1H}, v{vD1}, s[{sWD}:{sWD+3}], s{sOFF} offen {pfmod}']
                else:
                    mem += [f's_lshr_b32 s{sOFF}, s2, 3', f's_mul_i32 s{sOFF}, s{sOFF}, {18*9216}', f's_and_b32 s{sO2}, s2, 7',
                            f's_mul_i32 s{sO2}, s{sO2}, 1152', f's_add_u32 s{sOFF}, s{sOFF}, s{sO2}', f's_add_u32 s{sOFF}, s{sOFF}, 512',
                            f'v_min_u32 v{vD1}, 17, v{L}', f'v_mul_u32_u24 v{vD1}, 9216, v{vD1}',
                            f'buffer_load_dword v{vD1H}, v{vD1}, s[{sWG}:{sWG+3}], s{sOFF} offen',
                            f'buffer_load_dword v{vD1H}, v{vD1}, s[{sWU}:{sWU+3}], s{sOFF} offen']
            q = gfirst(grp, t) + list(fill[t]) + glast(grp, t)
            if grp == 1 and t == 89: q = q + hg_store_half()
            if t == setup_read_t: q = p2_read_setup() + q
            if t == 87 and NS > 8: q = [f'v_add_u32 v{vR2h[cc]}, {HI}, v{vR2[cc]}' for cc in range(4)] + q
            if grp == 0 and t == setup_full_t: q = p2_dma_full_setup() + q
            if grp == 0 and t == setup_half_t: q = p2_dma_half_setup() + q
            if grp == 1 and ppf is not None and t >= ppf[0] and (t - ppf[0]) % ppf[1] == 0 and (t - ppf[0]) // ppf[1] < 5:
                k = (t - ppf[0]) // ppf[1]
                pre = []
                if k == 0:
                    pre += [f's_mul_i32 s{sOFF}, s{sRB}, 147456', f's_mul_i32 s{sO2}, s{sMQ}, {288*128}', f's_add_u32 s{sOFF}, s{sOFF}, s{sO2}',
                            f'v_lshlrev_b32 v{vD1}, 7, v{L}']
                else: pre += [f's_add_u32 s{sOFF}, s{sOFF}, 8192']
                pre += [f'buffer_load_dword v{vBS}, v{vD1}, s[{sP}:{sP+3}], s{sOFF} offen']
                mem += pre
            nm = 2*len(fr)
            if dmaslot == 0: emit(mem); mem = []
            q = lds + q
            n = 0
            for a, f in enumerate(fr):
                i = fidx[(t, a)]
                need = list(rtag[i])
                bq = f['mf'][0][1]
                if t < 18: need += bread[t]
                if t >= 81: need += hread.get(f['blk'], [])
                e.wait(lg=need)
                ra = fset(i)
                for k, (acc, breg, zero) in enumerate(f['mf']):
                    c = '0' if zero else f'v[{acc}:{acc+3}]'
                    e.i(f'v_mfma_f32_16x16x32_bf16 v[{acc}:{acc+3}], v[{ra}:{ra+3}], v[{breg}:{breg+3}], {c}')
                    tgt = i + dist(min(i + 1, len(flist) - 1))
                    while nxt <= tgt and nxt < len(flist) and nxt < tgt:
                        rd_half(nxt, 0); rd_half(nxt, 1); nxt += 1
                    if nxt < len(flist) and nxt == tgt:
                        rd_half(nxt, k)
                        if k == 1: nxt += 1
                    lo, hi = n*len(q)//nm, (n+1)*len(q)//nm
                    emit(q[lo:hi]); n += 1
                    if mem and n == dmaslot: emit(mem); mem = []
            emit(mem)
            if grp == 1 and t in FCHK: emit(flag_check(FCHK[t]))
        e.nop(8)
        emit(tail_epilogue())
        e.i('s_waitcnt vmcnt(0)')
        if diag:
            e.i(f's_memrealtime s[{sTS+2}:{sTS+3}]')
            e.i('s_waitcnt lgkmcnt(0)')
            srd(e, sHC, sPWS, sPWS+1, WS_TS + 2*0x10000, 0x10000)
            e.i(f's_lshl_b32 s{sT0}, s2, 3'); e.i(f's_add_u32 s{sT0}, s{sT0}, s{sw}'); e.i(f's_lshl_b32 s{sT0}, s{sT0}, 4')
            for k in range(4): e.i(f'v_mov_b32 v{k}, s{sTS+k}')
            e.i('v_mov_b32 v4, 0')
            e.i(f'buffer_store_dwordx4 v[0:3], v4, s[{sHC}:{sHC+3}], s{sT0} offen')
            if stamps:
                e.i(f's_memtime s[{sST+2*len(stamps)}:{sST+1+2*len(stamps)}]')
                e.i('s_waitcnt lgkmcnt(0)')
                srd(e, sHC, sPWS, sPWS+1, WS_TS + 4*0x10000, 0x40000)
                e.i(f's_lshl_b32 s{sT0}, s2, 3'); e.i(f's_add_u32 s{sT0}, s{sT0}, s{sw}'); e.i(f's_lshl_b32 s{sT0}, s{sT0}, 7')
                for k in range(len(stamps) + 1):
                    e.i(f'v_mov_b32 v0, s{sST+2*k}')
                    e.i(f'buffer_store_dword v0, v4, s[{sHC}:{sHC+3}], s{sT0} offen offset:{4*k}')
            e.i('s_waitcnt vmcnt(0)')
        e.i('s_endpgm')
    e.i(f's_cmp_ge_u32 s{sw}, 4')
    e.i(f's_cbranch_scc1 {name}_grpB')
    common_n = len(e.ins)
    save = (list(e.vmq), list(e.lgq))
    stream(0)
    nA = len(e.ins)
    e.i(f'{name}_grpB:')
    e.vmq, e.lgq = list(save[0]), list(save[1])
    stream(1)
    segs = [e.ins[:nA], e.ins[:common_n] + e.ins[nA:]]
    e.i(f'{name}_done:')
    e.i('s_endpgm')
    probs = sum((check(x, name) for x in segs), [])
    txt = '.p2align 8\n.type %s,@function\n' % name + e.text() + kernel_desc(name, 256, 100, 256)
    return txt, LDS, probs

if __name__ == '__main__':
    t, lds, pr = gen_k3()
    print(len(t), lds, len(pr))
    open('k3.s', 'w').write('.amdgcn_target "amdgcn-amd-amdhsa--gfx950"\n.text\n' + t)
```

```python
import sys, json
from k3 import gen_k3
from k4 import gen_k4
try:
    from k2 import gen_k2
except ImportError: gen_k2 = None
try:
    from k1 import gen_k1
except ImportError: gen_k1 = None

HEADER = """; Fused pre-LN transformer block (dilated local attention + GEGLU FFN), gfx950.
"""
def build(path, diag=False, k1=None, k2=None, k3=None, k4=None, which=('k1','k2','k3','k4'), blk3=512):
    ks = []
    if 'k1' in which and gen_k1: ks.append(('attn_kernel', gen_k1('attn_kernel', diag=diag, **(k1 or {})), 256, 512))
    if 'k2' in which and gen_k2: ks.append(('oproj_kernel', gen_k2('oproj_kernel', diag=diag, **(k2 or {})), 216, 512))
    if 'k3' in which: ks.append(('ffn_kernel', gen_k3('ffn_kernel', diag=diag, **(k3 or {})), 256, blk3))
    if 'k4' in which and not (k3 or {}).get('fuse'): ks.append(('reduce_kernel', gen_k4('reduce_kernel', diag=diag, **(k4 or {})), 576, 256))
    s = HEADER
    launches = []
    nprob = 0
    for name, (txt, lds, probs), grid, block in ks:
        s += f'; @launch kernel={name} grid=({grid},1,1) block=({block},1,1) lds={lds}\n'
        launches.append((name, grid, block, lds)); nprob += len(probs)
    s += '.amdgcn_target "amdgcn-amd-amdhsa--gfx950"\n.text\n'
    for name, (txt, lds, probs), grid, block in ks:
        s += f'.globl {name}\n' + txt + f'{name}_end:\n'
    s += 'text_end_label:\n'
    lines = []
    head = True
    for ln in s.split('\n'):
        t = ln.strip()
        if head and (t.startswith(';') or not t):
            lines.append(t); continue
        head = False
        if not t or t.startswith(';'): continue
        lines.append(' '.join(t.replace(', ', ',').split()) if not t.startswith('.') else t)
    s = '\n'.join(lines) + '\n'
    open(path, 'w').write(s)
    if '/bench/' in path: json.dump(launches, open(path + '.json', 'w'))
    print('built', path, len(s), 'bytes; hazards:', nprob)
    return launches

if __name__ == '__main__':
    out = sys.argv[1] if len(sys.argv) > 1 else 'full.s'
    kw = {}
    for a in sys.argv[2:]:
        if '=' in a:
            k, v = a.split('=', 1); kn, opt = k.split('.')
            kw.setdefault(kn, {})[opt] = eval(v)
    which = tuple(a for a in sys.argv[2:] if a in ('k1', 'k2', 'k3', 'k4')) or ('k1', 'k2', 'k3', 'k4')
    build(out, diag=('diag' in sys.argv), which=which, blk3=(256 if 'solo' in sys.argv else 512), **kw)
```

```python
from asmlib import *
from common import *
import struct, math
def f2u(x): return struct.unpack('<I', struct.pack('<f', x))[0]

def gen_k1(name='attn_kernel', diag=False, store_mod='', prefetch=False, stamps=False, pf_t=(14, 14, 14), wmod='', xmod='', rotate=True, lprio=0, aprio=0, exp='', small_mod='', xmap=True, LEAD=3, codepf=None):
    e = Emitter(name)
    NS = 5; SLOT = 24576
    slot_of = lambda t: t % NS
    X0 = NS*SLOT; XSL = 10240; NSX = 3
    QS, KS, VS, OS = 0, 15360, 30720, 56320
    CS = X0 + NSX*XSL; ST = CS + 1024
    LDS = ST + 1024
    sX, sW, sO, sM = 4, 8, 12, 16
    sPX, sPW, sPWO, sPWS = 20, 22, 24, 26
    sPG, sPU, sPD = 28, 30, 32
    sw, sHG, sRB, sT0, sT1, sT2, sOFF, sMB = 34, 35, 36, 37, 38, 39, 40, 41
    sONE, sTILE, sR2, sK, sU = 42, 43, 44, 45, 46
    sTS = 48
    sST = 82
    vL, vG = 252, 253
    e.i(f'{name}:')
    e.i('s_cmp_ge_u32 s2, 256')
    e.i(f's_cbranch_scc1 {name}_done')
    if diag: e.i(f's_memrealtime s[{sTS}:{sTS+1}]')
    e.i(f's_load_dwordx4 s[{sPX}:{sPX+3}], s[0:1], {ARG_X}')
    e.i(f's_load_dwordx2 s[{sPWO}:{sPWO+1}], s[0:1], {ARG_WO}')
    e.i(f's_load_dwordx2 s[{sPWS}:{sPWS+1}], s[0:1], {ARG_WS}')
    if prefetch:
        e.i(f's_load_dwordx4 s[{sPG}:{sPG+3}], s[0:1], {ARG_WG}')
        e.i(f's_load_dwordx2 s[{sPD}:{sPD+1}], s[0:1], {ARG_WD}')
    e.i('v_lshrrev_b32 v1, 6, v0')
    e.i(f'v_and_b32 v{vL}, 63, v0')
    e.i(f'v_readfirstlane_b32 s{sw}, v1')
    if xmap:
        e.i(f's_lshr_b32 s{sT0}, s2, 3')
        e.i(f's_and_b32 s{sHG}, s2, 3')
        e.i(f's_lshl_b32 s{sHG}, s{sHG}, 1')
        e.i(f's_and_b32 s{sT1}, s{sT0}, 1')
        e.i(f's_add_u32 s{sHG}, s{sHG}, s{sT1}')
        e.i(f's_lshr_b32 s{sRB}, s{sT0}, 1')
        e.i(f's_and_b32 s{sT1}, s2, 4')
        e.i(f's_lshl_b32 s{sT1}, s{sT1}, 2')
        e.i(f's_add_u32 s{sRB}, s{sRB}, s{sT1}')
    else:
        e.i(f's_and_b32 s{sHG}, s2, 7')
        e.i(f's_lshr_b32 s{sRB}, s2, 3')
    e.i(f'v_lshrrev_b32 v{vG}, 4, v{vL}')
    if rotate:
        e.i(f's_mul_i32 s{sT0}, s{sRB}, 57')
        e.i(f's_lshr_b32 s{sT0}, s{sT0}, 9')
        e.i(f's_mul_i32 s{sT0}, s{sT0}, 9')
        e.i(f's_sub_u32 s{sR2}, s{sRB}, s{sT0}')
    else:
        e.i(f's_mov_b32 s{sR2}, 0')
    e.i(f's_cmp_eq_u32 s{sw}, 7')
    e.i(f's_cbranch_scc1 {name}_ld1')
    e.i(f's_cmp_eq_u32 s{sw}, 6')
    e.i(f's_cbranch_scc1 {name}_ld0')
    e.i(f's_cmp_eq_u32 s{sw}, 5')
    e.i(f's_cbranch_scc1 {name}_a1')
    e.i(f's_cmp_eq_u32 s{sw}, 4')
    e.i(f's_cbranch_scc1 {name}_a0')
    e.i(f's_bitcmp1_b32 s{sw}, 0')
    e.i(f's_cbranch_scc1 {name}_m0')
    common_n = len(e.ins)
    save = (list(e.vmq), list(e.lgq))
    def stamp(k):
        if diag and stamps: e.i(f's_memtime s[{sST+2*k}:{sST+1+2*k}]')
    def srds():
        e.i('s_waitcnt lgkmcnt(0)')
        srd(e, sX, sPX, sPX+1, 0, MAT_BYTES)
        srd(e, sW, sPW, sPW+1, 0, D*3*D*2)
    def finish(nst):
        if diag:
            e.i('s_mov_b64 exec, -1')
            e.i('s_waitcnt vmcnt(0)')
            e.i(f's_memrealtime s[{sTS+2}:{sTS+3}]')
            e.i('s_waitcnt lgkmcnt(0)')
            srd(e, sM, sPWS, sPWS+1, WS_TS + 0*0x10000, 0x10000)
            e.i(f's_lshl_b32 s{sT0}, s2, 3'); e.i(f's_add_u32 s{sT0}, s{sT0}, s{sw}'); e.i(f's_lshl_b32 s{sT0}, s{sT0}, 4')
            for k in range(4): e.i(f'v_mov_b32 v{k}, s{sTS+k}')
            e.i('v_mov_b32 v4, 0')
            e.i(f'buffer_store_dwordx4 v[0:3], v4, s[{sM}:{sM+3}], s{sT0} offen')
            if stamps:
                e.i(f's_memtime s[{sST+2*nst}:{sST+1+2*nst}]')
                e.i('s_waitcnt lgkmcnt(0)')
                srd(e, sM, sPWS, sPWS+1, WS_TS + 4*0x10000, 0x40000)
                e.i(f's_lshl_b32 s{sT0}, s2, 3'); e.i(f's_add_u32 s{sT0}, s{sT0}, s{sw}'); e.i(f's_lshl_b32 s{sT0}, s{sT0}, 7')
                for k in range(nst + 1):
                    e.i(f'v_mov_b32 v0, s{sST+2*k}')
                    e.i(f'buffer_store_dword v0, v4, s[{sM}:{sM+3}], s{sT0} offen offset:{4*k}')
            e.i('s_waitcnt vmcnt(0)')
        e.i('s_endpgm')

    def copy_piece(base, a, tag):
        e.i(f's_lshl_b32 s{sT0}, s{sw}, 6')
        e.i(f'v_add_u32 v{a}, s{sT0}, v{vL}')
        if base: e.i(f'v_add_u32 v{a}, {base}, v{a}')
        e.i(f'v_and_b32 v{a+1}, 15, v{a}')
        e.i(f'v_lshrrev_b32 v{a}, 4, v{a}')
        e.i(f'v_mul_u32_u24 v{a+2}, 57, v{a}')
        e.i(f'v_lshrrev_b32 v{a+2}, 9, v{a+2}')
        e.i(f'v_mul_u32_u24 v{a+3}, 9, v{a+2}')
        e.i(f'v_sub_u32 v{a}, v{a}, v{a+3}')
        e.i(f'v_lshl_add_u32 v{a+3}, v{a+2}, 4, v{a+1}')
        e.i(f'v_mul_u32_u24 v{a+3}, 144, v{a+3}')
        e.i(f'v_lshl_add_u32 v{a+3}, v{a}, 4, v{a+3}')
        e.i(f'ds_read_b128 v[{a+4}:{a+7}], v{a+3} offset:{OS}', tag)
        e.i(f's_mul_i32 s{sT1}, s{sHG}, 9')
        e.i(f'v_add_u32 v{a}, s{sT1}, v{a}')
        e.i(f's_lshl_b32 s{sT1}, s{sRB}, 2')
        e.i(f'v_add_u32 v{a+2}, s{sT1}, v{a+2}')
        e.i(f'v_mul_u32_u24 v{a+2}, 72, v{a+2}')
        e.i(f'v_add_u32 v{a+2}, v{a+2}, v{a}')
        e.i(f'v_lshl_add_u32 v{a+2}, v{a+2}, 4, v{a+1}')
        e.i(f'v_lshlrev_b32 v{a+2}, 4, v{a+2}')
        e.wait(lg=[tag])
        e.i(f'buffer_store_dwordx4 v[{a+4}:{a+7}], v{a+2}, s[{sO}:{sO+3}], 0 offen {store_mod}')
    def final_copy(extra):
        srd(e, sO, sPWS, sPWS+1, WS_O, MAT_BYTES)
        copy_piece(0, 200, 'oc0')
        if extra:
            e.i(f's_cmp_lg_u32 s{sw}, 0')
            e.i(f's_cbranch_scc1 {name}_nox2')
            copy_piece(512, 208, 'oc1')
            e.i(f'{name}_nox2:')

    ALL = [(mat, c) for mat in range(3) for c in range(5)]
    def compute(kind):
        aux = kind in ('a0', 'a1')
        nq = 1 if aux else 2
        subs = ALL[:8] if kind in ('m0', 'a0') else ALL[8:]
        nsub = len(subs)
        own = 1 if kind == 'm1' else 0
        NB = 3
        vB = lambda q, s: ((s % NB)*nq + q)*4
        acc = lambda k, q: 144 + (k*nq + q)*4
        NA = 8 if not aux else 10; DIST = 6 if not aux else 7
        vA = lambda k: 100 + 4*k
        vRA = [232, 233, 234, 235, 236]
        vONE, vAS, vAQ = 240, 244, 248
        vT0 = 237
        vQK = lambda c: 40 + c; vVA = lambda c: 48 + c
        vSTA, vCSA, vOA, vM = 56, 57, 58, 59
        vP = [254, 255]
        sSUB = 47
        if codepf and kind == 'a0':
            lo, hi = codepf
            e.i(f's_getpc_b64 s[48:49]' if not diag else 's_getpc_b64 s[72:73]')
            p = 48 if not diag else 72
            e.i(f'{name}_pc:')
            e.i(f's_lshr_b32 s{sT0}, s2, 3')
            e.i(f's_lshl_b32 s{sT0}, s{sT0}, 13')
            e.i(f'v_lshlrev_b32 v236, 7, v{vL}')
            e.i(f'v_add_u32 v236, s{sT0}, v236')
            e.i(f'v_min_u32 v236, {hi}-{lo}-4, v236')
            e.i(f's_sub_u32 s{p}, s{p}, {name}_pc-{lo}')
            e.i(f's_subb_u32 s{p+1}, s{p+1}, 0')
            e.i(f'v_mov_b32 v237, s{p+1}')
            e.i(f'v_add_co_u32 v236, vcc, s{p}, v236')
            e.nop(2)
            e.i('v_addc_co_u32 v237, vcc, 0, v237, vcc')
            e.i('global_load_dword v238, v[236:237], off')
        stamp(0)
        if aux:
            if aprio: e.i(f's_setprio {aprio}')
            e.i(f's_mov_b32 s{sTILE}, 0')
        else:
            e.i(f's_lshr_b32 s{sTILE}, s{sw}, 1')
            e.i(f's_lshl_b32 s{sTILE}, s{sTILE}, 1')
            e.i(f's_add_u32 s{sTILE}, s{sTILE}, 1')
        T = 60
        e.i(f'v_and_b32 v{vM}, 15, v{vL}')
        e.i(f's_lshl_b32 s{sT1}, s{sTILE}, 4')
        e.i(f'v_add_u32 v{T+10}, s{sT1}, v{vM}')
        e.i(f'v_lshlrev_b32 v{T+11}, 7, v{T+10}')
        e.i(f'v_add_u32 v{T+11}, {X0}, v{T+11}')
        e.i(f'v_and_b32 v{T+12}, 7, v{vM}')
        for par in range(2):
            e.i(f'v_add_u32 v{T+13}, {4*par}, v{vG}')
            e.i(f'v_xor_b32 v{T+13}, v{T+13}, v{T+12}')
            e.i(f'v_lshl_add_u32 v{vP[par]}, v{T+13}, 4, v{T+11}')
        e.i(f'v_bfe_u32 v{T+1}, v{vL}, 2, 2')
        e.i(f'v_lshl_add_u32 v{T+2}, v{vG}, 3, v{T+1}')
        e.i(f'v_lshlrev_b32 v{T+2}, 8, v{T+2}')
        e.i(f'v_and_b32 v{T+3}, 1, v{vG}')
        e.i(f'v_lshl_or_b32 v{T+3}, v{T+3}, 2, v{T+1}')
        e.i(f'v_lshlrev_b32 v{T+3}, 1, v{T+3}')
        e.i(f'v_and_b32 v{T+4}, 3, v{vL}')
        e.i(f's_lshl_b32 s{sT0}, s{sHG}, 4')
        for c in range(5):
            a_, b_, c_, d_ = T+5, T+6, T+7, T+8
            e.i(f'v_add_u32 v{a_}, {4*c}, v{T+4}')
            e.i(f'v_mul_u32_u24 v{b_}, 52, v{a_}')
            e.i(f'v_lshrrev_b32 v{b_}, 8, v{b_}')
            e.i(f'v_mul_u32_u24 v{c_}, 5, v{b_}')
            e.i(f'v_sub_u32 v{c_}, v{a_}, v{c_}')
            e.i(f'v_mul_u32_u24 v{d_}, 36, v{b_}')
            e.i(f'v_and_b32 v{b_}, 1, v{b_}')
            e.i(f'v_lshlrev_b32 v{b_}, 2, v{b_}')
            e.i(f'v_sub_u32 v{d_}, v{d_}, v{b_}')
            e.i(f'v_lshl_add_u32 v{d_}, v{c_}, 3, v{d_}')
            e.i(f'v_add_u32 v{d_}, s{sT0}, v{d_}')
            e.i(f'v_lshrrev_b32 v{c_}, 4, v{d_}')
            e.i(f'v_xor_b32 v{c_}, v{c_}, v{T+3}')
            e.i(f'v_and_b32 v{d_}, 8, v{d_}')
            e.i(f'v_lshl_add_u32 v{c_}, v{c_}, 4, v{d_}')
            e.i(f'v_add_u32 v{vRA[c]}, v{c_}, v{T+2}')
        for k in range(4): e.i(f'v_mov_b32 v{vONE+k}, 0x3f803f80')
        e.i(f'v_mul_u32_u24 v{T+1}, 48, v{T+10}')
        e.i(f'v_mul_u32_u24 v{T+2}, 80, v{T+10}')
        cl = sorted(set(c for _, c in subs))
        for c in cl:
            e.i(f'v_add_u32 v{T+3}, {4*c}, v{vG}')
            e.i(f'v_mul_u32_u24 v{T+4}, 52, v{T+3}')
            e.i(f'v_lshrrev_b32 v{T+4}, 8, v{T+4}')
            e.i(f'v_mul_u32_u24 v{T+5}, 5, v{T+4}')
            e.i(f'v_sub_u32 v{T+5}, v{T+3}, v{T+5}')
            e.i(f'v_mul_u32_u24 v{T+6}, 3840, v{T+4}')
            e.i(f'v_lshl_add_u32 v{T+6}, v{T+5}, 3, v{T+6}')
            e.i(f'v_add_u32 v{vQK(c)}, v{T+6}, v{T+1}')
            e.i(f'v_mul_u32_u24 v{T+6}, 6400, v{T+4}')
            e.i(f'v_lshl_add_u32 v{T+6}, v{T+5}, 4, v{T+6}')
            e.i(f'v_add_u32 v{vVA(c)}, v{T+6}, v{T+2}')
        e.i(f'v_lshlrev_b32 v{vSTA}, 3, v{T+10}')
        e.i(f'v_add_u32 v{vSTA}, {ST}, v{vSTA}')
        e.i(f'v_lshlrev_b32 v{vCSA}, 4, v{vG}')
        e.i(f'v_add_u32 v{vCSA}, {CS}, v{vCSA}')
        if aux:
            e.i(f'v_and_b32 v{vOA}, 7, v{vL}')
            e.i(f'v_lshlrev_b32 v{vOA}, 4, v{vOA}')
            e.i(f'v_add_u32 v{vOA}, {X0}, v{vOA}')
        e.i('s_waitcnt lgkmcnt(0)')
        stamp(1)
        bt = {}
        def read_b(t):
            xo = ((t >> 1) % NSX)*XSL
            if aux and t % 2 == 0:
                e.i(f'ds_write_b128 v{vOA}, v[{vONE}:{vONE+3}] offset:{xo}')
            bt[t] = [e.i(f'ds_read_b128 v[{vB(q,t)}:{vB(q,t)+3}], v{vP[t & 1]} offset:{xo + q*2048}') for q in range(nq)]
        flist = [(t, k) for t in range(18) for k in range(nsub)]
        rt = {}
        seen = set()
        def rd(i, both=True):
            t, k = flist[i]; slot = slot_of(t)
            if k == 0:
                e.i('s_barrier')
                if t == 0: stamp(2)
                read_b(t)
            ci = subs[k][1]
            if t > 0 and (t, ci) not in seen:
                d = (slot - slot_of(t - 1))*SLOT
                if d > 0: e.i(f'v_add_u32 v{vRA[ci]}, {d}, v{vRA[ci]}')
                else: e.i(f'v_subrev_u32 v{vRA[ci]}, {-d}, v{vRA[ci]}')
            seen.add((t, ci))
            if 'noread' in exp and t > 0:
                rt[i] = []; return
            off = subs[k][0]*8192; ra = vA(i % NA)
            rt[i] = [e.i(f'ds_read_b64_tr_b16 v[{ra}:{ra+1}], v{vRA[ci]} offset:{off}')]
            if both: rd2(i)
        def rd2(i):
            t, k = flist[i]
            if 'noread' in exp and t > 0: return
            ci = subs[k][1]; off = subs[k][0]*8192; ra = vA(i % NA)
            rt[i].append(e.i(f'ds_read_b64_tr_b16 v[{ra+2}:{ra+3}], v{vRA[ci]} offset:{off + 1024}'))
        S0 = 24
        fin = [f'v_and_b32 v{S0+1}, 3, v{vM}', f'v_lshrrev_b32 v{S0+2}, 2, v{vM}',
               f'v_cmp_eq_u32 s[56:57], 1, v{S0+1}', f'v_cmp_eq_u32 s[58:59], 2, v{S0+1}', f'v_cmp_eq_u32 s[60:61], 3, v{S0+1}',
               f'v_cmp_eq_u32 s[62:63], v{S0+2}, v{vG}', 's_nop 0',
               f'v_cndmask_b32 v{S0+3}, v{vAQ}, v{vAQ+1}, s[56:57]', f'v_cndmask_b32 v{S0+3}, v{S0+3}, v{vAQ+2}, s[58:59]',
               f'v_cndmask_b32 v{S0+3}, v{S0+3}, v{vAQ+3}, s[60:61]', f'v_cndmask_b32 v{S0+3}, 0, v{S0+3}, s[62:63]']
        for swp in ('v_permlane16_swap_b32', 'v_permlane32_swap_b32'):
            fin += [f'v_mov_b32 v{S0+4}, v{S0+3}', 's_nop 1', f'{swp} v{S0+3}, v{S0+4}', 's_nop 0', f'v_add_f32 v{S0+3}, v{S0+3}, v{S0+4}']
        fin += [f's_mov_b32 s{sT0}, {f2u(1.0/576)}', f'v_mul_f32 v{S0+5}, s{sT0}, v{vAS}', f'v_mul_f32 v{S0+3}, s{sT0}, v{S0+3}',
                f'v_fma_f32 v{S0+3}, -v{S0+5}, v{S0+5}, v{S0+3}', f'v_max_f32 v{S0+3}, 0, v{S0+3}', f'v_add_f32 v{S0+3}, {f2u(1e-5)}, v{S0+3}',
                f'v_rsq_f32 v{S0+7}, v{S0+3}', f'v_add_u32 v{S0+9}, {128*own}, v{vSTA}', f'v_mul_f32 v{S0+6}, v{S0+5}, v{S0+7}',
                f'ds_write_b64 v{S0+9}, v[{S0+6}:{S0+7}]']
        for k in range(min(DIST, nsub)): rd(k)
        nxt = min(DIST, nsub)
        for i, (t, k) in enumerate(flist):
            if k == 0: e.wait(lg=bt[t])
            e.wait(lg=rt[i])
            ra = vA(i % NA)
            if k == 0 and 'nostats' not in exp:
                b = vB(own, t)
                cs_ = '0' if t == 0 else f'v[{vAS}:{vAS+3}]'
                cq_ = '0' if t == 0 else f'v[{vAQ}:{vAQ+3}]'
                e.i(f'v_mfma_f32_16x16x32_bf16 v[{vAS}:{vAS+3}], v[{vONE}:{vONE+3}], v[{b}:{b+3}], {cs_}')
                e.i(f'v_mfma_f32_16x16x32_bf16 v[{vAQ}:{vAQ+3}], v[{b}:{b+3}], v[{b}:{b+3}], {cq_}')
            for q in range(nq):
                a = acc(k, q)
                cc = '0' if t == 0 else f'v[{a}:{a+3}]'
                e.i(f'v_mfma_f32_16x16x32_bf16 v[{a}:{a+3}], v[{ra}:{ra+3}], v[{vB(q,t)}:{vB(q,t)+3}], {cc}')
                if q == 0:
                    if nxt < len(flist): rd(nxt, both=aux); pend2 = nxt; nxt += 1
                    else: pend2 = None
                elif pend2 is not None: rd2(pend2)
            if t == 17 and k >= 3:
                n = len(fin); m_ = nsub - 3
                for x in fin[(k-3)*n//m_:(k-2)*n//m_]: e.i(x)
        if not aux:
            e.i(f's_cmp_lg_u32 s{sHG}, 0')
            e.i(f's_cbranch_scc1 {name}_noxm_{kind}')
            srd(e, sM, sPWS, sPWS+1, WS_XM, S*4)
            e.i(f's_lshl_b32 s{sT1}, s{sRB}, 6')
            e.i(f's_add_u32 s{sT2}, s{sTILE}, {own}')
            e.i(f's_lshl_b32 s{sT2}, s{sT2}, 4')
            e.i(f's_add_u32 s{sT1}, s{sT1}, s{sT2}')
            e.i(f's_sub_u32 s{sT1}, s{sT1}, 16')
            e.i(f'v_add_u32 v{S0+8}, s{sT1}, v{vM}')
            e.i(f'v_lshlrev_b32 v{S0+8}, 2, v{S0+8}')
            e.i(f'buffer_store_dword v{S0+5}, v{S0+8}, s[{sM}:{sM+3}], 0 offen {small_mod}')
            e.i(f'{name}_noxm_{kind}:')
        stamp(3)
        e.nop(6)
        if aux:
            e.i('s_mov_b32 exec_lo, 0x00010001')
            e.i('s_mov_b32 exec_hi, 0x00010001')
            for k, (mat, c) in enumerate(subs): e.i(f'ds_write_b128 v{vCSA}, v[{acc(k,0)}:{acc(k,0)+3}] offset:{64*(mat*5 + c)}')
            e.i('s_mov_b64 exec, -1')
        e.wait_all(vm=False)
        e.i('s_barrier')
        st = [e.i(f'ds_read_b64 v[{4+2*q}:{5+2*q}], v{vSTA} offset:{128*q}') for q in range(nq)]
        cst = {}
        for k in range(nsub):
            mat, c = subs[k]
            if aux and mat == 0: continue
            cst[k] = e.i(f'ds_read_b128 v[{64+4*k}:{67+4*k}], v{vCSA} offset:{64*(mat*5 + c)}')
        e.wait(lg=st)
        for k in range(nsub):
            mat, c = subs[k]
            if aux and mat == 0: continue
            e.wait(lg=[cst[k]])
            for q in range(nq):
                a = acc(k, q); tmp = 8 + 4*((k*nq + q) & 1)
                for j in (0, 2): e.i(f'v_pk_mul_f32 v[{tmp+j}:{tmp+j+1}], v[{64+4*k+j}:{64+4*k+j+1}], v[{4+2*q}:{5+2*q}] op_sel_hi:[1,0]')
                for j in (0, 2): e.i(f'v_pk_fma_f32 v[{a+j}:{a+j+1}], v[{a+j}:{a+j+1}], v[{4+2*q}:{5+2*q}], v[{tmp+j}:{tmp+j+1}] op_sel:[0,1,0] op_sel_hi:[1,1,1] neg_lo:[0,0,1] neg_hi:[0,0,1]')
                pk = 16 + 2*((k*nq + q) & 1)
                if mat == 2:
                    e.i(f'ds_write_b128 v{vVA(c)}, v[{a}:{a+3}] offset:{VS + 1280*q}')
                else:
                    e.i(f'v_cvt_pk_bf16_f32 v{pk}, v{a}, v{a+1}')
                    e.i(f'v_cvt_pk_bf16_f32 v{pk+1}, v{a+2}, v{a+3}')
                    e.i(f'ds_write_b64 v{vQK(c)}, v[{pk}:{pk+1}] offset:{(QS if mat == 0 else KS) + 768*q}')
        e.wait_all(vm=False)
        e.i('s_barrier')
        stamp(4)
        if not aux: attention(kind)
        stamp(5)
        e.wait_all(vm=False)
        e.i('s_barrier')
        final_copy(extra=(kind == 'm1'))
        finish(6)

    def attention(kind):
        vQ = 0; vK = lambda k: 12 + 10*k
        vS = 92
        vV = lambda b: 100 + 20*b
        vO = 160
        aQ, aK, aV = 180, 181, 182
        e.i(f's_mul_i32 s{sT0}, s{sw}, 3840')
        e.i(f'v_mul_u32_u24 v{aQ}, 48, v{vL}')
        e.i(f'v_add_u32 v{aQ}, s{sT0}, v{aQ}')
        e.i(f'v_add_u32 v{aK}, {2*48}, v{aQ}')
        e.i(f'v_add_u32 v{aQ}, {16*48}, v{aQ}')
        e.i(f'v_mul_u32_u24 v{aV}, 80, v{vL}')
        e.i(f's_mul_i32 s{sT0}, s{sw}, 6400')
        e.i(f's_add_u32 s{sT0}, s{sT0}, {2*80}')
        e.i(f'v_add_u32 v{aV}, s{sT0}, v{aV}')
        def rd10(dst, addr, off, tag):
            return [e.i(f'ds_read_b128 v[{dst}:{dst+3}], v{addr} offset:{off}', (tag, 0)),
                    e.i(f'ds_read_b128 v[{dst+4}:{dst+7}], v{addr} offset:{off+16}', (tag, 1)),
                    e.i(f'ds_read_b64 v[{dst+8}:{dst+9}], v{addr} offset:{off+32}', (tag, 2))]
        tq = rd10(vQ, aQ, QS, 'q')
        tk = {}
        for k in range(4): tk[k] = rd10(vK(k), aK, KS + 96*(7 - k), ('k', k))
        e.i(f's_and_b32 s{sT0}, s{sw}, 1')
        e.i(f's_sub_u32 s{sT1}, s{sT0}, 1')
        e.i(f's_not_b32 s{sT2}, s{sT1}')
        e.i(f's_lshl_b32 s{sT0}, s{sRB}, 6')
        e.i(f'v_add_u32 v183, s{sT0}, v{vL}')
        for k in range(1, 8): e.i(f'v_cmp_le_u32 s[{64+2*k}:{65+2*k}], {2*k}, v183')
        e.wait(lg=tq)
        e.i(f'v_and_b32 v{vQ}, s{sT1}, v{vQ}')
        e.i(f'v_and_b32 v{vQ+9}, s{sT2}, v{vQ+9}')
        def vread(k, b):
            return [e.i(f'ds_read_b128 v[{vV(b)+4*x}:{vV(b)+4*x+3}], v{aV} offset:{VS + 160*(7 - k) + 16*x}', ('v', k, x)) for x in range(5)]
        tv = {}
        for k in range(8):
            if k + 4 < 8: tk[k+4] = rd10(vK(k+4), aK, KS + 96*(7 - k - 4), ('k', k+4))
            if k == 6: tv[0] = vread(0, 0)
            if k == 7: tv[1] = vread(1, 1)
            e.wait(lg=tk[k])
            e.i(f'v_dot2_f32_bf16 v{vS+k}, v{vQ}, v{vK(k)}, 0')
            for x in range(1, 10):
                e.i(f'v_dot2_f32_bf16 v{vS+k}, v{vQ+x}, v{vK(k)+x}, v{vS+k}')
        e.i(f'v_mov_b32 v184, {f2u(-1e30)}')
        e.nop(2)
        for k in range(1, 8):
            e.i(f'v_cndmask_b32 v{vS+k}, v184, v{vS+k}, s[{64+2*k}:{65+2*k}]')
        e.i(f'v_max3_f32 v185, v{vS}, v{vS+1}, v{vS+2}')
        e.i(f'v_max3_f32 v185, v185, v{vS+3}, v{vS+4}')
        e.i(f'v_max3_f32 v185, v185, v{vS+5}, v{vS+6}')
        e.i(f'v_max_f32 v185, v185, v{vS+7}')
        e.i(f's_mov_b32 s{sT0}, {f2u(18**-0.5 * 1.4426950408889634)}')
        e.i(f'v_mul_f32 v185, s{sT0}, v185')
        for k in range(8): e.i(f'v_fma_f32 v{vS+k}, v{vS+k}, s{sT0}, -v185')
        for k in range(8): e.i(f'v_exp_f32 v{vS+k}, v{vS+k}')
        e.nop(1)
        e.i(f'v_add_f32 v186, v{vS}, v{vS+1}')
        e.i(f'v_add_f32 v187, v{vS+2}, v{vS+3}')
        e.i(f'v_add_f32 v188, v{vS+4}, v{vS+5}')
        e.i(f'v_add_f32 v189, v{vS+6}, v{vS+7}')
        e.i('v_add_f32 v186, v186, v187')
        e.i('v_add_f32 v188, v188, v189')
        e.i('v_add_f32 v186, v186, v188')
        e.i('v_rcp_f32 v186, v186')
        e.nop(1)
        for k in range(8): e.i(f'v_mul_f32 v{vS+k}, v{vS+k}, v186')
        for k in range(8):
            if k + 2 < 8: tv[k+2] = vread(k + 2, (k + 2) % 3)
            e.wait(lg=tv[k])
            pp = vS + (k & ~1)
            sel = 'op_sel:[0,1,0] op_sel_hi:[1,1,1]' if k & 1 else 'op_sel_hi:[1,0,1]'
            for x in range(0, 20, 2):
                if k == 0: e.i(f'v_pk_mul_f32 v[{vO+x}:{vO+x+1}], v[{vV(0)+x}:{vV(0)+x+1}], v[{pp}:{pp+1}] op_sel_hi:[1,0]')
                else: e.i(f'v_pk_fma_f32 v[{vO+x}:{vO+x+1}], v[{vV(k % 3)+x}:{vV(k % 3)+x+1}], v[{pp}:{pp+1}], v[{vO+x}:{vO+x+1}] {sel}')
        odd = 1 if kind == 'm0' else 0
        for x in range(9): e.i(f'v_cvt_pk_bf16_f32 v{x}, v{vO+2*(x+odd)}, v{vO+2*(x+odd)+1}')
        e.i(f'v_mul_u32_u24 v184, 144, v{vL}')
        e.i(f's_mul_i32 s{sT0}, s{sw}, 36')
        e.i(f'v_add_u32 v184, s{sT0}, v184')
        for x in range(9): e.i(f'ds_write_b32 v184, v{x} offset:{OS + 4*x}')

    def loader(role):
        if lprio: e.i(f's_setprio {lprio}')
        vD = lambda i: 100 + i
        e.i(f'v_lshrrev_b32 v2, 4, v{vL}')
        e.i(f'v_and_b32 v3, 15, v{vL}')
        e.i('v_mul_u32_u24 v5, 3456, v2')
        e.i(f's_lshl_b32 s{sT2}, s{sHG}, 7')
        e.i(f'v_add_u32 v5, s{sT2}, v5')
        for par in range(2):
            e.i(f'v_or_b32 v4, {4*par}, v2')
            e.i('v_lshlrev_b32 v4, 1, v4')
            e.i('v_xor_b32 v4, v4, v3')
            e.i(f'v_lshl_add_u32 v{6+par}, v4, 4, v5')
        for i in range(24):
            mat, k = i >> 3, i & 7
            c = mat*1152 + k*13824 - (i & 3)*1024
            e.i(f'v_add_u32 v{vD(i)}, {c & 0xffffffff}, v{6 + ((k >> 1) & 1)}')
        e.i(f's_mul_i32 s{sK}, s{sR2}, {2*110592}')
        vXO = lambda i: 60 + i
        e.i(f'v_lshrrev_b32 v2, 3, v{vL}')
        e.i(f'v_and_b32 v3, 7, v{vL}')
        e.i('v_xor_b32 v3, v3, v2')
        e.i(f's_lshl_b32 s{sT0}, s{sRB}, 6')
        e.i(f's_sub_u32 s{sT0}, s{sT0}, 16')
        e.i(f'v_add_u32 v2, s{sT0}, v2')
        for i in range(10):
            e.i(f'v_add_u32 v4, {8*i}, v2')
            e.i('v_max_i32 v4, 0, v4')
            e.i('v_mul_u32_u24 v4, 72, v4')
            e.i(f'v_add_lshl_u32 v{vXO(i)}, v4, v3, 4')
        srds()
        def dma(t):
            slot = slot_of(t)
            if t > 0:
                e.i(f's_add_u32 s{sK}, s{sK}, 110592')
                e.i(f's_cmp_ge_u32 s{sK}, {18*110592}')
                e.i(f's_cselect_b32 s{sOFF}, {18*110592}, 0')
                e.i(f's_sub_u32 s{sK}, s{sK}, s{sOFF}')
            for i in range(12*role, 12*role + 12):
                if 'nodma' in exp and t > 5: continue
                if i % 4 == 0:
                    e.i(f's_mov_b32 m0, {slot*SLOT + i*1024}')
                    e.i('s_nop 0')
                e.i(f'buffer_load_dwordx4 v{vD(i)}, s[{sW}:{sW+3}], s{sK} offen offset:{(i & 3)*1024} {wmod} lds', ('A', t, i))
        def xdma(c):
            e.i(f's_add_u32 s{sU}, s{sR2}, {c}')
            e.i(f's_cmp_ge_u32 s{sU}, 9')
            e.i(f's_cselect_b32 s{sT0}, 9, 0')
            e.i(f's_sub_u32 s{sU}, s{sU}, s{sT0}')
            e.i(f's_lshl_b32 s{sU}, s{sU}, 7')
            for i in range(5*role, 5*role + 5):
                e.i(f's_mov_b32 m0, {X0 + (c % NSX)*XSL + i*1024}')
                e.i('s_nop 0')
                e.i(f'buffer_load_dwordx4 v{vXO(i)}, s[{sX}:{sX+3}], s{sU} offen {xmod} lds', ('X', c, i))
        A = lambda t: [('A', t, i) for i in range(12*role, 12*role + 12)]
        Xc = lambda c: [('X', c, i) for i in range(5*role, 5*role + 5)]
        xdma(0)
        for t in range(LEAD): dma(t)
        if role == 0:
            srd(e, sM, sPWS, sPWS+1, WS_FL, 256*256)
            e.i(f'v_lshlrev_b32 v8, 2, v{vL}')
            e.i('v_mov_b32 v9, 0')
            e.i(f's_lshl_b32 s{sT0}, s2, 8')
            e.i(f'buffer_store_dword v9, v8, s[{sM}:{sM+3}], s{sT0} offen sc1')
        for t in range(0, 18):
            e.wait(vm=A(t) + Xc(t >> 1))
            e.i('s_barrier')
            if t % 2 == 0 and t//2 + 1 < 9: xdma(t//2 + 1)
            if t + LEAD < 18: dma(t + LEAD)
            if prefetch and role == 0 and t in pf_t:
                k = pf_t.index(t)
                mat, part = divmod(k, 3)
                if part == 0:
                    ptr = (sPG, sPU, sPD)[mat]
                    srd(e, sO, ptr, ptr+1, 0, D*F*2)
                    e.i(f's_mul_i32 s{sT2}, s2, {162*128}')
                    e.i(f'v_lshlrev_b32 v9, 7, v{vL}')
                e.i(f'buffer_load_dword v{40+k}, v9, s[{sO}:{sO+3}], s{sT2} offen')
                e.i(f's_add_u32 s{sT2}, s{sT2}, 8192')
            if t == 14 and role == 1:
                srd(e, sM, sPWO, sPWO+1, 0, D*D*2)
                e.i(f'v_lshrrev_b32 v10, 4, v{vL}')
                e.i(f's_lshl_b32 s{sT0}, s2, 2')
                e.i(f'v_add_u32 v10, s{sT0}, v10')
                e.i('v_mul_u32_u24 v11, 1152, v10')
                e.i(f'v_and_b32 v12, 15, v{vL}')
                e.i('v_mul_u32_u24 v12, 72, v12')
                e.i('v_add_u32 v11, v11, v12')
                tw = [e.i(f'buffer_load_dwordx2 v[{14+2*k}:{15+2*k}], v11, s[{sM}:{sM+3}], 0 offen offset:{8*k}') for k in range(9)]
        e.i('s_barrier')
        if role == 1:
            e.wait(vm=tw)
            e.i(f's_mov_b32 s{sONE}, 0x3f803f80')
            e.i('v_mov_b32 v6, 0')
            for k in range(18): e.i(f'v_dot2_f32_bf16 v6, v{14+k}, s{sONE}, v6')
            for r in (8, 4, 2, 1):
                e.nop(3)
                e.i(f'v_add_f32_dpp v6, v6, v6 row_ror:{r} row_mask:0xf bank_mask:0xf')
            e.i(f's_mov_b32 s{sT0}, {f2u(1.0/576)}')
            e.i(f'v_mul_f32 v6, s{sT0}, v6')
            e.i('v_cvt_pk_bf16_f32 v6, v6, v6')
            srd(e, sM, sPWS, sPWS+1, WS_WB, 1152)
            e.i('v_lshlrev_b32 v7, 1, v10')
            e.i('s_mov_b32 exec_lo, 0x00010001')
            e.i('s_mov_b32 exec_hi, 0x00010001')
            e.i(f'buffer_store_short v6, v7, s[{sM}:{sM+3}], 0 offen {small_mod}')
            e.i('s_mov_b64 exec, -1')
        e.i('s_barrier')
        e.i('s_barrier')
        final_copy(extra=False)
        finish(6)

    segs = []
    for lab, fn in ((None, lambda: compute('m1')), ('m0', lambda: compute('m0')), ('a0', lambda: compute('a0')), ('a1', lambda: compute('a1')), ('ld0', lambda: loader(0)), ('ld1', lambda: loader(1))):
        n0 = len(e.ins)
        if lab: e.i(f'{name}_{lab}:')
        e.vmq, e.lgq = list(save[0]), list(save[1])
        fn()
        segs.append(e.ins[:common_n] + e.ins[n0:])
    e.i(f'{name}_done:')
    e.i('s_endpgm')
    probs = sum((check(x, name) for x in segs), [])
    nb = [sum(1 for x in sg if x.kind == 'barrier') for sg in segs]
    assert len(set(nb)) == 1, nb
    txt = '.p2align 8\n.type %s,@function\n' % name + e.text() + kernel_desc(name, 256, 96, 256)
    return txt, LDS, probs

if __name__ == '__main__':
    t, lds, pr = gen_k1()
    open('k1.s', 'w').write('.amdgcn_target "amdgcn-amd-amdhsa--gfx950"\n.text\n' + t)
    print(len(t), lds, len(pr))
```

```python
import os
S = 2048; D = 576; F = 4608
WS_BASE = int(os.environ.get('WS_BASE', '0'), 0)
WS_O  = WS_BASE + 0x000000
WS_HC = WS_BASE + 0x240000
WS_SS = WS_BASE + 0x560000
WS_XM = WS_BASE + 0x4A0000
WS_HM = WS_BASE + 0x4A2000
WS_WB = WS_BASE + 0x4A4000
WS_TS = WS_BASE + 0x4B0000
WS_FL = WS_BASE + 0x5A0000
WS_P  = WS_BASE + 0x600000
WS_HG = WS_BASE + 0x1800000
NPART = 8
MAT_BYTES = 0x240000
ARG_X, ARG_WQKV, ARG_WO, ARG_BX, ARG_WG, ARG_WU, ARG_WD, ARG_OUT, ARG_DBG, ARG_WS = [8*i for i in range(10)]

def srd(e, s, lo, hi, off, size):
    if off:
        e.i(f's_add_u32 s{s}, s{lo}, {off}')
        e.i(f's_addc_u32 s{s+1}, s{hi}, 0')
    else:
        e.i(f's_mov_b32 s{s}, s{lo}')
        e.i(f's_mov_b32 s{s+1}, s{hi}')
    e.i(f's_mov_b32 s{s+2}, {size}')
    e.i(f's_mov_b32 s{s+3}, 0x20000')

def stamp_begin(e, s):
    e.i(f's_memrealtime s[{s}:{s+1}]')

def stamp_end(e, kidx, sbeg, send, ws_lo, ws_hi, ssrd, vtmp, wgid='s2', nw=8):
    e.i(f's_memrealtime s[{send}:{send+1}]')
    e.i('s_waitcnt lgkmcnt(0)')
    srd(e, ssrd, ws_lo, ws_hi, WS_TS + kidx*0x10000, 0x10000)
    return


def code_prefetch(e, name, lo, hi, nsh, sp, va, dst):
    e.i(f's_getpc_b64 s[{sp}:{sp+1}]')
    e.i(f'{name}_pc:')
    e.i(f'v_lshrrev_b32 v{va}, {9 - nsh}, v0')
    e.i(f's_lshr_b32 s3, s2, 3')
    e.i(f's_lshl_b32 s3, s3, {nsh}')
    e.i(f'v_add_lshl_u32 v{va}, s3, v{va}, 7')
    e.i(f'v_min_u32 v{va}, {hi}-{lo}-4, v{va}')
    e.i(f's_sub_u32 s{sp}, s{sp}, {name}_pc-{lo}')
    e.i(f's_subb_u32 s{sp+1}, s{sp+1}, 0')
    e.i(f'v_mov_b32 v{va+1}, s{sp+1}')
    e.i(f'v_add_co_u32 v{va}, vcc, s{sp}, v{va}')
    e.nop(2)
    e.i(f'v_addc_co_u32 v{va+1}, vcc, 0, v{va+1}, vcc')
    return e.i(f'global_load_dword v{dst}, v[{va}:{va+1}], off')
```

```python
from asmlib import *
from common import *
import struct, math
def f2u(x): return struct.unpack('<I', struct.pack('<f', x))[0]

def gen_k1(name='attn_kernel', diag=False, store_mod='', prefetch=False, stamps=False, pf_t=(14, 14, 14), wmod='', xmod='', rotate=True, lprio=0, aprio=0, exp='', small_mod='', xmap=True, LEAD=3, codepf=None):
    e = Emitter(name)
    NS = 5; SLOT = 24576
    slot_of = lambda t: t % NS
    X0 = NS*SLOT; XSL = 10240; NSX = 3
    QS, KS, VS, OS = 0, 15360, 30720, 56320
    CS = X0 + NSX*XSL; ST = CS + 1024
    LDS = ST + 1024
    sX, sW, sO, sM = 4, 8, 12, 16
    sPX, sPW, sPWO, sPWS = 20, 22, 24, 26
    sPG, sPU, sPD = 28, 30, 32
    sw, sHG, sRB, sT0, sT1, sT2, sOFF, sMB = 34, 35, 36, 37, 38, 39, 40, 41
    sONE, sTILE, sR2, sK, sU = 42, 43, 44, 45, 46
    sTS = 48
    sST = 82
    vL, vG = 252, 253
    e.i(f'{name}:')
    e.i('s_cmp_ge_u32 s2, 256')
    e.i(f's_cbranch_scc1 {name}_done')
    if diag: e.i(f's_memrealtime s[{sTS}:{sTS+1}]')
    e.i(f's_load_dwordx4 s[{sPX}:{sPX+3}], s[0:1], {ARG_X}')
    if codepf: code_prefetch(e, name, codepf[0], codepf[1], 5, 72, 236, 238)
    e.i(f's_load_dwordx2 s[{sPWO}:{sPWO+1}], s[0:1], {ARG_WO}')
    e.i(f's_load_dwordx2 s[{sPWS}:{sPWS+1}], s[0:1], {ARG_WS}')
    if prefetch:
        e.i(f's_load_dwordx4 s[{sPG}:{sPG+3}], s[0:1], {ARG_WG}')
        e.i(f's_load_dwordx2 s[{sPD}:{sPD+1}], s[0:1], {ARG_WD}')
    e.i('v_lshrrev_b32 v1, 6, v0')
    e.i(f'v_and_b32 v{vL}, 63, v0')
    e.i(f'v_readfirstlane_b32 s{sw}, v1')
    if xmap:
        e.i(f's_lshr_b32 s{sT0}, s2, 3')
        e.i(f's_and_b32 s{sHG}, s2, 3')
        e.i(f's_lshl_b32 s{sHG}, s{sHG}, 1')
        e.i(f's_and_b32 s{sT1}, s{sT0}, 1')
        e.i(f's_add_u32 s{sHG}, s{sHG}, s{sT1}')
        e.i(f's_lshr_b32 s{sRB}, s{sT0}, 1')
        e.i(f's_and_b32 s{sT1}, s2, 4')
        e.i(f's_lshl_b32 s{sT1}, s{sT1}, 2')
        e.i(f's_add_u32 s{sRB}, s{sRB}, s{sT1}')
    else:
        e.i(f's_and_b32 s{sHG}, s2, 7')
        e.i(f's_lshr_b32 s{sRB}, s2, 3')
    e.i(f'v_lshrrev_b32 v{vG}, 4, v{vL}')
    if rotate:
        e.i(f's_mul_i32 s{sT0}, s{sRB}, 57')
        e.i(f's_lshr_b32 s{sT0}, s{sT0}, 9')
        e.i(f's_mul_i32 s{sT0}, s{sT0}, 9')
        e.i(f's_sub_u32 s{sR2}, s{sRB}, s{sT0}')
    else:
        e.i(f's_mov_b32 s{sR2}, 0')
    e.i(f's_cmp_eq_u32 s{sw}, 7')
    e.i(f's_cbranch_scc1 {name}_ld1')
    e.i(f's_cmp_eq_u32 s{sw}, 6')
    e.i(f's_cbranch_scc1 {name}_ld0')
    e.i(f's_cmp_eq_u32 s{sw}, 5')
    e.i(f's_cbranch_scc1 {name}_a1')
    e.i(f's_cmp_eq_u32 s{sw}, 4')
    e.i(f's_cbranch_scc1 {name}_a0')
    e.i(f's_bitcmp1_b32 s{sw}, 0')
    e.i(f's_cbranch_scc1 {name}_m0')
    common_n = len(e.ins)
    save = (list(e.vmq), list(e.lgq))
    def stamp(k):
        if diag and stamps: e.i(f's_memtime s[{sST+2*k}:{sST+1+2*k}]')
    def srds():
        e.i('s_waitcnt lgkmcnt(0)')
        srd(e, sX, sPX, sPX+1, 0, MAT_BYTES)
        srd(e, sW, sPW, sPW+1, 0, D*3*D*2)
    def finish(nst):
        if diag:
            e.i('s_mov_b64 exec, -1')
            e.i('s_waitcnt vmcnt(0)')
            e.i(f's_memrealtime s[{sTS+2}:{sTS+3}]')
            e.i('s_waitcnt lgkmcnt(0)')
            srd(e, sM, sPWS, sPWS+1, WS_TS + 0*0x10000, 0x10000)
            e.i(f's_lshl_b32 s{sT0}, s2, 3'); e.i(f's_add_u32 s{sT0}, s{sT0}, s{sw}'); e.i(f's_lshl_b32 s{sT0}, s{sT0}, 4')
            for k in range(4): e.i(f'v_mov_b32 v{k}, s{sTS+k}')
            e.i('v_mov_b32 v4, 0')
            e.i(f'buffer_store_dwordx4 v[0:3], v4, s[{sM}:{sM+3}], s{sT0} offen')
            if stamps:
                e.i(f's_memtime s[{sST+2*nst}:{sST+1+2*nst}]')
                e.i('s_waitcnt lgkmcnt(0)')
                srd(e, sM, sPWS, sPWS+1, WS_TS + 4*0x10000, 0x40000)
                e.i(f's_lshl_b32 s{sT0}, s2, 3'); e.i(f's_add_u32 s{sT0}, s{sT0}, s{sw}'); e.i(f's_lshl_b32 s{sT0}, s{sT0}, 7')
                for k in range(nst + 1):
                    e.i(f'v_mov_b32 v0, s{sST+2*k}')
                    e.i(f'buffer_store_dword v0, v4, s[{sM}:{sM+3}], s{sT0} offen offset:{4*k}')
            e.i('s_waitcnt vmcnt(0)')
        e.i('s_endpgm')

    def copy_piece(base, a, tag):
        e.i(f's_lshl_b32 s{sT0}, s{sw}, 6')
        e.i(f'v_add_u32 v{a}, s{sT0}, v{vL}')
        if base: e.i(f'v_add_u32 v{a}, {base}, v{a}')
        e.i(f'v_and_b32 v{a+1}, 15, v{a}')
        e.i(f'v_lshrrev_b32 v{a}, 4, v{a}')
        e.i(f'v_mul_u32_u24 v{a+2}, 57, v{a}')
        e.i(f'v_lshrrev_b32 v{a+2}, 9, v{a+2}')
        e.i(f'v_mul_u32_u24 v{a+3}, 9, v{a+2}')
        e.i(f'v_sub_u32 v{a}, v{a}, v{a+3}')
        e.i(f'v_lshl_add_u32 v{a+3}, v{a+2}, 4, v{a+1}')
        e.i(f'v_mul_u32_u24 v{a+3}, 144, v{a+3}')
        e.i(f'v_lshl_add_u32 v{a+3}, v{a}, 4, v{a+3}')
        e.i(f'ds_read_b128 v[{a+4}:{a+7}], v{a+3} offset:{OS}', tag)
        e.i(f's_mul_i32 s{sT1}, s{sHG}, 9')
        e.i(f'v_add_u32 v{a}, s{sT1}, v{a}')
        e.i(f's_lshl_b32 s{sT1}, s{sRB}, 2')
        e.i(f'v_add_u32 v{a+2}, s{sT1}, v{a+2}')
        e.i(f'v_mul_u32_u24 v{a+2}, 72, v{a+2}')
        e.i(f'v_add_u32 v{a+2}, v{a+2}, v{a}')
        e.i(f'v_lshl_add_u32 v{a+2}, v{a+2}, 4, v{a+1}')
        e.i(f'v_lshlrev_b32 v{a+2}, 4, v{a+2}')
        e.wait(lg=[tag])
        e.i(f'buffer_store_dwordx4 v[{a+4}:{a+7}], v{a+2}, s[{sO}:{sO+3}], 0 offen {store_mod}')
    def final_copy(extra):
        srd(e, sO, sPWS, sPWS+1, WS_O, MAT_BYTES)
        copy_piece(0, 200, 'oc0')
        if extra:
            e.i(f's_cmp_lg_u32 s{sw}, 0')
            e.i(f's_cbranch_scc1 {name}_nox2')
            copy_piece(512, 208, 'oc1')
            e.i(f'{name}_nox2:')

    ALL = [(mat, c) for mat in range(3) for c in range(5)]
    def compute(kind):
        aux = kind in ('a0', 'a1')
        nq = 1 if aux else 2
        subs = ALL[:8] if kind in ('m0', 'a0') else ALL[8:]
        nsub = len(subs)
        own = 1 if kind == 'm1' else 0
        NB = 3
        vB = lambda q, s: ((s % NB)*nq + q)*4
        acc = lambda k, q: 144 + (k*nq + q)*4
        NA = 8 if not aux else 10; DIST = 6 if not aux else 7
        vA = lambda k: 100 + 4*k
        vRA = [232, 233, 234, 235, 236]
        vONE, vAS, vAQ = 240, 244, 248
        vT0 = 237
        vQK = lambda c: 40 + c; vVA = lambda c: 48 + c
        vSTA, vCSA, vOA, vM = 56, 57, 58, 59
        vP = [254, 255]
        sSUB = 47
        stamp(0)
        if aux:
            if aprio: e.i(f's_setprio {aprio}')
            e.i(f's_mov_b32 s{sTILE}, 0')
        else:
            e.i(f's_lshr_b32 s{sTILE}, s{sw}, 1')
            e.i(f's_lshl_b32 s{sTILE}, s{sTILE}, 1')
            e.i(f's_add_u32 s{sTILE}, s{sTILE}, 1')
        T = 60
        e.i(f'v_and_b32 v{vM}, 15, v{vL}')
        e.i(f's_lshl_b32 s{sT1}, s{sTILE}, 4')
        e.i(f'v_add_u32 v{T+10}, s{sT1}, v{vM}')
        e.i(f'v_lshlrev_b32 v{T+11}, 7, v{T+10}')
        e.i(f'v_add_u32 v{T+11}, {X0}, v{T+11}')
        e.i(f'v_and_b32 v{T+12}, 7, v{vM}')
        for par in range(2):
            e.i(f'v_add_u32 v{T+13}, {4*par}, v{vG}')
            e.i(f'v_xor_b32 v{T+13}, v{T+13}, v{T+12}')
            e.i(f'v_lshl_add_u32 v{vP[par]}, v{T+13}, 4, v{T+11}')
        e.i(f'v_bfe_u32 v{T+1}, v{vL}, 2, 2')
        e.i(f'v_lshl_add_u32 v{T+2}, v{vG}, 3, v{T+1}')
        e.i(f'v_lshlrev_b32 v{T+2}, 8, v{T+2}')
        e.i(f'v_and_b32 v{T+3}, 1, v{vG}')
        e.i(f'v_lshl_or_b32 v{T+3}, v{T+3}, 2, v{T+1}')
        e.i(f'v_lshlrev_b32 v{T+3}, 1, v{T+3}')
        e.i(f'v_and_b32 v{T+4}, 3, v{vL}')
        e.i(f's_lshl_b32 s{sT0}, s{sHG}, 4')
        for c in range(5):
            a_, b_, c_, d_ = T+5, T+6, T+7, T+8
            e.i(f'v_add_u32 v{a_}, {4*c}, v{T+4}')
            e.i(f'v_mul_u32_u24 v{b_}, 52, v{a_}')
            e.i(f'v_lshrrev_b32 v{b_}, 8, v{b_}')
            e.i(f'v_mul_u32_u24 v{c_}, 5, v{b_}')
            e.i(f'v_sub_u32 v{c_}, v{a_}, v{c_}')
            e.i(f'v_mul_u32_u24 v{d_}, 36, v{b_}')
            e.i(f'v_and_b32 v{b_}, 1, v{b_}')
            e.i(f'v_lshlrev_b32 v{b_}, 2, v{b_}')
            e.i(f'v_sub_u32 v{d_}, v{d_}, v{b_}')
            e.i(f'v_lshl_add_u32 v{d_}, v{c_}, 3, v{d_}')
            e.i(f'v_add_u32 v{d_}, s{sT0}, v{d_}')
            e.i(f'v_lshrrev_b32 v{c_}, 4, v{d_}')
            e.i(f'v_xor_b32 v{c_}, v{c_}, v{T+3}')
            e.i(f'v_and_b32 v{d_}, 8, v{d_}')
            e.i(f'v_lshl_add_u32 v{c_}, v{c_}, 4, v{d_}')
            e.i(f'v_add_u32 v{vRA[c]}, v{c_}, v{T+2}')
        for k in range(4): e.i(f'v_mov_b32 v{vONE+k}, 0x3f803f80')
        e.i(f'v_mul_u32_u24 v{T+1}, 48, v{T+10}')
        e.i(f'v_mul_u32_u24 v{T+2}, 80, v{T+10}')
        cl = sorted(set(c for _, c in subs))
        for c in cl:
            e.i(f'v_add_u32 v{T+3}, {4*c}, v{vG}')
            e.i(f'v_mul_u32_u24 v{T+4}, 52, v{T+3}')
            e.i(f'v_lshrrev_b32 v{T+4}, 8, v{T+4}')
            e.i(f'v_mul_u32_u24 v{T+5}, 5, v{T+4}')
            e.i(f'v_sub_u32 v{T+5}, v{T+3}, v{T+5}')
            e.i(f'v_mul_u32_u24 v{T+6}, 3840, v{T+4}')
            e.i(f'v_lshl_add_u32 v{T+6}, v{T+5}, 3, v{T+6}')
            e.i(f'v_add_u32 v{vQK(c)}, v{T+6}, v{T+1}')
            e.i(f'v_mul_u32_u24 v{T+6}, 6400, v{T+4}')
            e.i(f'v_lshl_add_u32 v{T+6}, v{T+5}, 4, v{T+6}')
            e.i(f'v_add_u32 v{vVA(c)}, v{T+6}, v{T+2}')
        e.i(f'v_lshlrev_b32 v{vSTA}, 3, v{T+10}')
        e.i(f'v_add_u32 v{vSTA}, {ST}, v{vSTA}')
        e.i(f'v_lshlrev_b32 v{vCSA}, 4, v{vG}')
        e.i(f'v_add_u32 v{vCSA}, {CS}, v{vCSA}')
        if aux:
            e.i(f'v_and_b32 v{vOA}, 7, v{vL}')
            e.i(f'v_lshlrev_b32 v{vOA}, 4, v{vOA}')
            e.i(f'v_add_u32 v{vOA}, {X0}, v{vOA}')
        e.i('s_waitcnt lgkmcnt(0)')
        stamp(1)
        bt = {}
        def read_b(t):
            xo = ((t >> 1) % NSX)*XSL
            if aux and t % 2 == 0:
                e.i(f'ds_write_b128 v{vOA}, v[{vONE}:{vONE+3}] offset:{xo}')
            bt[t] = [e.i(f'ds_read_b128 v[{vB(q,t)}:{vB(q,t)+3}], v{vP[t & 1]} offset:{xo + q*2048}') for q in range(nq)]
        flist = [(t, k) for t in range(18) for k in range(nsub)]
        rt = {}
        seen = set()
        def rd(i, both=True):
            t, k = flist[i]; slot = slot_of(t)
            if k == 0:
                e.i('s_barrier')
                if t == 0: stamp(2)
                read_b(t)
            ci = subs[k][1]
            if t > 0 and (t, ci) not in seen:
                d = (slot - slot_of(t - 1))*SLOT
                if d > 0: e.i(f'v_add_u32 v{vRA[ci]}, {d}, v{vRA[ci]}')
                else: e.i(f'v_subrev_u32 v{vRA[ci]}, {-d}, v{vRA[ci]}')
            seen.add((t, ci))
            if 'noread' in exp and t > 0:
                rt[i] = []; return
            off = subs[k][0]*8192; ra = vA(i % NA)
            rt[i] = [e.i(f'ds_read_b64_tr_b16 v[{ra}:{ra+1}], v{vRA[ci]} offset:{off}')]
            if both: rd2(i)
        def rd2(i):
            t, k = flist[i]
            if 'noread' in exp and t > 0: return
            ci = subs[k][1]; off = subs[k][0]*8192; ra = vA(i % NA)
            rt[i].append(e.i(f'ds_read_b64_tr_b16 v[{ra+2}:{ra+3}], v{vRA[ci]} offset:{off + 1024}'))
        S0 = 24
        fin = [f'v_and_b32 v{S0+1}, 3, v{vM}', f'v_lshrrev_b32 v{S0+2}, 2, v{vM}',
               f'v_cmp_eq_u32 s[56:57], 1, v{S0+1}', f'v_cmp_eq_u32 s[58:59], 2, v{S0+1}', f'v_cmp_eq_u32 s[60:61], 3, v{S0+1}',
               f'v_cmp_eq_u32 s[62:63], v{S0+2}, v{vG}', 's_nop 0',
               f'v_cndmask_b32 v{S0+3}, v{vAQ}, v{vAQ+1}, s[56:57]', f'v_cndmask_b32 v{S0+3}, v{S0+3}, v{vAQ+2}, s[58:59]',
               f'v_cndmask_b32 v{S0+3}, v{S0+3}, v{vAQ+3}, s[60:61]', f'v_cndmask_b32 v{S0+3}, 0, v{S0+3}, s[62:63]']
        for swp in ('v_permlane16_swap_b32', 'v_permlane32_swap_b32'):
            fin += [f'v_mov_b32 v{S0+4}, v{S0+3}', 's_nop 1', f'{swp} v{S0+3}, v{S0+4}', 's_nop 0', f'v_add_f32 v{S0+3}, v{S0+3}, v{S0+4}']
        fin += [f's_mov_b32 s{sT0}, {f2u(1.0/576)}', f'v_mul_f32 v{S0+5}, s{sT0}, v{vAS}', f'v_mul_f32 v{S0+3}, s{sT0}, v{S0+3}',
                f'v_fma_f32 v{S0+3}, -v{S0+5}, v{S0+5}, v{S0+3}', f'v_max_f32 v{S0+3}, 0, v{S0+3}', f'v_add_f32 v{S0+3}, {f2u(1e-5)}, v{S0+3}',
                f'v_rsq_f32 v{S0+7}, v{S0+3}', f'v_add_u32 v{S0+9}, {128*own}, v{vSTA}', f'v_mul_f32 v{S0+6}, v{S0+5}, v{S0+7}',
                f'ds_write_b64 v{S0+9}, v[{S0+6}:{S0+7}]']
        for k in range(min(DIST, nsub)): rd(k)
        nxt = min(DIST, nsub)
        for i, (t, k) in enumerate(flist):
            if k == 0: e.wait(lg=bt[t])
            e.wait(lg=rt[i])
            ra = vA(i % NA)
            if k == 0 and 'nostats' not in exp:
                b = vB(own, t)
                cs_ = '0' if t == 0 else f'v[{vAS}:{vAS+3}]'
                cq_ = '0' if t == 0 else f'v[{vAQ}:{vAQ+3}]'
                e.i(f'v_mfma_f32_16x16x32_bf16 v[{vAS}:{vAS+3}], v[{vONE}:{vONE+3}], v[{b}:{b+3}], {cs_}')
                e.i(f'v_mfma_f32_16x16x32_bf16 v[{vAQ}:{vAQ+3}], v[{b}:{b+3}], v[{b}:{b+3}], {cq_}')
            for q in range(nq):
                a = acc(k, q)
                cc = '0' if t == 0 else f'v[{a}:{a+3}]'
                e.i(f'v_mfma_f32_16x16x32_bf16 v[{a}:{a+3}], v[{ra}:{ra+3}], v[{vB(q,t)}:{vB(q,t)+3}], {cc}')
                if q == 0:
                    if nxt < len(flist): rd(nxt, both=aux); pend2 = nxt; nxt += 1
                    else: pend2 = None
                elif pend2 is not None: rd2(pend2)
            if t == 17 and k >= 3:
                n = len(fin); m_ = nsub - 3
                for x in fin[(k-3)*n//m_:(k-2)*n//m_]: e.i(x)
        if not aux:
            e.i(f's_cmp_lg_u32 s{sHG}, 0')
            e.i(f's_cbranch_scc1 {name}_noxm_{kind}')
            srd(e, sM, sPWS, sPWS+1, WS_XM, S*4)
            e.i(f's_lshl_b32 s{sT1}, s{sRB}, 6')
            e.i(f's_add_u32 s{sT2}, s{sTILE}, {own}')
            e.i(f's_lshl_b32 s{sT2}, s{sT2}, 4')
            e.i(f's_add_u32 s{sT1}, s{sT1}, s{sT2}')
            e.i(f's_sub_u32 s{sT1}, s{sT1}, 16')
            e.i(f'v_add_u32 v{S0+8}, s{sT1}, v{vM}')
            e.i(f'v_lshlrev_b32 v{S0+8}, 2, v{S0+8}')
            e.i(f'buffer_store_dword v{S0+5}, v{S0+8}, s[{sM}:{sM+3}], 0 offen {small_mod}')
            e.i(f'{name}_noxm_{kind}:')
        stamp(3)
        e.nop(6)
        if aux:
            e.i('s_mov_b32 exec_lo, 0x00010001')
            e.i('s_mov_b32 exec_hi, 0x00010001')
            for k, (mat, c) in enumerate(subs): e.i(f'ds_write_b128 v{vCSA}, v[{acc(k,0)}:{acc(k,0)+3}] offset:{64*(mat*5 + c)}')
            e.i('s_mov_b64 exec, -1')
        e.wait_all(vm=False)
        e.i('s_barrier')
        st = [e.i(f'ds_read_b64 v[{4+2*q}:{5+2*q}], v{vSTA} offset:{128*q}') for q in range(nq)]
        cst = {}
        for k in range(nsub):
            mat, c = subs[k]
            if aux and mat == 0: continue
            cst[k] = e.i(f'ds_read_b128 v[{64+4*k}:{67+4*k}], v{vCSA} offset:{64*(mat*5 + c)}')
        e.wait(lg=st)
        for k in range(nsub):
            mat, c = subs[k]
            if aux and mat == 0: continue
            e.wait(lg=[cst[k]])
            for q in range(nq):
                a = acc(k, q); tmp = 8 + 4*((k*nq + q) & 1)
                for j in (0, 2): e.i(f'v_pk_mul_f32 v[{tmp+j}:{tmp+j+1}], v[{64+4*k+j}:{64+4*k+j+1}], v[{4+2*q}:{5+2*q}] op_sel_hi:[1,0]')
                for j in (0, 2): e.i(f'v_pk_fma_f32 v[{a+j}:{a+j+1}], v[{a+j}:{a+j+1}], v[{4+2*q}:{5+2*q}], v[{tmp+j}:{tmp+j+1}] op_sel:[0,1,0] op_sel_hi:[1,1,1] neg_lo:[0,0,1] neg_hi:[0,0,1]')
                pk = 16 + 2*((k*nq + q) & 1)
                if mat == 2:
                    e.i(f'ds_write_b128 v{vVA(c)}, v[{a}:{a+3}] offset:{VS + 1280*q}')
                else:
                    e.i(f'v_cvt_pk_bf16_f32 v{pk}, v{a}, v{a+1}')
                    e.i(f'v_cvt_pk_bf16_f32 v{pk+1}, v{a+2}, v{a+3}')
                    e.i(f'ds_write_b64 v{vQK(c)}, v[{pk}:{pk+1}] offset:{(QS if mat == 0 else KS) + 768*q}')
        e.wait_all(vm=False)
        e.i('s_barrier')
        stamp(4)
        if not aux: attention(kind)
        stamp(5)
        e.wait_all(vm=False)
        e.i('s_barrier')
        final_copy(extra=(kind == 'm1'))
        finish(6)

    def attention(kind):
        vQ = 0; vK = lambda k: 12 + 10*k
        vS = 92
        vV = lambda b: 100 + 20*b
        vO = 160
        aQ, aK, aV = 180, 181, 182
        e.i(f's_mul_i32 s{sT0}, s{sw}, 3840')
        e.i(f'v_mul_u32_u24 v{aQ}, 48, v{vL}')
        e.i(f'v_add_u32 v{aQ}, s{sT0}, v{aQ}')
        e.i(f'v_add_u32 v{aK}, {2*48}, v{aQ}')
        e.i(f'v_add_u32 v{aQ}, {16*48}, v{aQ}')
        e.i(f'v_mul_u32_u24 v{aV}, 80, v{vL}')
        e.i(f's_mul_i32 s{sT0}, s{sw}, 6400')
        e.i(f's_add_u32 s{sT0}, s{sT0}, {2*80}')
        e.i(f'v_add_u32 v{aV}, s{sT0}, v{aV}')
        def rd10(dst, addr, off, tag):
            return [e.i(f'ds_read_b128 v[{dst}:{dst+3}], v{addr} offset:{off}', (tag, 0)),
                    e.i(f'ds_read_b128 v[{dst+4}:{dst+7}], v{addr} offset:{off+16}', (tag, 1)),
                    e.i(f'ds_read_b64 v[{dst+8}:{dst+9}], v{addr} offset:{off+32}', (tag, 2))]
        tq = rd10(vQ, aQ, QS, 'q')
        tk = {}
        for k in range(4): tk[k] = rd10(vK(k), aK, KS + 96*(7 - k), ('k', k))
        e.i(f's_and_b32 s{sT0}, s{sw}, 1')
        e.i(f's_sub_u32 s{sT1}, s{sT0}, 1')
        e.i(f's_not_b32 s{sT2}, s{sT1}')
        e.i(f's_lshl_b32 s{sT0}, s{sRB}, 6')
        e.i(f'v_add_u32 v183, s{sT0}, v{vL}')
        for k in range(1, 8): e.i(f'v_cmp_le_u32 s[{64+2*k}:{65+2*k}], {2*k}, v183')
        e.wait(lg=tq)
        e.i(f'v_and_b32 v{vQ}, s{sT1}, v{vQ}')
        e.i(f'v_and_b32 v{vQ+9}, s{sT2}, v{vQ+9}')
        def vread(k, b):
            return [e.i(f'ds_read_b128 v[{vV(b)+4*x}:{vV(b)+4*x+3}], v{aV} offset:{VS + 160*(7 - k) + 16*x}', ('v', k, x)) for x in range(5)]
        tv = {}
        for k in range(8):
            if k + 4 < 8: tk[k+4] = rd10(vK(k+4), aK, KS + 96*(7 - k - 4), ('k', k+4))
            if k == 6: tv[0] = vread(0, 0)
            if k == 7: tv[1] = vread(1, 1)
            e.wait(lg=tk[k])
            e.i(f'v_dot2_f32_bf16 v{vS+k}, v{vQ}, v{vK(k)}, 0')
            for x in range(1, 10):
                e.i(f'v_dot2_f32_bf16 v{vS+k}, v{vQ+x}, v{vK(k)+x}, v{vS+k}')
        e.i(f'v_mov_b32 v184, {f2u(-1e30)}')
        e.nop(2)
        for k in range(1, 8):
            e.i(f'v_cndmask_b32 v{vS+k}, v184, v{vS+k}, s[{64+2*k}:{65+2*k}]')
        e.i(f'v_max3_f32 v185, v{vS}, v{vS+1}, v{vS+2}')
        e.i(f'v_max3_f32 v185, v185, v{vS+3}, v{vS+4}')
        e.i(f'v_max3_f32 v185, v185, v{vS+5}, v{vS+6}')
        e.i(f'v_max_f32 v185, v185, v{vS+7}')
        e.i(f's_mov_b32 s{sT0}, {f2u(18**-0.5 * 1.4426950408889634)}')
        e.i(f'v_mul_f32 v185, s{sT0}, v185')
        for k in range(8): e.i(f'v_fma_f32 v{vS+k}, v{vS+k}, s{sT0}, -v185')
        for k in range(8): e.i(f'v_exp_f32 v{vS+k}, v{vS+k}')
        e.nop(1)
        e.i(f'v_add_f32 v186, v{vS}, v{vS+1}')
        e.i(f'v_add_f32 v187, v{vS+2}, v{vS+3}')
        e.i(f'v_add_f32 v188, v{vS+4}, v{vS+5}')
        e.i(f'v_add_f32 v189, v{vS+6}, v{vS+7}')
        e.i('v_add_f32 v186, v186, v187')
        e.i('v_add_f32 v188, v188, v189')
        e.i('v_add_f32 v186, v186, v188')
        e.i('v_rcp_f32 v186, v186')
        e.nop(1)
        for k in range(8): e.i(f'v_mul_f32 v{vS+k}, v{vS+k}, v186')
        for k in range(8):
            if k + 2 < 8: tv[k+2] = vread(k + 2, (k + 2) % 3)
            e.wait(lg=tv[k])
            pp = vS + (k & ~1)
            sel = 'op_sel:[0,1,0] op_sel_hi:[1,1,1]' if k & 1 else 'op_sel_hi:[1,0,1]'
            for x in range(0, 20, 2):
                if k == 0: e.i(f'v_pk_mul_f32 v[{vO+x}:{vO+x+1}], v[{vV(0)+x}:{vV(0)+x+1}], v[{pp}:{pp+1}] op_sel_hi:[1,0]')
                else: e.i(f'v_pk_fma_f32 v[{vO+x}:{vO+x+1}], v[{vV(k % 3)+x}:{vV(k % 3)+x+1}], v[{pp}:{pp+1}], v[{vO+x}:{vO+x+1}] {sel}')
        odd = 1 if kind == 'm0' else 0
        for x in range(9): e.i(f'v_cvt_pk_bf16_f32 v{x}, v{vO+2*(x+odd)}, v{vO+2*(x+odd)+1}')
        e.i(f'v_mul_u32_u24 v184, 144, v{vL}')
        e.i(f's_mul_i32 s{sT0}, s{sw}, 36')
        e.i(f'v_add_u32 v184, s{sT0}, v184')
        for x in range(9): e.i(f'ds_write_b32 v184, v{x} offset:{OS + 4*x}')

    def loader(role):
        if lprio: e.i(f's_setprio {lprio}')
        vD = lambda i: 100 + i
        e.i(f'v_lshrrev_b32 v2, 4, v{vL}')
        e.i(f'v_and_b32 v3, 15, v{vL}')
        e.i('v_mul_u32_u24 v5, 3456, v2')
        e.i(f's_lshl_b32 s{sT2}, s{sHG}, 7')
        e.i(f'v_add_u32 v5, s{sT2}, v5')
        for par in range(2):
            e.i(f'v_or_b32 v4, {4*par}, v2')
            e.i('v_lshlrev_b32 v4, 1, v4')
            e.i('v_xor_b32 v4, v4, v3')
            e.i(f'v_lshl_add_u32 v{6+par}, v4, 4, v5')
        for i in range(24):
            mat, k = i >> 3, i & 7
            c = mat*1152 + k*13824 - (i & 3)*1024
            e.i(f'v_add_u32 v{vD(i)}, {c & 0xffffffff}, v{6 + ((k >> 1) & 1)}')
        e.i(f's_mul_i32 s{sK}, s{sR2}, {2*110592}')
        vXO = lambda i: 60 + i
        e.i(f'v_lshrrev_b32 v2, 3, v{vL}')
        e.i(f'v_and_b32 v3, 7, v{vL}')
        e.i('v_xor_b32 v3, v3, v2')
        e.i(f's_lshl_b32 s{sT0}, s{sRB}, 6')
        e.i(f's_sub_u32 s{sT0}, s{sT0}, 16')
        e.i(f'v_add_u32 v2, s{sT0}, v2')
        for i in range(10):
            e.i(f'v_add_u32 v4, {8*i}, v2')
            e.i('v_max_i32 v4, 0, v4')
            e.i('v_mul_u32_u24 v4, 72, v4')
            e.i(f'v_add_lshl_u32 v{vXO(i)}, v4, v3, 4')
        srds()
        def dma(t):
            slot = slot_of(t)
            if t > 0:
                e.i(f's_add_u32 s{sK}, s{sK}, 110592')
                e.i(f's_cmp_ge_u32 s{sK}, {18*110592}')
                e.i(f's_cselect_b32 s{sOFF}, {18*110592}, 0')
                e.i(f's_sub_u32 s{sK}, s{sK}, s{sOFF}')
            for i in range(12*role, 12*role + 12):
                if 'nodma' in exp and t > 5: continue
                if i % 4 == 0:
                    e.i(f's_mov_b32 m0, {slot*SLOT + i*1024}')
                    e.i('s_nop 0')
                e.i(f'buffer_load_dwordx4 v{vD(i)}, s[{sW}:{sW+3}], s{sK} offen offset:{(i & 3)*1024} {wmod} lds', ('A', t, i))
        def xdma(c):
            e.i(f's_add_u32 s{sU}, s{sR2}, {c}')
            e.i(f's_cmp_ge_u32 s{sU}, 9')
            e.i(f's_cselect_b32 s{sT0}, 9, 0')
            e.i(f's_sub_u32 s{sU}, s{sU}, s{sT0}')
            e.i(f's_lshl_b32 s{sU}, s{sU}, 7')
            for i in range(5*role, 5*role + 5):
                e.i(f's_mov_b32 m0, {X0 + (c % NSX)*XSL + i*1024}')
                e.i('s_nop 0')
                e.i(f'buffer_load_dwordx4 v{vXO(i)}, s[{sX}:{sX+3}], s{sU} offen {xmod} lds', ('X', c, i))
        A = lambda t: [('A', t, i) for i in range(12*role, 12*role + 12)]
        Xc = lambda c: [('X', c, i) for i in range(5*role, 5*role + 5)]
        xdma(0)
        for t in range(LEAD): dma(t)
        if role == 0:
            srd(e, sM, sPWS, sPWS+1, WS_FL, 256*256)
            e.i(f'v_lshlrev_b32 v8, 2, v{vL}')
            e.i('v_mov_b32 v9, 0')
            e.i(f's_lshl_b32 s{sT0}, s2, 8')
            e.i(f'buffer_store_dword v9, v8, s[{sM}:{sM+3}], s{sT0} offen sc1')
        for t in range(0, 18):
            e.wait(vm=A(t) + Xc(t >> 1))
            e.i('s_barrier')
            if t % 2 == 0 and t//2 + 1 < 9: xdma(t//2 + 1)
            if t + LEAD < 18: dma(t + LEAD)
            if prefetch and role == 0 and t in pf_t:
                k = pf_t.index(t)
                mat, part = divmod(k, 3)
                if part == 0:
                    ptr = (sPG, sPU, sPD)[mat]
                    srd(e, sO, ptr, ptr+1, 0, D*F*2)
                    e.i(f's_mul_i32 s{sT2}, s2, {162*128}')
                    e.i(f'v_lshlrev_b32 v9, 7, v{vL}')
                e.i(f'buffer_load_dword v{40+k}, v9, s[{sO}:{sO+3}], s{sT2} offen')
                e.i(f's_add_u32 s{sT2}, s{sT2}, 8192')
            if t == 14 and role == 1:
                srd(e, sM, sPWO, sPWO+1, 0, D*D*2)
                e.i(f'v_lshrrev_b32 v10, 4, v{vL}')
                e.i(f's_lshl_b32 s{sT0}, s2, 2')
                e.i(f'v_add_u32 v10, s{sT0}, v10')
                e.i('v_mul_u32_u24 v11, 1152, v10')
                e.i(f'v_and_b32 v12, 15, v{vL}')
                e.i('v_mul_u32_u24 v12, 72, v12')
                e.i('v_add_u32 v11, v11, v12')
                tw = [e.i(f'buffer_load_dwordx2 v[{14+2*k}:{15+2*k}], v11, s[{sM}:{sM+3}], 0 offen offset:{8*k}') for k in range(9)]
        e.i('s_barrier')
        if role == 1:
            e.wait(vm=tw)
            e.i(f's_mov_b32 s{sONE}, 0x3f803f80')
            e.i('v_mov_b32 v6, 0')
            for k in range(18): e.i(f'v_dot2_f32_bf16 v6, v{14+k}, s{sONE}, v6')
            for r in (8, 4, 2, 1):
                e.nop(3)
                e.i(f'v_add_f32_dpp v6, v6, v6 row_ror:{r} row_mask:0xf bank_mask:0xf')
            e.i(f's_mov_b32 s{sT0}, {f2u(1.0/576)}')
            e.i(f'v_mul_f32 v6, s{sT0}, v6')
            e.i('v_cvt_pk_bf16_f32 v6, v6, v6')
            srd(e, sM, sPWS, sPWS+1, WS_WB, 1152)
            e.i('v_lshlrev_b32 v7, 1, v10')
            e.i('s_mov_b32 exec_lo, 0x00010001')
            e.i('s_mov_b32 exec_hi, 0x00010001')
            e.i(f'buffer_store_short v6, v7, s[{sM}:{sM+3}], 0 offen {small_mod}')
            e.i('s_mov_b64 exec, -1')
        e.i('s_barrier')
        e.i('s_barrier')
        final_copy(extra=False)
        finish(6)

    segs = []
    for lab, fn in ((None, lambda: compute('m1')), ('m0', lambda: compute('m0')), ('a0', lambda: compute('a0')), ('a1', lambda: compute('a1')), ('ld0', lambda: loader(0)), ('ld1', lambda: loader(1))):
        n0 = len(e.ins)
        if lab: e.i(f'{name}_{lab}:')
        e.vmq, e.lgq = list(save[0]), list(save[1])
        fn()
        segs.append(e.ins[:common_n] + e.ins[n0:])
    e.i(f'{name}_done:')
    e.i('s_endpgm')
    probs = sum((check(x, name) for x in segs), [])
    nb = [sum(1 for x in sg if x.kind == 'barrier') for sg in segs]
    assert len(set(nb)) == 1, nb
    txt = '.p2align 8\n.type %s,@function\n' % name + e.text() + kernel_desc(name, 256, 96, 256)
    return txt, LDS, probs

if __name__ == '__main__':
    t, lds, pr = gen_k1()
    open('k1.s', 'w').write('.amdgcn_target "amdgcn-amd-amdhsa--gfx950"\n.text\n' + t)
    print(len(t), lds, len(pr))
```

```python
from asmlib import *
from common import *
import struct, math
def f2u(x): return struct.unpack('<I', struct.pack('<f', x))[0]

def gen_k1(name='attn_kernel', diag=False, store_mod='', prefetch=False, stamps=False, pf_t=(14, 14, 14), wmod='', xmod='', rotate=True, lprio=0, aprio=0, exp='', small_mod='', xmap=True, LEAD=3, codepf=None):
    e = Emitter(name)
    NS = 5; SLOT = 24576
    slot_of = lambda t: t % NS
    X0 = NS*SLOT; XSL = 10240; NSX = 3
    QS, KS, VS, OS = 0, 15360, 30720, 56320
    CS = X0 + NSX*XSL; ST = CS + 1024
    LDS = ST + 1024
    sX, sW, sO, sM = 4, 8, 12, 16
    sPX, sPW, sPWO, sPWS = 20, 22, 24, 26
    sPG, sPU, sPD = 28, 30, 32
    sw, sHG, sRB, sT0, sT1, sT2, sOFF, sMB = 34, 35, 36, 37, 38, 39, 40, 41
    sONE, sTILE, sR2, sK, sU = 42, 43, 44, 45, 46
    sTS = 48
    sST = 82
    vL, vG = 252, 253
    e.i(f'{name}:')
    e.i('s_cmp_ge_u32 s2, 256')
    e.i(f's_cbranch_scc1 {name}_done')
    if diag: e.i(f's_memrealtime s[{sTS}:{sTS+1}]')
    e.i(f's_load_dwordx4 s[{sPX}:{sPX+3}], s[0:1], {ARG_X}')
    if codepf: code_prefetch(e, name, codepf[0], codepf[1], 5, 72, 236, 238)
    e.i(f's_load_dwordx2 s[{sPWO}:{sPWO+1}], s[0:1], {ARG_WO}')
    e.i(f's_load_dwordx2 s[{sPWS}:{sPWS+1}], s[0:1], {ARG_WS}')
    if prefetch:
        e.i(f's_load_dwordx4 s[{sPG}:{sPG+3}], s[0:1], {ARG_WG}')
        e.i(f's_load_dwordx2 s[{sPD}:{sPD+1}], s[0:1], {ARG_WD}')
    e.i('v_lshrrev_b32 v1, 6, v0')
    e.i(f'v_and_b32 v{vL}, 63, v0')
    e.i(f'v_readfirstlane_b32 s{sw}, v1')
    if xmap:
        e.i(f's_lshr_b32 s{sT0}, s2, 3')
        e.i(f's_and_b32 s{sHG}, s2, 3')
        e.i(f's_lshl_b32 s{sHG}, s{sHG}, 1')
        e.i(f's_and_b32 s{sT1}, s{sT0}, 1')
        e.i(f's_add_u32 s{sHG}, s{sHG}, s{sT1}')
        e.i(f's_lshr_b32 s{sRB}, s{sT0}, 1')
        e.i(f's_and_b32 s{sT1}, s2, 4')
        e.i(f's_lshl_b32 s{sT1}, s{sT1}, 2')
        e.i(f's_add_u32 s{sRB}, s{sRB}, s{sT1}')
    else:
        e.i(f's_and_b32 s{sHG}, s2, 7')
        e.i(f's_lshr_b32 s{sRB}, s2, 3')
    e.i(f'v_lshrrev_b32 v{vG}, 4, v{vL}')
    if rotate:
        e.i(f's_mul_i32 s{sT0}, s{sRB}, 57')
        e.i(f's_lshr_b32 s{sT0}, s{sT0}, 9')
        e.i(f's_mul_i32 s{sT0}, s{sT0}, 9')
        e.i(f's_sub_u32 s{sR2}, s{sRB}, s{sT0}')
    else:
        e.i(f's_mov_b32 s{sR2}, 0')
    e.i(f's_cmp_eq_u32 s{sw}, 7')
    e.i(f's_cbranch_scc1 {name}_ld1')
    e.i(f's_cmp_eq_u32 s{sw}, 6')
    e.i(f's_cbranch_scc1 {name}_ld0')
    e.i(f's_cmp_eq_u32 s{sw}, 5')
    e.i(f's_cbranch_scc1 {name}_a1')
    e.i(f's_cmp_eq_u32 s{sw}, 4')
    e.i(f's_cbranch_scc1 {name}_a0')
    e.i(f's_bitcmp1_b32 s{sw}, 0')
    e.i(f's_cbranch_scc1 {name}_m0')
    common_n = len(e.ins)
    save = (list(e.vmq), list(e.lgq))
    def stamp(k):
        if diag and stamps: e.i(f's_memtime s[{sST+2*k}:{sST+1+2*k}]')
    def srds():
        e.i('s_waitcnt lgkmcnt(0)')
        srd(e, sX, sPX, sPX+1, 0, MAT_BYTES)
        srd(e, sW, sPW, sPW+1, 0, D*3*D*2)
    def finish(nst):
        if diag:
            e.i('s_mov_b64 exec, -1')
            e.i('s_waitcnt vmcnt(0)')
            e.i(f's_memrealtime s[{sTS+2}:{sTS+3}]')
            e.i('s_waitcnt lgkmcnt(0)')
            srd(e, sM, sPWS, sPWS+1, WS_TS + 0*0x10000, 0x10000)
            e.i(f's_lshl_b32 s{sT0}, s2, 3'); e.i(f's_add_u32 s{sT0}, s{sT0}, s{sw}'); e.i(f's_lshl_b32 s{sT0}, s{sT0}, 4')
            for k in range(4): e.i(f'v_mov_b32 v{k}, s{sTS+k}')
            e.i('v_mov_b32 v4, 0')
            e.i(f'buffer_store_dwordx4 v[0:3], v4, s[{sM}:{sM+3}], s{sT0} offen')
            if stamps:
                e.i(f's_memtime s[{sST+2*nst}:{sST+1+2*nst}]')
                e.i('s_waitcnt lgkmcnt(0)')
                srd(e, sM, sPWS, sPWS+1, WS_TS + 4*0x10000, 0x40000)
                e.i(f's_lshl_b32 s{sT0}, s2, 3'); e.i(f's_add_u32 s{sT0}, s{sT0}, s{sw}'); e.i(f's_lshl_b32 s{sT0}, s{sT0}, 7')
                for k in range(nst + 1):
                    e.i(f'v_mov_b32 v0, s{sST+2*k}')
                    e.i(f'buffer_store_dword v0, v4, s[{sM}:{sM+3}], s{sT0} offen offset:{4*k}')
            e.i('s_waitcnt vmcnt(0)')
        e.i('s_endpgm')

    def copy_piece(base, a, tag):
        e.i(f's_lshl_b32 s{sT0}, s{sw}, 6')
        e.i(f'v_add_u32 v{a}, s{sT0}, v{vL}')
        if base: e.i(f'v_add_u32 v{a}, {base}, v{a}')
        e.i(f'v_and_b32 v{a+1}, 15, v{a}')
        e.i(f'v_lshrrev_b32 v{a}, 4, v{a}')
        e.i(f'v_mul_u32_u24 v{a+2}, 57, v{a}')
        e.i(f'v_lshrrev_b32 v{a+2}, 9, v{a+2}')
        e.i(f'v_mul_u32_u24 v{a+3}, 9, v{a+2}')
        e.i(f'v_sub_u32 v{a}, v{a}, v{a+3}')
        e.i(f'v_lshl_add_u32 v{a+3}, v{a+2}, 4, v{a+1}')
        e.i(f'v_mul_u32_u24 v{a+3}, 144, v{a+3}')
        e.i(f'v_lshl_add_u32 v{a+3}, v{a}, 4, v{a+3}')
        e.i(f'ds_read_b128 v[{a+4}:{a+7}], v{a+3} offset:{OS}', tag)
        e.i(f's_mul_i32 s{sT1}, s{sHG}, 9')
        e.i(f'v_add_u32 v{a}, s{sT1}, v{a}')
        e.i(f's_lshl_b32 s{sT1}, s{sRB}, 2')
        e.i(f'v_add_u32 v{a+2}, s{sT1}, v{a+2}')
        e.i(f'v_mul_u32_u24 v{a+2}, 72, v{a+2}')
        e.i(f'v_add_u32 v{a+2}, v{a+2}, v{a}')
        e.i(f'v_lshl_add_u32 v{a+2}, v{a+2}, 4, v{a+1}')
        e.i(f'v_lshlrev_b32 v{a+2}, 4, v{a+2}')
        e.wait(lg=[tag])
        e.i(f'buffer_store_dwordx4 v[{a+4}:{a+7}], v{a+2}, s[{sO}:{sO+3}], 0 offen {store_mod}')
    def final_copy(extra):
        srd(e, sO, sPWS, sPWS+1, WS_O, MAT_BYTES)
        copy_piece(0, 200, 'oc0')
        if extra:
            e.i(f's_cmp_lg_u32 s{sw}, 0')
            e.i(f's_cbranch_scc1 {name}_nox2')
            copy_piece(512, 208, 'oc1')
            e.i(f'{name}_nox2:')

    ALL = [(mat, c) for mat in range(3) for c in range(5)]
    def compute(kind):
        aux = kind in ('a0', 'a1')
        nq = 1 if aux else 2
        subs = ALL[:8] if kind in ('m0', 'a0') else ALL[8:]
        nsub = len(subs)
        own = 1 if kind == 'm1' else 0
        NB = 3
        vB = lambda q, s: ((s % NB)*nq + q)*4
        acc = lambda k, q: 144 + (k*nq + q)*4
        NA = 8 if not aux else 10; DIST = 6 if not aux else 7
        vA = lambda k: 100 + 4*k
        vRA = [232, 233, 234, 235, 236]
        vONE, vAS, vAQ = 240, 244, 248
        vT0 = 237
        vQK = lambda c: 40 + c; vVA = lambda c: 48 + c
        vSTA, vCSA, vOA, vM = 56, 57, 58, 59
        vP = [254, 255]
        sSUB = 47
        stamp(0)
        if aux:
            if aprio: e.i(f's_setprio {aprio}')
            e.i(f's_mov_b32 s{sTILE}, 0')
        else:
            e.i(f's_lshr_b32 s{sTILE}, s{sw}, 1')
            e.i(f's_lshl_b32 s{sTILE}, s{sTILE}, 1')
            e.i(f's_add_u32 s{sTILE}, s{sTILE}, 1')
        T = 60
        e.i(f'v_and_b32 v{vM}, 15, v{vL}')
        e.i(f's_lshl_b32 s{sT1}, s{sTILE}, 4')
        e.i(f'v_add_u32 v{T+10}, s{sT1}, v{vM}')
        e.i(f'v_lshlrev_b32 v{T+11}, 7, v{T+10}')
        e.i(f'v_add_u32 v{T+11}, {X0}, v{T+11}')
        e.i(f'v_and_b32 v{T+12}, 7, v{vM}')
        for par in range(2):
            e.i(f'v_add_u32 v{T+13}, {4*par}, v{vG}')
            e.i(f'v_xor_b32 v{T+13}, v{T+13}, v{T+12}')
            e.i(f'v_lshl_add_u32 v{vP[par]}, v{T+13}, 4, v{T+11}')
        e.i(f'v_bfe_u32 v{T+1}, v{vL}, 2, 2')
        e.i(f'v_lshl_add_u32 v{T+2}, v{vG}, 3, v{T+1}')
        e.i(f'v_lshlrev_b32 v{T+2}, 8, v{T+2}')
        e.i(f'v_and_b32 v{T+3}, 1, v{vG}')
        e.i(f'v_lshl_or_b32 v{T+3}, v{T+3}, 2, v{T+1}')
        e.i(f'v_lshlrev_b32 v{T+3}, 1, v{T+3}')
        e.i(f'v_and_b32 v{T+4}, 3, v{vL}')
        e.i(f's_lshl_b32 s{sT0}, s{sHG}, 4')
        for c in range(5):
            a_, b_, c_, d_ = T+5, T+6, T+7, T+8
            e.i(f'v_add_u32 v{a_}, {4*c}, v{T+4}')
            e.i(f'v_mul_u32_u24 v{b_}, 52, v{a_}')
            e.i(f'v_lshrrev_b32 v{b_}, 8, v{b_}')
            e.i(f'v_mul_u32_u24 v{c_}, 5, v{b_}')
            e.i(f'v_sub_u32 v{c_}, v{a_}, v{c_}')
            e.i(f'v_mul_u32_u24 v{d_}, 36, v{b_}')
            e.i(f'v_and_b32 v{b_}, 1, v{b_}')
            e.i(f'v_lshlrev_b32 v{b_}, 2, v{b_}')
            e.i(f'v_sub_u32 v{d_}, v{d_}, v{b_}')
            e.i(f'v_lshl_add_u32 v{d_}, v{c_}, 3, v{d_}')
            e.i(f'v_add_u32 v{d_}, s{sT0}, v{d_}')
            e.i(f'v_lshrrev_b32 v{c_}, 4, v{d_}')
            e.i(f'v_xor_b32 v{c_}, v{c_}, v{T+3}')
            e.i(f'v_and_b32 v{d_}, 8, v{d_}')
            e.i(f'v_lshl_add_u32 v{c_}, v{c_}, 4, v{d_}')
            e.i(f'v_add_u32 v{vRA[c]}, v{c_}, v{T+2}')
        for k in range(4): e.i(f'v_mov_b32 v{vONE+k}, 0x3f803f80')
        e.i(f'v_mul_u32_u24 v{T+1}, 48, v{T+10}')
        e.i(f'v_mul_u32_u24 v{T+2}, 80, v{T+10}')
        cl = sorted(set(c for _, c in subs))
        for c in cl:
            e.i(f'v_add_u32 v{T+3}, {4*c}, v{vG}')
            e.i(f'v_mul_u32_u24 v{T+4}, 52, v{T+3}')
            e.i(f'v_lshrrev_b32 v{T+4}, 8, v{T+4}')
            e.i(f'v_mul_u32_u24 v{T+5}, 5, v{T+4}')
            e.i(f'v_sub_u32 v{T+5}, v{T+3}, v{T+5}')
            e.i(f'v_mul_u32_u24 v{T+6}, 3840, v{T+4}')
            e.i(f'v_lshl_add_u32 v{T+6}, v{T+5}, 3, v{T+6}')
            e.i(f'v_add_u32 v{vQK(c)}, v{T+6}, v{T+1}')
            e.i(f'v_mul_u32_u24 v{T+6}, 6400, v{T+4}')
            e.i(f'v_lshl_add_u32 v{T+6}, v{T+5}, 4, v{T+6}')
            e.i(f'v_add_u32 v{vVA(c)}, v{T+6}, v{T+2}')
        e.i(f'v_lshlrev_b32 v{vSTA}, 3, v{T+10}')
        e.i(f'v_add_u32 v{vSTA}, {ST}, v{vSTA}')
        e.i(f'v_lshlrev_b32 v{vCSA}, 4, v{vG}')
        e.i(f'v_add_u32 v{vCSA}, {CS}, v{vCSA}')
        if aux:
            e.i(f'v_and_b32 v{vOA}, 7, v{vL}')
            e.i(f'v_lshlrev_b32 v{vOA}, 4, v{vOA}')
            e.i(f'v_add_u32 v{vOA}, {X0}, v{vOA}')
        e.i('s_waitcnt lgkmcnt(0)')
        stamp(1)
        bt = {}
        def read_b(t):
            xo = ((t >> 1) % NSX)*XSL
            if aux and t % 2 == 0:
                e.i(f'ds_write_b128 v{vOA}, v[{vONE}:{vONE+3}] offset:{xo}')
            bt[t] = [e.i(f'ds_read_b128 v[{vB(q,t)}:{vB(q,t)+3}], v{vP[t & 1]} offset:{xo + q*2048}') for q in range(nq)]
        flist = [(t, k) for t in range(18) for k in range(nsub)]
        rt = {}
        seen = set()
        def rd(i, both=True):
            t, k = flist[i]; slot = slot_of(t)
            if k == 0:
                e.i('s_barrier')
                if t == 0: stamp(2)
                read_b(t)
            ci = subs[k][1]
            if t > 0 and (t, ci) not in seen:
                d = (slot - slot_of(t - 1))*SLOT
                if d > 0: e.i(f'v_add_u32 v{vRA[ci]}, {d}, v{vRA[ci]}')
                else: e.i(f'v_subrev_u32 v{vRA[ci]}, {-d}, v{vRA[ci]}')
            seen.add((t, ci))
            if 'noread' in exp and t > 0:
                rt[i] = []; return
            off = subs[k][0]*8192; ra = vA(i % NA)
            rt[i] = [e.i(f'ds_read_b64_tr_b16 v[{ra}:{ra+1}], v{vRA[ci]} offset:{off}')]
            if both: rd2(i)
        def rd2(i):
            t, k = flist[i]
            if 'noread' in exp and t > 0: return
            ci = subs[k][1]; off = subs[k][0]*8192; ra = vA(i % NA)
            rt[i].append(e.i(f'ds_read_b64_tr_b16 v[{ra+2}:{ra+3}], v{vRA[ci]} offset:{off + 1024}'))
        S0 = 24
        fin = [f'v_and_b32 v{S0+1}, 3, v{vM}', f'v_lshrrev_b32 v{S0+2}, 2, v{vM}',
               f'v_cmp_eq_u32 s[56:57], 1, v{S0+1}', f'v_cmp_eq_u32 s[58:59], 2, v{S0+1}', f'v_cmp_eq_u32 s[60:61], 3, v{S0+1}',
               f'v_cmp_eq_u32 s[62:63], v{S0+2}, v{vG}', 's_nop 0',
               f'v_cndmask_b32 v{S0+3}, v{vAQ}, v{vAQ+1}, s[56:57]', f'v_cndmask_b32 v{S0+3}, v{S0+3}, v{vAQ+2}, s[58:59]',
               f'v_cndmask_b32 v{S0+3}, v{S0+3}, v{vAQ+3}, s[60:61]', f'v_cndmask_b32 v{S0+3}, 0, v{S0+3}, s[62:63]']
        for swp in ('v_permlane16_swap_b32', 'v_permlane32_swap_b32'):
            fin += [f'v_mov_b32 v{S0+4}, v{S0+3}', 's_nop 1', f'{swp} v{S0+3}, v{S0+4}', 's_nop 0', f'v_add_f32 v{S0+3}, v{S0+3}, v{S0+4}']
        fin += [f's_mov_b32 s{sT0}, {f2u(1.0/576)}', f'v_mul_f32 v{S0+5}, s{sT0}, v{vAS}', f'v_mul_f32 v{S0+3}, s{sT0}, v{S0+3}',
                f'v_fma_f32 v{S0+3}, -v{S0+5}, v{S0+5}, v{S0+3}', f'v_max_f32 v{S0+3}, 0, v{S0+3}', f'v_add_f32 v{S0+3}, {f2u(1e-5)}, v{S0+3}',
                f'v_rsq_f32 v{S0+7}, v{S0+3}', f'v_add_u32 v{S0+9}, {128*own}, v{vSTA}', f'v_mul_f32 v{S0+6}, v{S0+5}, v{S0+7}',
                f'ds_write_b64 v{S0+9}, v[{S0+6}:{S0+7}]']
        for k in range(min(DIST, nsub)): rd(k)
        nxt = min(DIST, nsub)
        for i, (t, k) in enumerate(flist):
            if k == 0: e.wait(lg=bt[t])
            e.wait(lg=rt[i])
            ra = vA(i % NA)
            if k == 0 and 'nostats' not in exp:
                b = vB(own, t)
                cs_ = '0' if t == 0 else f'v[{vAS}:{vAS+3}]'
                cq_ = '0' if t == 0 else f'v[{vAQ}:{vAQ+3}]'
                e.i(f'v_mfma_f32_16x16x32_bf16 v[{vAS}:{vAS+3}], v[{vONE}:{vONE+3}], v[{b}:{b+3}], {cs_}')
                e.i(f'v_mfma_f32_16x16x32_bf16 v[{vAQ}:{vAQ+3}], v[{b}:{b+3}], v[{b}:{b+3}], {cq_}')
            for q in range(nq):
                a = acc(k, q)
                cc = '0' if t == 0 else f'v[{a}:{a+3}]'
                e.i(f'v_mfma_f32_16x16x32_bf16 v[{a}:{a+3}], v[{ra}:{ra+3}], v[{vB(q,t)}:{vB(q,t)+3}], {cc}')
                if q == 0:
                    if nxt < len(flist): rd(nxt, both=aux); pend2 = nxt; nxt += 1
                    else: pend2 = None
                elif pend2 is not None: rd2(pend2)
            if t == 17 and k >= 3:
                n = len(fin); m_ = nsub - 3
                for x in fin[(k-3)*n//m_:(k-2)*n//m_]: e.i(x)
        if not aux:
            e.i(f's_cmp_lg_u32 s{sHG}, 0')
            e.i(f's_cbranch_scc1 {name}_noxm_{kind}')
            srd(e, sM, sPWS, sPWS+1, WS_XM, S*4)
            e.i(f's_lshl_b32 s{sT1}, s{sRB}, 6')
            e.i(f's_add_u32 s{sT2}, s{sTILE}, {own}')
            e.i(f's_lshl_b32 s{sT2}, s{sT2}, 4')
            e.i(f's_add_u32 s{sT1}, s{sT1}, s{sT2}')
            e.i(f's_sub_u32 s{sT1}, s{sT1}, 16')
            e.i(f'v_add_u32 v{S0+8}, s{sT1}, v{vM}')
            e.i(f'v_lshlrev_b32 v{S0+8}, 2, v{S0+8}')
            e.i(f'buffer_store_dword v{S0+5}, v{S0+8}, s[{sM}:{sM+3}], 0 offen {small_mod}')
            e.i(f'{name}_noxm_{kind}:')
        stamp(3)
        e.nop(6)
        if aux:
            e.i('s_mov_b32 exec_lo, 0x00010001')
            e.i('s_mov_b32 exec_hi, 0x00010001')
            for k, (mat, c) in enumerate(subs): e.i(f'ds_write_b128 v{vCSA}, v[{acc(k,0)}:{acc(k,0)+3}] offset:{64*(mat*5 + c)}')
            e.i('s_mov_b64 exec, -1')
        e.wait_all(vm=False)
        e.i('s_barrier')
        st = [e.i(f'ds_read_b64 v[{4+2*q}:{5+2*q}], v{vSTA} offset:{128*q}') for q in range(nq)]
        cst = {}
        for k in range(nsub):
            mat, c = subs[k]
            if aux and mat == 0: continue
            cst[k] = e.i(f'ds_read_b128 v[{64+4*k}:{67+4*k}], v{vCSA} offset:{64*(mat*5 + c)}')
        e.wait(lg=st)
        for k in range(nsub):
            mat, c = subs[k]
            if aux and mat == 0: continue
            e.wait(lg=[cst[k]])
            for q in range(nq):
                a = acc(k, q); tmp = 8 + 4*((k*nq + q) & 1)
                for j in (0, 2): e.i(f'v_pk_mul_f32 v[{tmp+j}:{tmp+j+1}], v[{64+4*k+j}:{64+4*k+j+1}], v[{4+2*q}:{5+2*q}] op_sel_hi:[1,0]')
                for j in (0, 2): e.i(f'v_pk_fma_f32 v[{a+j}:{a+j+1}], v[{a+j}:{a+j+1}], v[{4+2*q}:{5+2*q}], v[{tmp+j}:{tmp+j+1}] op_sel:[0,1,0] op_sel_hi:[1,1,1] neg_lo:[0,0,1] neg_hi:[0,0,1]')
                pk = 16 + 2*((k*nq + q) & 1)
                if mat == 2:
                    e.i(f'ds_write_b128 v{vVA(c)}, v[{a}:{a+3}] offset:{VS + 1280*q}')
                else:
                    e.i(f'v_cvt_pk_bf16_f32 v{pk}, v{a}, v{a+1}')
                    e.i(f'v_cvt_pk_bf16_f32 v{pk+1}, v{a+2}, v{a+3}')
                    e.i(f'ds_write_b64 v{vQK(c)}, v[{pk}:{pk+1}] offset:{(QS if mat == 0 else KS) + 768*q}')
        e.wait_all(vm=False)
        e.i('s_barrier')
        stamp(4)
        if not aux: attention(kind)
        stamp(5)
        e.wait_all(vm=False)
        e.i('s_barrier')
        final_copy(extra=(kind == 'm1'))
        finish(6)

    def attention(kind):
        vQ = 0; vK = lambda k: 12 + 10*k
        vS = 92
        vV = lambda b: 100 + 20*b
        vO = 160
        aQ, aK, aV = 180, 181, 182
        e.i(f's_mul_i32 s{sT0}, s{sw}, 3840')
        e.i(f'v_mul_u32_u24 v{aQ}, 48, v{vL}')
        e.i(f'v_add_u32 v{aQ}, s{sT0}, v{aQ}')
        e.i(f'v_add_u32 v{aK}, {2*48}, v{aQ}')
        e.i(f'v_add_u32 v{aQ}, {16*48}, v{aQ}')
        e.i(f'v_mul_u32_u24 v{aV}, 80, v{vL}')
        e.i(f's_mul_i32 s{sT0}, s{sw}, 6400')
        e.i(f's_add_u32 s{sT0}, s{sT0}, {2*80}')
        e.i(f'v_add_u32 v{aV}, s{sT0}, v{aV}')
        def rd10(dst, addr, off, tag):
            return [e.i(f'ds_read_b128 v[{dst}:{dst+3}], v{addr} offset:{off}', (tag, 0)),
                    e.i(f'ds_read_b128 v[{dst+4}:{dst+7}], v{addr} offset:{off+16}', (tag, 1)),
                    e.i(f'ds_read_b64 v[{dst+8}:{dst+9}], v{addr} offset:{off+32}', (tag, 2))]
        tq = rd10(vQ, aQ, QS, 'q')
        tk = {}
        for k in range(4): tk[k] = rd10(vK(k), aK, KS + 96*(7 - k), ('k', k))
        e.i(f's_and_b32 s{sT0}, s{sw}, 1')
        e.i(f's_sub_u32 s{sT1}, s{sT0}, 1')
        e.i(f's_not_b32 s{sT2}, s{sT1}')
        e.i(f's_lshl_b32 s{sT0}, s{sRB}, 6')
        e.i(f'v_add_u32 v183, s{sT0}, v{vL}')
        for k in range(1, 8): e.i(f'v_cmp_le_u32 s[{64+2*k}:{65+2*k}], {2*k}, v183')
        e.wait(lg=tq)
        e.i(f'v_and_b32 v{vQ}, s{sT1}, v{vQ}')
        e.i(f'v_and_b32 v{vQ+9}, s{sT2}, v{vQ+9}')
        def vread(k, b):
            return [e.i(f'ds_read_b128 v[{vV(b)+4*x}:{vV(b)+4*x+3}], v{aV} offset:{VS + 160*(7 - k) + 16*x}', ('v', k, x)) for x in range(5)]
        tv = {}
        for k in range(8):
            if k + 4 < 8: tk[k+4] = rd10(vK(k+4), aK, KS + 96*(7 - k - 4), ('k', k+4))
            if k == 6: tv[0] = vread(0, 0)
            if k == 7: tv[1] = vread(1, 1)
            e.wait(lg=tk[k])
            e.i(f'v_dot2_f32_bf16 v{vS+k}, v{vQ}, v{vK(k)}, 0')
            for x in range(1, 10):
                e.i(f'v_dot2_f32_bf16 v{vS+k}, v{vQ+x}, v{vK(k)+x}, v{vS+k}')
        e.i(f'v_mov_b32 v184, {f2u(-1e30)}')
        e.nop(2)
        for k in range(1, 8):
            e.i(f'v_cndmask_b32 v{vS+k}, v184, v{vS+k}, s[{64+2*k}:{65+2*k}]')
        e.i(f'v_max3_f32 v185, v{vS}, v{vS+1}, v{vS+2}')
        e.i(f'v_max3_f32 v185, v185, v{vS+3}, v{vS+4}')
        e.i(f'v_max3_f32 v185, v185, v{vS+5}, v{vS+6}')
        e.i(f'v_max_f32 v185, v185, v{vS+7}')
        e.i(f's_mov_b32 s{sT0}, {f2u(18**-0.5 * 1.4426950408889634)}')
        e.i(f'v_mul_f32 v185, s{sT0}, v185')
        for k in range(8): e.i(f'v_fma_f32 v{vS+k}, v{vS+k}, s{sT0}, -v185')
        for k in range(8): e.i(f'v_exp_f32 v{vS+k}, v{vS+k}')
        e.nop(1)
        e.i(f'v_add_f32 v186, v{vS}, v{vS+1}')
        e.i(f'v_add_f32 v187, v{vS+2}, v{vS+3}')
        e.i(f'v_add_f32 v188, v{vS+4}, v{vS+5}')
        e.i(f'v_add_f32 v189, v{vS+6}, v{vS+7}')
        e.i('v_add_f32 v186, v186, v187')
        e.i('v_add_f32 v188, v188, v189')
        e.i('v_add_f32 v186, v186, v188')
        e.i('v_rcp_f32 v186, v186')
        e.nop(1)
        for k in range(8): e.i(f'v_mul_f32 v{vS+k}, v{vS+k}, v186')
        for k in range(8):
            if k + 2 < 8: tv[k+2] = vread(k + 2, (k + 2) % 3)
            e.wait(lg=tv[k])
            pp = vS + (k & ~1)
            sel = 'op_sel:[0,1,0] op_sel_hi:[1,1,1]' if k & 1 else 'op_sel_hi:[1,0,1]'
            for x in range(0, 20, 2):
                if k == 0: e.i(f'v_pk_mul_f32 v[{vO+x}:{vO+x+1}], v[{vV(0)+x}:{vV(0)+x+1}], v[{pp}:{pp+1}] op_sel_hi:[1,0]')
                else: e.i(f'v_pk_fma_f32 v[{vO+x}:{vO+x+1}], v[{vV(k % 3)+x}:{vV(k % 3)+x+1}], v[{pp}:{pp+1}], v[{vO+x}:{vO+x+1}] {sel}')
        odd = 1 if kind == 'm0' else 0
        for x in range(9): e.i(f'v_cvt_pk_bf16_f32 v{x}, v{vO+2*(x+odd)}, v{vO+2*(x+odd)+1}')
        e.i(f'v_mul_u32_u24 v184, 144, v{vL}')
        e.i(f's_mul_i32 s{sT0}, s{sw}, 36')
        e.i(f'v_add_u32 v184, s{sT0}, v184')
        for x in range(9): e.i(f'ds_write_b32 v184, v{x} offset:{OS + 4*x}')

    def loader(role):
        if lprio: e.i(f's_setprio {lprio}')
        vD = lambda i: 100 + i
        e.i(f'v_lshrrev_b32 v2, 4, v{vL}')
        e.i(f'v_and_b32 v3, 15, v{vL}')
        e.i('v_mul_u32_u24 v5, 3456, v2')
        e.i(f's_lshl_b32 s{sT2}, s{sHG}, 7')
        e.i(f'v_add_u32 v5, s{sT2}, v5')
        for par in range(2):
            e.i(f'v_or_b32 v4, {4*par}, v2')
            e.i('v_lshlrev_b32 v4, 1, v4')
            e.i('v_xor_b32 v4, v4, v3')
            e.i(f'v_lshl_add_u32 v{6+par}, v4, 4, v5')
        for i in range(24):
            mat, k = i >> 3, i & 7
            c = mat*1152 + k*13824 - (i & 3)*1024
            e.i(f'v_add_u32 v{vD(i)}, {c & 0xffffffff}, v{6 + ((k >> 1) & 1)}')
        e.i(f's_mul_i32 s{sK}, s{sR2}, {2*110592}')
        vXO = lambda i: 60 + i
        e.i(f'v_lshrrev_b32 v2, 3, v{vL}')
        e.i(f'v_and_b32 v3, 7, v{vL}')
        e.i('v_xor_b32 v3, v3, v2')
        e.i(f's_lshl_b32 s{sT0}, s{sRB}, 6')
        e.i(f's_sub_u32 s{sT0}, s{sT0}, 16')
        e.i(f'v_add_u32 v2, s{sT0}, v2')
        for i in range(10):
            e.i(f'v_add_u32 v4, {8*i}, v2')
            e.i('v_max_i32 v4, 0, v4')
            e.i('v_mul_u32_u24 v4, 72, v4')
            e.i(f'v_add_lshl_u32 v{vXO(i)}, v4, v3, 4')
        srds()
        def dma(t):
            slot = slot_of(t)
            if t > 0:
                e.i(f's_add_u32 s{sK}, s{sK}, 110592')
                e.i(f's_cmp_ge_u32 s{sK}, {18*110592}')
                e.i(f's_cselect_b32 s{sOFF}, {18*110592}, 0')
                e.i(f's_sub_u32 s{sK}, s{sK}, s{sOFF}')
            for i in range(12*role, 12*role + 12):
                if 'nodma' in exp and t > 5: continue
                if i % 4 == 0:
                    e.i(f's_mov_b32 m0, {slot*SLOT + i*1024}')
                    e.i('s_nop 0')
                e.i(f'buffer_load_dwordx4 v{vD(i)}, s[{sW}:{sW+3}], s{sK} offen offset:{(i & 3)*1024} {wmod} lds', ('A', t, i))
        def xdma(c):
            e.i(f's_add_u32 s{sU}, s{sR2}, {c}')
            e.i(f's_cmp_ge_u32 s{sU}, 9')
            e.i(f's_cselect_b32 s{sT0}, 9, 0')
            e.i(f's_sub_u32 s{sU}, s{sU}, s{sT0}')
            e.i(f's_lshl_b32 s{sU}, s{sU}, 7')
            for i in range(5*role, 5*role + 5):
                e.i(f's_mov_b32 m0, {X0 + (c % NSX)*XSL + i*1024}')
                e.i('s_nop 0')
                e.i(f'buffer_load_dwordx4 v{vXO(i)}, s[{sX}:{sX+3}], s{sU} offen {xmod} lds', ('X', c, i))
        A = lambda t: [('A', t, i) for i in range(12*role, 12*role + 12)]
        Xc = lambda c: [('X', c, i) for i in range(5*role, 5*role + 5)]
        xdma(0)
        for t in range(LEAD): dma(t)
        if role == 0:
            srd(e, sM, sPWS, sPWS+1, WS_FL, 256*512)
            e.i(f'v_lshlrev_b32 v8, 3, v{vL}')
            e.i('v_mov_b32 v12, 0')
            e.i('v_mov_b32 v13, 0')
            e.i(f's_lshl_b32 s{sT0}, s2, 9')
            e.i(f'buffer_store_dwordx2 v[12:13], v8, s[{sM}:{sM+3}], s{sT0} offen sc1')
        for t in range(0, 18):
            e.wait(vm=A(t) + Xc(t >> 1))
            e.i('s_barrier')
            if t % 2 == 0 and t//2 + 1 < 9: xdma(t//2 + 1)
            if t + LEAD < 18: dma(t + LEAD)
            if prefetch and role == 0 and t in pf_t:
                k = pf_t.index(t)
                mat, part = divmod(k, 3)
                if part == 0:
                    ptr = (sPG, sPU, sPD)[mat]
                    srd(e, sO, ptr, ptr+1, 0, D*F*2)
                    e.i(f's_mul_i32 s{sT2}, s2, {162*128}')
                    e.i(f'v_lshlrev_b32 v9, 7, v{vL}')
                e.i(f'buffer_load_dword v{40+k}, v9, s[{sO}:{sO+3}], s{sT2} offen')
                e.i(f's_add_u32 s{sT2}, s{sT2}, 8192')
            if t == 14 and role == 1:
                srd(e, sM, sPWO, sPWO+1, 0, D*D*2)
                e.i(f'v_lshrrev_b32 v10, 4, v{vL}')
                e.i(f's_lshl_b32 s{sT0}, s2, 2')
                e.i(f'v_add_u32 v10, s{sT0}, v10')
                e.i('v_mul_u32_u24 v11, 1152, v10')
                e.i(f'v_and_b32 v12, 15, v{vL}')
                e.i('v_mul_u32_u24 v12, 72, v12')
                e.i('v_add_u32 v11, v11, v12')
                tw = [e.i(f'buffer_load_dwordx2 v[{14+2*k}:{15+2*k}], v11, s[{sM}:{sM+3}], 0 offen offset:{8*k}') for k in range(9)]
        e.i('s_barrier')
        if role == 1:
            e.wait(vm=tw)
            e.i(f's_mov_b32 s{sONE}, 0x3f803f80')
            e.i('v_mov_b32 v6, 0')
            for k in range(18): e.i(f'v_dot2_f32_bf16 v6, v{14+k}, s{sONE}, v6')
            for r in (8, 4, 2, 1):
                e.nop(3)
                e.i(f'v_add_f32_dpp v6, v6, v6 row_ror:{r} row_mask:0xf bank_mask:0xf')
            e.i(f's_mov_b32 s{sT0}, {f2u(1.0/576)}')
            e.i(f'v_mul_f32 v6, s{sT0}, v6')
            e.i('v_cvt_pk_bf16_f32 v6, v6, v6')
            srd(e, sM, sPWS, sPWS+1, WS_WB, 1152)
            e.i('v_lshlrev_b32 v7, 1, v10')
            e.i('s_mov_b32 exec_lo, 0x00010001')
            e.i('s_mov_b32 exec_hi, 0x00010001')
            e.i(f'buffer_store_short v6, v7, s[{sM}:{sM+3}], 0 offen {small_mod}')
            e.i('s_mov_b64 exec, -1')
        e.i('s_barrier')
        e.i('s_barrier')
        final_copy(extra=False)
        finish(6)

    segs = []
    for lab, fn in ((None, lambda: compute('m1')), ('m0', lambda: compute('m0')), ('a0', lambda: compute('a0')), ('a1', lambda: compute('a1')), ('ld0', lambda: loader(0)), ('ld1', lambda: loader(1))):
        n0 = len(e.ins)
        if lab: e.i(f'{name}_{lab}:')
        e.vmq, e.lgq = list(save[0]), list(save[1])
        fn()
        segs.append(e.ins[:common_n] + e.ins[n0:])
    e.i(f'{name}_done:')
    e.i('s_endpgm')
    probs = sum((check(x, name) for x in segs), [])
    nb = [sum(1 for x in sg if x.kind == 'barrier') for sg in segs]
    assert len(set(nb)) == 1, nb
    txt = '.p2align 8\n.type %s,@function\n' % name + e.text() + kernel_desc(name, 256, 96, 256)
    return txt, LDS, probs

if __name__ == '__main__':
    t, lds, pr = gen_k1()
    open('k1.s', 'w').write('.amdgcn_target "amdgcn-amd-amdhsa--gfx950"\n.text\n' + t)
    print(len(t), lds, len(pr))
```

```python
from asmlib import *
from common import *
import struct

C0 = -2.0 * 1.4426950408889634 * 0.7978845608028654
C1 = C0 * 0.044715
def f2u(x): return struct.unpack('<I', struct.pack('<f', x))[0]

def gen_k3(name='ffn_kernel', NS=8, BG=2, P=None, PB=None, NSB=8, diag=False, store_mod='', stamps=(), exp='',
           NA1=4, NA2=4, dmaslot=0, wevery=1, ppf=None, wmod='', bmod='', pgrp=1, fs=(76, 94), warm=None, p2order=2, warm0=False, tail_mod=None, hgh_mod='sc1', hgb=False, pfmod='', codepf=None, fuse=False, out_mod=''):
    if P is None: P = NS - BG
    if tail_mod is None: tail_mod = store_mod
    if PB is None: PB = NSB - BG
    e = Emitter(name)
    RING = 0
    HH = NS * 8192
    LDS = HH + 73728
    assert NS in (8, 11)
    SC = 7 if NS == 11 else 0
    slot_of = lambda t: (t + SC) % NS
    HI = 65536
    vB = lambda q, s: (s*2 + q)*4
    acc1 = lambda st, mat, cc, q: 144 + 32*st + ((mat*2 + cc)*2 + q)*4
    acc2 = lambda k, cc, q: (176 if k == 0 else 144) + (cc*2 + q)*4
    accT = lambda q: 232 + 4*q
    vB2 = lambda q, s: 72 + (s*2 + q)*4
    ASET1 = [208, 212, 216, 220, 248 ]
    ASET2 = [208, 212, 216, 220, 136, 140, 144, 148]
    vPK = lambda q: 224 + 4*q
    vT = [232, 233, 234, 235]
    vCA = [236, 239]; vCB = [237, 240]; vV = [238, 241]
    vRA = [242, 243]
    vRH = 244
    vD1, vD1H = 245, 246
    vHW = 247
    vBS = 252
    vHWF = 253
    vR2 = [242, 243, 248, 249]
    vRAh = [248, 249]; vRHh = 250; vR2h = [240, 241, 251, 252]
    vL16 = 254
    vX = 255
    NA1 = min(NA1, 5); assert NA2 <= 6
    sWG, sWD, sHC, sP, sWU = 4, 8, 12, 16, 52
    sPG, sPU, sPD, sPWS = 20, 22, 24, 26
    sw, sWB, sRB, sJ, sROT = 28, 29, 30, 31, 32
    sFF, sFH = 33, 34
    sOFF, sBOFF, sT0 = 35, 36, 37
    sFB = 38
    sPO = 39
    sKS = 40
    sMQ, sFHW = 41, 42
    sT1, sT2, sO2 = 43, 44, 45
    sFR = [46, 47, 48, 49]
    sFR2 = [84, 85, 86, 87]; sFRH, sFRH2 = 88, 89
    sNB = [90, 91]; sNT = 92; sHG, sHG2 = 93, 94
    sFL = 64; sHGS = 68
    sTS = 56
    sST = 72
    e.i(f'{name}:')
    e.i('s_cmp_ge_u32 s2, 256')
    e.i(f's_cbranch_scc1 {name}_done')
    if diag: e.i(f's_memrealtime s[{sTS}:{sTS+1}]')
    e.i(f's_load_dwordx4 s[{sPG}:{sPG+3}], s[0:1], {ARG_WG}')
    if codepf: code_prefetch(e, name, codepf[0], codepf[1], 4, 60, 40, 42)
    e.i(f's_load_dwordx2 s[{sPD}:{sPD+1}], s[0:1], {ARG_WD}')
    e.i(f's_load_dwordx2 s[{sPWS}:{sPWS+1}], s[0:1], {ARG_WS}')
    e.i('v_lshrrev_b32 v1, 6, v0')
    e.i(f'v_and_b32 v{vX}, 63, v0')
    e.i(f'v_readfirstlane_b32 s{sw}, v1')
    e.i(f's_and_b32 s{sJ}, s2, 7')
    e.i(f's_lshl_b32 s{sJ}, s{sJ}, 1')
    e.i(f's_lshr_b32 s{sT0}, s2, 3')
    e.i(f's_and_b32 s{sT0}, s{sT0}, 1')
    e.i(f's_add_u32 s{sJ}, s{sJ}, s{sT0}')
    e.i(f's_lshr_b32 s{sRB}, s2, 4')
    e.i(f's_and_b32 s{sROT}, s{sRB}, 3')
    e.i(f's_mul_i32 s{sT1}, s{sJ}, 288')
    e.i(f's_and_b32 s{sT0}, s{sJ}, 1')
    e.i(f's_lshl_b32 s{sT2}, s{sT0}, 5')
    e.i(f's_add_u32 s{sFF}, s{sT1}, s{sT2}')
    e.i(f's_xor_b32 s{sT0}, s{sT0}, 1')
    e.i(f's_lshl_b32 s{sT2}, s{sT0}, 8')
    e.i(f's_add_u32 s{sFH}, s{sT1}, s{sT2}')
    e.i(f's_and_b32 s{sMQ}, s{sw}, 3')
    e.i(f's_lshl_b32 s{sWB}, s{sMQ}, 10')
    e.i(f's_lshr_b32 s{sFHW}, s{sw}, 2')
    for wi in range(4):
        e.i(f's_add_u32 s{sT0}, s{sROT}, {wi}')
        e.i(f's_and_b32 s{sT0}, s{sT0}, 3')
        e.i(f's_lshl_b32 s{sT0}, s{sT0}, 6')
        e.i(f's_add_u32 s{sT0}, s{sT0}, s{sFF}')
        e.i(f's_mul_i32 s{sFR[wi]}, s{sT0}, 1152')
    e.i(f's_mul_i32 s{sFRH}, s{sFH}, 1152')
    e.i(f's_xor_b32 s{sT1}, s{sJ}, 1')
    e.i(f's_mul_i32 s{sT2}, s{sT1}, 288')
    e.i(f's_and_b32 s{sT1}, s{sT1}, 1')
    e.i(f's_lshl_b32 s{sKS}, s{sT1}, 5')
    e.i(f's_add_u32 s{sKS}, s{sKS}, s{sT2}')
    e.i(f's_xor_b32 s{sT1}, s{sT1}, 1')
    e.i(f's_lshl_b32 s{sT1}, s{sT1}, 8')
    e.i(f's_add_u32 s{sT1}, s{sT1}, s{sT2}')
    e.i(f's_mul_i32 s{sFRH2}, s{sT1}, 1152')
    for wi in range(4):
        e.i(f's_add_u32 s{sT0}, s{sROT}, {wi}')
        e.i(f's_and_b32 s{sT0}, s{sT0}, 3')
        e.i(f's_lshl_b32 s{sT0}, s{sT0}, 6')
        e.i(f's_add_u32 s{sT0}, s{sT0}, s{sKS}')
        e.i(f's_mul_i32 s{sFR2[wi]}, s{sT0}, 1152')
    e.i(f's_and_b32 s{sT1}, s{sJ}, 1')
    e.i(f's_mul_i32 s{sT2}, s{sT1}, 640')
    e.i(f's_and_b32 s{sT0}, s{sRB}, 1')
    e.i(f's_lshl_b32 s{sT0}, s{sT0}, 8')
    e.i(f's_add_u32 s{sNB[0]}, s{sT2}, s{sT0}')
    e.i(f's_xor_b32 s{sT0}, s{sT0}, 256')
    e.i(f's_add_u32 s{sNB[1]}, s{sT2}, s{sT0}')
    e.i(f's_lshl_b32 s{sT1}, s{sT1}, 6')
    e.i(f's_add_u32 s{sNT}, s{sT1}, 512')
    e.i(f's_mul_i32 s{sHG}, s2, 73728')
    e.i(f's_xor_b32 s{sT0}, s2, 8')
    e.i(f's_mul_i32 s{sHG2}, s{sT0}, 73728')
    e.i(f's_mul_i32 s{sT0}, s{sMQ}, 18432')
    e.i(f's_add_u32 s{sHG}, s{sHG}, s{sT0}')
    e.i(f's_add_u32 s{sHG2}, s{sHG2}, s{sT0}')
    L = vX
    e.i(f'v_lshlrev_b32 v{vL16}, 4, v{L}')
    e.i(f'v_lshrrev_b32 v2, 4, v{L}')
    e.i(f'v_bfe_u32 v3, v{L}, 2, 2')
    e.i(f'v_and_b32 v4, 3, v{L}')
    e.i(f'v_lshl_add_u32 v5, v2, 2, v3')
    e.i('v_bfe_u32 v6, v5, 1, 2')
    e.i(f's_lshl_b32 s{sT0}, s{sFHW}, 1')
    e.i(f'v_xor_b32 v6, s{sT0}, v6')
    e.i('v_lshlrev_b32 v7, 7, v5')
    e.i('v_lshl_add_u32 v7, v4, 3, v7')
    e.i(f'v_lshl_add_u32 v{vRA[0]}, v6, 5, v7')
    e.i(f'v_xor_b32 v{vRA[1]}, 32, v{vRA[0]}')
    e.i('v_and_b32 v6, 1, v2')
    e.i(f'v_xor_b32 v6, s{sFHW}, v6')
    e.i('v_lshlrev_b32 v7, 6, v5')
    e.i('v_lshl_add_u32 v7, v4, 3, v7')
    e.i(f'v_lshl_add_u32 v{vRH}, v6, 5, v7')
    if NS > 8:
        for cc in range(2): e.i(f'v_add_u32 v{vRAh[cc]}, {HI}, v{vRA[cc]}')
        e.i(f'v_add_u32 v{vRHh}, {HI}, v{vRH}')
    e.i(f'v_lshrrev_b32 v6, 3, v{L}')
    e.i(f'v_bfe_u32 v7, v{L}, 4, 2')
    e.i('v_lshlrev_b32 v7, 1, v7')
    e.i(f'v_and_b32 v8, 7, v{L}')
    e.i('v_xor_b32 v8, v7, v8')
    e.i(f's_lshl_b32 s{sT0}, s{sMQ}, 3')
    e.i(f'v_add_u32 v9, s{sT0}, v6')
    e.i(f's_mov_b32 s{sT1}, 9216')
    e.i(f'v_mul_lo_u32 v9, v9, s{sT1}')
    e.i(f'v_lshl_add_u32 v{vD1}, v8, 4, v9')
    e.i(f'v_lshrrev_b32 v6, 2, v{L}')
    e.i(f'v_bfe_u32 v7, v{L}, 4, 1')
    e.i('v_lshlrev_b32 v7, 1, v7')
    e.i(f'v_and_b32 v8, 3, v{L}')
    e.i('v_xor_b32 v8, v7, v8')
    e.i(f's_lshl_b32 s{sT0}, s{sMQ}, 4')
    e.i(f'v_add_u32 v9, s{sT0}, v6')
    e.i(f'v_mul_lo_u32 v9, v9, s{sT1}')
    e.i(f'v_lshl_add_u32 v{vD1H}, v8, 4, v9')
    e.i(f's_mul_i32 s{sT0}, s{sMQ}, 18432')
    e.i(f's_add_u32 s{sT0}, s{sT0}, {HH}')
    e.i(f'v_add_u32 v{vHW}, s{sT0}, v{vL16}')
    e.i(f's_lshl_b32 s{sT0}, s{sFHW}, 11')
    e.i(f'v_add_u32 v{vHWF}, s{sT0}, v{vHW}')
    e.i(f's_lshl_b32 s{sT0}, s{sMQ}, 11')
    e.i(f's_add_u32 s{sT0}, s{sT0}, {HH}')
    e.i(f'v_add_u32 v{vBS}, s{sT0}, v{vL16}')
    e.i(f'v_and_b32 v6, 15, v{L}')
    e.i(f's_lshl_b32 s{sT0}, s{sRB}, 7')
    e.i(f's_lshl_b32 s{sT1}, s{sMQ}, 5')
    e.i(f's_add_u32 s{sT0}, s{sT0}, s{sT1}')
    e.i(f'v_add_u32 v6, s{sT0}, v6')
    e.i('v_lshlrev_b32 v6, 7, v6')
    e.i('v_lshl_add_u32 v6, v2, 5, v6')
    e.i('s_waitcnt lgkmcnt(0)')
    srd(e, sWG, sPG, sPG+1, 0, D*F*2)
    srd(e, sWU, sPU, sPU+1, 0, D*F*2)
    srd(e, sWD, sPD, sPD+1, 0, D*F*2)
    srd(e, sHC, sPWS, sPWS+1, WS_HC, MAT_BYTES)
    srd(e, sP, sPWS, sPWS+1, WS_SS, S*128)
    srd(e, sFL, sPWS, sPWS+1, WS_FL, 256*512)
    srd(e, sHGS, sPWS, sPWS+1, WS_HG, 256*73728)
    tss = [e.i(f'buffer_load_dwordx4 v[{16+8*q+4*h}:{19+8*q+4*h}], v6, s[{sP}:{sP+3}], 0 offen offset:{2048*q + 16*h}') for q in range(2) for h in range(2)]
    P2 = [('S', 0, 0, b) for b in range(9)] + [('S', 0, 1, b) for b in range(9)] + [('T', 0, ts) for ts in range(3)]
    if p2order == 2:
        P2 += [('S', 1, 0, b) for b in range(6)] + [('S', 1, 1, b) for b in range(3)] + [('S', 1, 0, b) for b in range(6, 9)] + \
              [('S', 1, 1, b) for b in range(3, 9)] + [('T', 1, ts) for ts in range(3)]
    elif p2order == 0:
        P2 += [('S', 1, 0, b) for b in range(9)] + [('S', 1, 1, b) for b in range(9)] + [('T', 1, ts) for ts in range(3)]
    else:
        P2 += [('S', 1, 0, b) for b in range(6)] + [('S', 1, 1, b) for b in range(6)] + [('S', 1, 0, b) for b in range(6, 9)] + \
              [('S', 1, 1, b) for b in range(6, 9)] + [('T', 1, ts) for ts in range(3)]
    def a_dma(t):
        slot = slot_of(t)
        r = [f's_add_u32 m0, s{sWB}, {RING + slot*8192}']
        m2 = f's_add_u32 m0, s{sWB}, {RING + slot*8192 + 4096}'
        if t < 81:
            if t < 72:
                wi, s = divmod(t, 18)
                if s == 0:
                    r += [f's_add_u32 s{sT0}, s{sROT}, {wi}', f's_and_b32 s{sT0}, s{sT0}, 3', f's_lshl_b32 s{sT0}, s{sT0}, 7',
                          f's_lshl_b32 s{sT1}, s{sFF}, 1', f's_add_u32 s{sOFF}, s{sT1}, s{sT0}']
                else: r.append(f's_add_u32 s{sOFF}, s{sOFF}, {32*9216}')
                vo = vD1
            else:
                sp = t - 72
                if sp == 0: r.append(f's_lshl_b32 s{sOFF}, s{sFH}, 1')
                else: r.append(f's_add_u32 s{sOFF}, s{sOFF}, {64*9216}')
                vo = vD1H
            r.append((f'buffer_load_dwordx4 v{vo}, s[{sWG}:{sWG+3}], s{sOFF} offen {wmod} lds', ('A', t, 0)))
            r += [m2, 's_nop 0', (f'buffer_load_dwordx4 v{vo}, s[{sWU}:{sWU+3}], s{sOFF} offen {wmod} lds', ('A', t, 1))]
            return r
        d = P2[t - 81]; pas = d[1]
        FR = sFR2 if pas else sFR; FH = sFRH2 if pas else sFRH
        if d[0] == 'S':
            k, b = d[2], d[3]
            if b == 8: r.append(f's_add_u32 s{sOFF}, s{FH}, s{sNB[k]}')
            else:
                r.append(f's_add_u32 s{sOFF}, s{FR[b//2]}, s{sNB[k]}')
                if b & 1: r += [f's_add_u32 s{sOFF}, s{sOFF}, {32*1152}']
            r.append((f'buffer_load_dwordx4 v{vD1}, s[{sWD}:{sWD+3}], s{sOFF} offen {wmod} lds', ('A', t, 0)))
            r += [m2, f's_add_u32 s{sO2}, s{sOFF}, {16*1152}', (f'buffer_load_dwordx4 v{vD1}, s[{sWD}:{sWD+3}], s{sO2} offen {wmod} lds', ('A', t, 1))]
            return r
        ts = d[2]
        r.append(f's_add_u32 s{sOFF}, s{FR[2*ts] if ts < 2 else FH}, s{sNT}')
        r.append((f'buffer_load_dwordx4 v{vD1H}, s[{sWD}:{sWD+3}], s{sOFF} offen {wmod} lds', ('A', t, 0)))
        if ts < 2:
            r += [m2, f's_add_u32 s{sO2}, s{FR[2*ts+1]}, s{sNT}', (f'buffer_load_dwordx4 v{vD1H}, s[{sWD}:{sWD+3}], s{sO2} offen {wmod} lds', ('A', t, 1))]
        return r
    def b_dma(t):
        r = [f's_add_u32 m0, s{sWB}, {HH + (t % NSB)*8192}']
        if t == 0:
            r += [f's_lshl_b32 s{sBOFF}, s{sRB}, 3', f's_add_u32 s{sBOFF}, s{sBOFF}, s{sMQ}', f's_mul_i32 s{sBOFF}, s{sBOFF}, {18*1024}']
        else:
            r.append(f's_add_u32 s{sBOFF}, s{sBOFF}, 1024')
        r.append((f'buffer_load_dwordx4 v{vL16}, s[{sHC}:{sHC+3}], s{sBOFF} offen {bmod} lds', ('B', t, 0)))
        r += [f's_add_u32 m0, s{sWB}, {HH + (t % NSB)*8192 + 4096}', f's_add_u32 s{sO2}, s{sBOFF}, {4*18*1024}',
              (f'buffer_load_dwordx4 v{vL16}, s[{sHC}:{sHC+3}], s{sO2} offen {bmod} lds', ('B', t, 1))]
        return r
    cur = [0]
    def emit(lst):
        for x in lst:
            txt = x[0] if isinstance(x, tuple) else x
            if isinstance(txt, str):
                if 'nodma' in exp and ' lds' in txt and 'buffer_load' in txt and len(e.ins) > 300: continue
                if 'novalu' in exp and txt.startswith('v_') and len(e.ins) > 300: continue
                if 'nostore' in exp and txt.startswith('buffer_store') and f's[{sP}:' in txt: continue
                if 'stskip%d' % cur[0] in exp and txt.startswith('buffer_store'): continue
            if isinstance(x, tuple): e.i(x[0], x[1])
            elif callable(x): x()
            else: e.i(x)
    def stats():
        e.wait(vm=tss)
        e.i('v_cmp_gt_u32 vcc, 2, v2')
        e.i('v_cmp_gt_u32 s[50:51], 3, v2')
        e.nop(1)
        for q in range(2):
            b = 16 + 8*q
            for k in range(2, 8): e.i(f'v_cndmask_b32 v{b+k}, 0, v{b+k}, vcc')
            for k in range(2): e.i(f'v_cndmask_b32 v{b+k}, 0, v{b+k}, s[50:51]')
            for k in range(4): e.i(f'v_add_f32 v{b+k}, v{b+k}, v{b+4+k}')
            e.i(f'v_add_f32 v{b}, v{b}, v{b+1}')
            e.i(f'v_add_f32 v{b+2}, v{b+2}, v{b+3}')
            e.i(f'v_add_f32 v{32+4*q}, v{b}, v{b+2}')
        e.i('v_mov_b32 v16, v32')
        e.i('v_mov_b32 v20, v36')
        for swp in ('v_permlane16_swap_b32', 'v_permlane32_swap_b32'):
            for q in range(2): e.i(f'v_mov_b32 v{17+4*q}, v{16+4*q}')
            e.nop(2)
            for q in range(2): e.i(f'{swp} v{16+4*q}, v{17+4*q}')
            e.nop(1)
            for q in range(2): e.i(f'v_add_f32 v{16+4*q}, v{16+4*q}, v{17+4*q}')
            e.nop(1)
        e.i(f's_mov_b32 s{sT0}, {f2u(1.0/576)}')
        e.i(f's_mov_b32 s{sT1}, {f2u(C0)}')
        e.i(f's_mov_b32 s{sT2}, {f2u(C1)}')
        for q in range(2):
            b = 16 + 4*q
            e.i(f'v_mov_b32 v{b+1}, {f2u(1e-5)}')
            e.i(f'v_fma_f32 v{vV[q]}, v{b}, s{sT0}, v{b+1}')
            e.i(f'v_rsq_f32 v{b}, v{vV[q]}')
            e.nop(1)
            e.i(f'v_mul_f32 v{vCA[q]}, s{sT1}, v{b}')
            e.i(f'v_mul_f32 v{b+1}, v{b}, v{b}')
            e.i(f'v_mul_f32 v{b+1}, v{b+1}, v{b}')
            e.i(f'v_mul_f32 v{vCB[q]}, s{sT2}, v{b+1}')
        e.i(f's_lshr_b32 s{sT0}, s{sJ}, 1')
        e.i(f's_mul_i32 s{sT0}, s{sT0}, {MAT_BYTES}')
        e.i(f's_add_u32 s{sT0}, s{sT0}, {WS_P}')
        e.i(f's_add_u32 s{sP}, s{sPWS}, s{sT0}')
        e.i(f's_addc_u32 s{sP+1}, s{sPWS+1}, 0')
        e.i(f's_mov_b32 s{sP+2}, {MAT_BYTES}')
        e.i(f's_mov_b32 s{sP+3}, 0x20000')
        e.i(f's_lshl_b32 s{sT0}, s{sRB}, 3')
        e.i(f's_lshl_b32 s{sT1}, s{sMQ}, 1')
        e.i(f's_add_u32 s{sT0}, s{sT0}, s{sT1}')
        e.i(f's_mul_i32 s{sPO}, s{sT0}, {18*1024}')

    NT = 123
    def frags(t):
        slot = RING + slot_of(t)*8192
        hi = slot >= HI
        if hi: slot -= HI
        out = []
        if t < 72:
            wi, s = divmod(t, 18); st = wi & 1
            for mat in range(2):
                for cc in range(2):
                    out.append(dict(ar=(vRAh if hi else vRA)[cc], off=slot + mat*4096, off2=2048,
                                    mf=[(acc1(st, mat, cc, q), vB(q, s), s == 0) for q in range(2)]))
        elif t < 81:
            sp = t - 72
            for kp in range(2):
                s = 2*sp + kp
                for mat in range(2):
                    out.append(dict(ar=(vRHh if hi else vRH), off=slot + mat*4096 + kp*2048, off2=1024,
                                    mf=[(acc1(0, mat, 0, q), vB(q, s), s == 0) for q in range(2)]))
        else:
            d = P2[t - 81]; pas = d[1]
            BR = vB2 if pas else vB
            if d[0] == 'S':
                k, b = d[2], d[3]
                for cc in range(4):
                    out.append(dict(ar=(vR2h if hi else vR2)[cc], off=slot, off2=4096, blk=(pas, b),
                                    mf=[(acc2(k, cc, q), BR(q, b), pas == 0 and b == 0) for q in range(2)]))
            else:
                ts = d[2]
                for kq in range(4):
                    b = 4*ts + kq
                    if b > 8: continue
                    out.append(dict(ar=(vRHh if hi else vRH), off=slot + kq*2048, off2=1024, blk=(pas, b),
                                    mf=[(accT(q), BR(q, b), pas == 0 and b == 0) for q in range(2)]))
        return out
    flist = [(t, a) for t in range(NT) for a in range(len(frags(t)))]
    fidx = {k: i for i, k in enumerate(flist)}
    SWITCH = len(flist) + 100
    def fset(i):
        if i < SWITCH: return ASET1[i % NA1] if NA1 <= 4 or True else None
        return ASET2[(i - SWITCH) % NA2]
    def dist(i):
        return (NA1 if i < SWITCH else NA2) - 1
    rtag = {}; bread = {}; hread = {}
    def rd_half(i, h):
        t, a = flist[i]; f = frags(t)[a]; ra = fset(i)
        if 'noread' in exp and t > 0:
            rtag.setdefault(i, []); return
        tg = e.i(f'ds_read_b64_tr_b16 v[{ra+2*h}:{ra+2*h+1}], v{f["ar"]} offset:{f["off"] + h*f["off2"]}')
        rtag.setdefault(i, []).append(tg)
    def read_b(t):
        def fn():
            bread[t] = [e.i(f'ds_read_b128 v[{vB(q,t)}:{vB(q,t)+3}], v{vBS} offset:{(t % NSB)*8192 + q*1024}') for q in range(2)]
        return [fn]
    def read_h(b):
        def fn():
            hread[(0, b)] = [e.i(f'ds_read_b128 v[{vB(q,b)}:{vB(q,b)+3}], v{vHW} offset:{(b*2+q)*1024}') for q in range(2)]
        return fn
    def read_h2(b):
        def fn():
            hread[(1, b)] = [e.i(f'ds_read_b128 v[{vB2(q,b)}:{vB2(q,b)+3}], v{vHW} offset:{(b*2+q)*1024}') for q in range(2)]
        return fn
    def geglu_ops(st, ncc):
        ops = []
        for q in range(2):
            for cc in range(ncc):
                a = [acc1(st, 0, cc, q) + jj for jj in range(4)]
                b = [acc1(st, 1, cc, q) + jj for jj in range(4)]
                T = vT
                for jj in range(4): ops.append(f'v_mul_f32 v{T[jj]}, v{a[jj]}, v{a[jj]}')
                for jj in range(4): ops.append(f'v_fma_f32 v{T[jj]}, v{T[jj]}, v{vCB[q]}, v{vCA[q]}')
                for jj in range(4): ops.append(f'v_mul_f32 v{T[jj]}, v{a[jj]}, v{T[jj]}')
                for jj in range(4): ops.append(f'v_exp_f32 v{T[jj]}, v{T[jj]}')
                for jj in range(4): ops.append(f'v_mul_f32 v{b[jj]}, v{a[jj]}, v{b[jj]}')
                for jj in range(4): ops.append(f'v_fma_f32 v{T[jj]}, v{T[jj]}, v{vV[q]}, v{vV[q]}')
                for jj in range(4): ops.append(f'v_rcp_f32 v{T[jj]}, v{T[jj]}')
                for jj in range(4): ops.append(f'v_mul_f32 v{b[jj]}, v{b[jj]}, v{T[jj]}')
                ops.append(f'v_cvt_pk_bf16_f32 v{vPK(q)+2*cc}, v{b[0]}, v{b[1]}')
                ops.append(f'v_cvt_pk_bf16_f32 v{vPK(q)+2*cc+1}, v{b[2]}, v{b[3]}')
        return ops
    def hh_write_full(wi, grp):
        r = [(f'ds_write_b128 v{vHWF}, v[{vPK(q)}:{vPK(q)+3}] offset:{wi*4096 + q*1024}', ('HW', wi, q)) for q in range(2)]
        if grp == 1 or not hgb:
            r += [f's_lshl_b32 s{sKS}, s{sFHW}, 11', f's_add_u32 s{sKS}, s{sKS}, {wi*4096}', f's_add_u32 s{sKS}, s{sKS}, s{sHG}']
            r += [(f'buffer_store_dwordx4 v[{vPK(q)}:{vPK(q)+3}], v{vL16}, s[{sHGS}:{sHGS+3}], s{sKS} offen offset:{q*1024} sc1', ('HG', wi, q)) for q in range(2)]
        return r
    def hg_store_other(wi):
        tags = []
        def rd():
            tags.extend(e.i(f'ds_read_b128 v[{vPK(q)}:{vPK(q)+3}], v{vHW} offset:{wi*4096 + q*1024}') for q in range(2))
        def wt(): e.wait(lg=tags)
        return [rd], [wt, f's_add_u32 s{sKS}, s{sHG}, {wi*4096}'] + \
               [(f'buffer_store_dwordx4 v[{vPK(q)}:{vPK(q)+3}], v{vL16}, s[{sHGS}:{sHGS+3}], s{sKS} offen offset:{q*1024} sc1', ('HGA', wi, q)) for q in range(2)]
    def hh_write_half():
        return [f's_lshl_b32 s{sKS}, s{sFHW}, 3', f'v_add_u32 v{vT[0]}, s{sKS}, v{vHW}'] + \
               [(f'ds_write_b64 v{vT[0]}, v[{vPK(q)}:{vPK(q)+1}] offset:{8*2048 + q*1024}', ('HW', 'h', q)) for q in range(2)]
    def hg_store_half():
        def fn(): e.wait(lg=hread[(0, 8)])
        return [fn, f's_add_u32 s{sKS}, s{sHG}, {8*2048}'] + \
               [(f'buffer_store_dwordx4 v[{vB(q,8)}:{vB(q,8)+3}], v{vL16}, s[{sHGS}:{sHGS+3}], s{sKS} offen offset:{q*1024} sc1', ('HG', 'h', q)) for q in range(2)]
    def p2_epilogue(k):
        ops = [f's_lshl_b32 s{sT2}, s{sNB[k]}, 4', f's_lshl_b32 s{sKS}, s{sFHW}, 11', f's_add_u32 s{sT2}, s{sT2}, s{sKS}', f's_add_u32 s{sT2}, s{sT2}, s{sPO}']
        n = 0
        for q in range(2):
            for pp in range(2):
                pk = vPK(n & 1); n += 1
                for h in range(2):
                    cc = 2*pp + h; a = acc2(k, cc, q)
                    ops.append(f'v_cvt_pk_bf16_f32 v{pk+2*h}, v{a}, v{a+1}')
                    ops.append(f'v_cvt_pk_bf16_f32 v{pk+2*h+1}, v{a+2}, v{a+3}')
                off = q*18*1024 + pp*1024
                if off < 4096:
                    ops.append(f'buffer_store_dwordx4 v[{pk}:{pk+3}], v{vL16}, s[{sP}:{sP+3}], s{sT2} offen offset:{off} {store_mod}')
                else:
                    ops.append(f's_add_u32 s{sKS}, s{sT2}, {off}')
                    ops.append(f'buffer_store_dwordx4 v[{pk}:{pk+3}], v{vL16}, s[{sP}:{sP+3}], s{sKS} offen {store_mod}')
        return ops
    def tail_epilogue():
        ops = [f's_lshl_b32 s{sT2}, s{sNT}, 4', f's_add_u32 s{sT2}, s{sT2}, s{sPO}', f's_lshl_b32 s{sKS}, s{sFHW}, 3', f'v_add_u32 v253, s{sKS}, v{vL16}']
        for q in range(2):
            a = accT(q); pk = vPK(q)
            ops += [f'v_cvt_pk_bf16_f32 v{pk}, v{a}, v{a+1}', f'v_cvt_pk_bf16_f32 v{pk+1}, v{a+2}, v{a+3}']
            if q: ops.append(f's_add_u32 s{sT2}, s{sT2}, {18*1024}')
            ops.append(f'buffer_store_dwordx2 v[{pk}:{pk+1}], v253, s[{sP}:{sP+3}], s{sT2} offen {tail_mod}')
        return ops
    def partner_dma(x, tag):
        o = x*1024
        return [f's_mul_i32 s{sKS}, s{sMQ}, 18432', f's_add_u32 m0, s{sKS}, {HH + o}', f's_add_u32 s{sO2}, s{sHG2}, {o}',
                (f'buffer_load_dwordx4 v{vL16}, s[{sHGS}:{sHGS+3}], s{sO2} offen lds', (tag, x))]
    def flag_set(k):
        return [f's_lshl_b32 s{sKS}, s2, 9', f's_add_u32 s{sKS}, s{sKS}, {128*k}', f'v_mov_b32 v{252 if k == 0 else 253}, 1',
                f'buffer_store_dword v{252 if k == 0 else 253}, off, s[{sFL}:{sFL+3}], s{sKS} sc1']
    def flag_load(k):
        return [f's_xor_b32 s{sOFF}, s2, 8', f's_lshl_b32 s{sOFF}, s{sOFF}, 9', f's_add_u32 s{sOFF}, s{sOFF}, {128*k}',
                (f'buffer_load_dword v{vD1H}, off, s[{sFL}:{sFL+3}], s{sOFF} sc1', ('FL', k))]
    def flag_check(k):
        def fn():
            lab = f'{name}_fc{k}'
            e.wait(vm=[('FL', k)])
            keep = list(e.vmq)
            e.i(f's_mov_b32 s{sO2}, 0x40000')
            e.i(f'{lab}_spin:')
            e.i(f'v_readfirstlane_b32 s{sKS}, v{vD1H}')
            e.nop(4)
            e.i(f's_cmp_eq_u32 s{sKS}, 1')
            e.i(f's_cbranch_scc1 {lab}_ok')
            e.i(f's_sub_u32 s{sO2}, s{sO2}, 1')
            e.i(f's_cmp_eq_u32 s{sO2}, 0')
            e.i(f's_cbranch_scc1 {lab}_ok')
            e.i('s_sleep 2')
            e.i(f'buffer_load_dword v{vD1H}, off, s[{sFL}:{sFL+3}], s{sOFF} sc1')
            e.i('s_waitcnt vmcnt(0)')
            e.i(f's_branch {lab}_spin')
            e.i(f'{lab}_ok:')
            e.vmq = keep
        return [fn]
    def p2_dma_full_setup():
        T = [251, 252]
        return [f'v_lshrrev_b32 v{T[0]}, 4, v{L}', f's_lshl_b32 s{sT2}, s{sMQ}, 2', f'v_add_u32 v{T[0]}, s{sT2}, v{T[0]}',
                f'v_and_b32 v{T[1]}, 7, v{T[0]}', f'v_lshlrev_b32 v{T[1]}, 1, v{T[1]}', f'v_and_b32 v{vD1}, 15, v{L}',
                f'v_xor_b32 v{vD1}, v{T[1]}, v{vD1}', f'v_mul_u32_u24 v{T[0]}, 1152, v{T[0]}', f'v_lshl_add_u32 v{vD1}, v{vD1}, 4, v{T[0]}']
    def p2_dma_half_setup():
        T = [136, 137, 138]
        return [f'v_lshrrev_b32 v{T[0]}, 2, v{L}', f'v_bfe_u32 v{T[1]}, v{L}, 4, 1', f'v_lshlrev_b32 v{T[1]}, 1, v{T[1]}',
                f'v_and_b32 v{T[2]}, 3, v{L}', f'v_xor_b32 v{T[2]}, v{T[1]}, v{T[2]}', f's_lshl_b32 s{sT2}, s{sMQ}, 4',
                f'v_add_u32 v{T[0]}, s{sT2}, v{T[0]}', f'v_mul_u32_u24 v{T[0]}, 1152, v{T[0]}', f'v_lshl_add_u32 v{vD1H}, v{T[2]}, 4, v{T[0]}']
    def p2_read_setup():
        return [f'v_lshrrev_b32 v0, 4, v{L}', f'v_bfe_u32 v1, v{L}, 2, 2', f'v_lshl_add_u32 v0, v0, 2, v1',
                'v_and_b32 v1, 7, v0', f's_lshl_b32 s{sKS}, s{sFHW}, 2', f'v_xor_b32 v1, s{sKS}, v1',
                'v_lshlrev_b32 v0, 8, v0', f'v_and_b32 v2, 3, v{L}', 'v_lshl_add_u32 v0, v2, 3, v0',
                f'v_lshl_add_u32 v{vR2[0]}, v1, 5, v0'] + [f'v_xor_b32 v{vR2[cc]}, {32*cc}, v{vR2[0]}' for cc in range(1, 4)]
    fill = [[] for _ in range(NT + 1)]
    gfill = [[[] for _ in range(NT + 1)] for _ in range(2)]
    def spread(ops, t0, t1):
        n = t1 - t0; m = len(ops)
        for k in range(n): fill[t0 + k] += ops[k*m//n:(k+1)*m//n]
    gs = 2 if hgb else 1
    for wi in range(3):
        t0 = 18*(wi+1)
        spread(geglu_ops(wi & 1, 2), t0 + 1, t0 + 17)
        for g in range(2): gfill[g][t0 + 17] += hh_write_full(wi, g)
    spread(geglu_ops(1, 2), 72, 80)
    for g in range(2): gfill[g][80] += hh_write_full(3, g)
    if hgb:
        for wi, tb in ((0, 36), (1, 54), (2, 72), (3, 82)):
            rd_, st_ = hg_store_other(wi)
            gfill[1][tb] = rd_ + gfill[1][tb]
            gfill[1][tb + 1] = st_ + gfill[1][tb + 1]
    spread(geglu_ops(0, 1), 81, 86); fill[86] += hh_write_half()
    HBLK = {74: (0,), 75: (1,), 76: (2,), 77: (3,), 78: (4,), 79: (5,), 82: (6, 7), 88: (8,)}
    t2 = {0: 106, 1: 112, 2: 108}[p2order]
    HBLK2 = {100: (0, 1, 2), 101: (3, 4, 5), t2: (6, 7, 8)}
    BARX = {82: [('HW', 3, 0), ('HW', 3, 1)], 88: [('HW', 'h', 0), ('HW', 'h', 1)], 72: [('HW', 2, 0), ('HW', 2, 1)],
            36: [('HW', 0, 0), ('HW', 0, 1)], 54: [('HW', 1, 0), ('HW', 1, 1)]}
    FS0, FS1 = fs if not hgb else (80, fs[1])
    BARV = {FS0: [(k, wi, q) for k in ('HG', 'HGA') for wi in range(3) for q in range(2)],
            FS1: [(k, wi, q) for k in ('HG', 'HGA') for wi in (3, 'h') for q in range(2)],
            100: [('PH', x) for x in range(12)], t2: [('PH2', x) for x in range(12, 18)]}
    e0 = {0: 111, 1: 117, 2: 114}[p2order]
    spread(p2_epilogue(0), e0, min(e0 + 8, 120))
    spread(p2_epilogue(1), 120, 123)
    PDMA = {}
    if hgb:
        for x in range(12): PDMA.setdefault(88 + x//2, []).extend(partner_dma(x, 'PH'))
    else:
        for x in range(12): PDMA[86 + x] = partner_dma(x, 'PH')
    f1 = {0: 97, 1: 100, 2: 99}[p2order]
    c1 = {0: 99, 1: 103, 2: 101}[p2order]
    for x in range(12, 18): PDMA.setdefault(c1 + 1 + (x - 12)//3, []).extend(partner_dma(x, 'PH2'))
    FLOAD = {(85 if hgb else 82): 0, f1: 1}; FCHK = {(87 if hgb else 85): 0, c1: 1}
    setup_full_t = 81 - P - 2
    assert 71 - P < setup_full_t < 81 - P
    setup_read_t = 73
    assert NA1 <= 4 or True
    setup_half_t = 89
    assert 80 - P < setup_half_t < 99 - P

    gfirst = lambda g, t: list(gfill[g][t]) if t in (36, 37, 54, 55, 72, 73, 82, 83) else []
    glast = lambda g, t: list(gfill[g][t]) if t not in (36, 37, 54, 55, 72, 73, 82, 83) else []
    def barrier_point(tb, grp):
        vm = []
        if grp == 0:
            for t in range(tb, min(tb + BG, NT - 1) + 1): vm += [('A', t, 0), ('A', t, 1)]
            for t in range(tb, min(tb + BG, 17) + 1): vm += [('B', t, 0), ('B', t, 1)]
        vm += BARV.get(tb, [])
        e.wait(vm=vm, lg=BARX.get(tb, []))
        if 'nobar' not in exp or tb == 0: e.i('s_barrier')
        if grp == 0 and tb == FS0: emit(flag_set(0))
        if grp == 0 and tb == FS1: emit(flag_set(1))
    def stamp(x):
        if diag and x in stamps:
            k = stamps.index(x)
            e.i(f's_memtime s[{sST+2*k}:{sST+1+2*k}]')
    def fused_tail(grp):
        sPO2, sG, sGB = 84, 85, 86
        e.i(f's_load_dwordx2 s[{sPO2}:{sPO2+1}], s[0:1], {ARG_OUT}') if False else None
        e.i(f's_load_dwordx2 s[90:91], s[0:1], {ARG_OUT}')
        e.i(f's_lshl_b32 s{sKS}, s{sFHW}, 3')
        e.i(f's_mul_i32 s{sT2}, s{sMQ}, 2048')
        e.i(f's_add_u32 s{sT2}, s{sT2}, {HH}')
        e.i(f'v_add_u32 v252, s{sT2}, v{vL16}')
        e.i(f'v_add_u32 v253, s{sKS}, v252')
        for q in range(2):
            a = accT(q); pk = vPK(q)
            e.i(f'v_cvt_pk_bf16_f32 v{pk}, v{a}, v{a+1}')
            e.i(f'v_cvt_pk_bf16_f32 v{pk+1}, v{a+2}, v{a+3}')
            e.i(f'ds_write_b64 v253, v[{pk}:{pk+1}] offset:{q*1024}')
        e.i('s_waitcnt lgkmcnt(0)')
        e.i('s_barrier')
        tr = e.i(f'ds_read_b128 v[{vPK(0)}:{vPK(0)+3}], v252 offset:{grp*1024}')
        e.i(f's_lshl_b32 s{sT2}, s{sNT}, 4')
        e.i(f's_add_u32 s{sT2}, s{sT2}, s{sPO}')
        if grp: e.i(f's_add_u32 s{sT2}, s{sT2}, {18*1024}')
        e.wait(lg=[tr])
        e.i(f'buffer_store_dwordx4 v[{vPK(0)}:{vPK(0)+3}], v{vL16}, s[{sP}:{sP+3}], s{sT2} offen {store_mod}')
        e.i(f's_and_b32 s{sT0}, s2, 15')
        e.i(f's_lshr_b32 s{sT1}, s{sT0}, 1')
        e.i(f's_lshl_b32 s{sKS}, s{sRB}, 3')
        e.i(f's_add_u32 s{sT1}, s{sT1}, s{sKS}')
        e.i(f's_and_b32 s{sT0}, s{sT0}, 1')
        e.i(f's_mul_i32 s{sT0}, s{sT0}, 9')
        e.i(f's_mul_i32 s{sG}, s{sT1}, 18')
        e.i(f's_add_u32 s{sG}, s{sG}, s{sT0}')
        e.i(f's_add_u32 s{sGB}, s{sG}, 8')
        e.i(f's_lshl_b32 s{sGB}, s{sGB}, 10')
        e.i(f's_add_u32 s{sG}, s{sG}, s{sw}')
        e.i(f's_lshl_b32 s{sG}, s{sG}, 10')
        e.i(f'v_and_b32 v4, 15, v{L}')
        e.i(f'v_lshrrev_b32 v5, 4, v{L}')
        e.i(f's_lshl_b32 s{sT1}, s{sT1}, 4')
        e.i(f'v_add_u32 v6, s{sT1}, v4')
        e.i('v_lshlrev_b32 v7, 2, v6')
        e.i('v_mul_u32_u24 v8, 1152, v6')
        e.i('v_and_b32 v9, 1, v5')
        e.i('v_lshlrev_b32 v9, 5, v9')
        e.i('v_lshrrev_b32 v10, 1, v5')
        e.i('v_lshl_add_u32 v9, v10, 4, v9')
        e.i('v_add_u32 v8, v8, v9')
        e.i(f's_add_u32 s{sT1}, s{sT0}, s{sw}')
        e.i(f's_lshl_b32 s{sT1}, s{sT1}, 6')
        e.i(f'v_add_u32 v9, s{sT1}, v8')
        e.i(f's_add_u32 s{sT1}, s{sT0}, 8')
        e.i(f's_lshl_b32 s{sT1}, s{sT1}, 6')
        e.i(f'v_add_u32 v10, s{sT1}, v8')
        srd(e, sWG, sPWS, sPWS+1, WS_P, NPART*MAT_BYTES)
        srd(e, sWU, sPWS, sPWS+1, WS_HM, S*4)
        e.i('s_waitcnt vmcnt(0) lgkmcnt(0)')
        srd(e, sWD, 90, 91, 0, MAT_BYTES)
        e.i('s_barrier')
        if grp == 0:
            e.i(f's_lshl_b32 s{sKS}, s2, 9')
            e.i(f's_add_u32 s{sKS}, s{sKS}, 256')
            e.i('v_mov_b32 v11, 1')
            e.i(f'buffer_store_dword v11, off, s[{sFL}:{sFL+3}], s{sKS} sc1')
            e.i(f's_cmp_lg_u32 s{sw}, 0')
            e.i(f's_cbranch_scc1 {name}_nopoll')
            e.i(f'v_min_u32 v12, 15, v{L}')
            e.i(f's_lshl_b32 s{sT0}, s{sRB}, 4')
            e.i(f'v_add_u32 v12, s{sT0}, v12')
            e.i('v_lshlrev_b32 v12, 9, v12')
            e.i(f's_mov_b32 s{sO2}, 0x40000')
            e.i(f'{name}_poll:')
            e.i(f'buffer_load_dword v13, v12, s[{sFL}:{sFL+3}], 0 offen offset:256 sc1')
            e.i('s_waitcnt vmcnt(0)')
            e.i('v_cmp_ne_u32 vcc, 1, v13')
            e.nop(4)
            e.i('s_cmp_eq_u64 vcc, 0')
            e.i(f's_cbranch_scc1 {name}_nopoll')
            e.i(f's_sub_u32 s{sO2}, s{sO2}, 1')
            e.i(f's_cmp_eq_u32 s{sO2}, 0')
            e.i(f's_cbranch_scc1 {name}_nopoll')
            e.i('s_sleep 1')
            e.i(f's_branch {name}_poll')
            e.i(f'{name}_nopoll:')
        e.i('s_barrier')
        def loads(base, sgw):
            e.i(f'buffer_load_dwordx4 v[{base}:{base+3}], v{vL16}, s[{sHC}:{sHC+3}], s{sgw} offen')
            for j in range(NPART):
                if j: e.i(f's_add_u32 s{sgw}, s{sgw}, {MAT_BYTES}')
                e.i(f'buffer_load_dwordx4 v[{base+4+4*j}:{base+7+4*j}], v{vL16}, s[{sWG}:{sWG+3}], s{sgw} offen sc1')
        def comp(base, vout):
            acc = list(range(100, 108))
            for k in range(4):
                e.i(f'v_lshlrev_b32 v108, 16, v{base+k}')
                e.i(f'v_and_b32 v109, v15, v{base+k}')
                e.i(f'v_add_f32 v{acc[2*k]}, v14, v108')
                e.i(f'v_add_f32 v{acc[2*k+1]}, v14, v109')
            for j in range(NPART):
                for k in range(4):
                    r = base + 4 + 4*j + k; t = 108 + 2*(k & 1)
                    e.i(f'v_lshlrev_b32 v{t}, 16, v{r}')
                    e.i(f'v_and_b32 v{t+1}, v15, v{r}')
                    e.i(f'v_pk_add_f32 v[{acc[2*k]}:{acc[2*k]+1}], v[{acc[2*k]}:{acc[2*k]+1}], v[{t}:{t+1}]')
            for k in range(4): e.i(f'v_cvt_pk_bf16_f32 v{112+k}, v{acc[2*k]}, v{acc[2*k+1]}')
            e.nop(2)
            e.i('v_permlane16_swap_b32 v112, v114')
            e.i('v_permlane16_swap_b32 v113, v115')
            e.nop(1)
            e.i(f'buffer_store_dwordx4 v[112:115], v{vout}, s[{sWD}:{sWD+3}], 0 offen {out_mod}')
        e.i(f'buffer_load_dword v14, v7, s[{sWU}:{sWU+3}], 0 offen')
        loads(16, sG)
        if grp == 0:
            e.i(f's_cmp_lg_u32 s{sw}, 0')
            e.i(f's_cbranch_scc1 {name}_nou8a')
            loads(56, sGB)
            e.i(f'{name}_nou8a:')
        e.i('v_mov_b32 v15, 0xffff0000')
        e.i('s_waitcnt vmcnt(0)')
        comp(16, 9)
        if grp == 0:
            e.i(f's_cmp_lg_u32 s{sw}, 0')
            e.i(f's_cbranch_scc1 {name}_nou8b')
            e.nop(2)
            comp(56, 10)
            e.i(f'{name}_nou8b:')
        if diag: e.i('s_waitcnt vmcnt(0)')
    def stream(grp):
        rtag.clear(); bread.clear(); hread.clear(); cur[0] = grp
        if grp == 0:
            for t in range(max(P, PB)):
                if t < PB: emit(b_dma(t))
                if t < P: emit(a_dma(t))
        if grp == 1 and warm0:
            e.i(f's_lshr_b32 s{sOFF}, s2, 3')
            e.i(f's_mul_i32 s{sOFF}, s{sOFF}, 162')
            e.i(f's_and_b32 s{sO2}, s{sMQ}, 1')
            e.i(f's_mul_i32 s{sO2}, s{sO2}, 81')
            e.i(f's_add_u32 s{sOFF}, s{sOFF}, s{sO2}')
            e.i(f's_cmp_lt_u32 s{sMQ}, 2')
            for k in range(2): e.i(f's_cselect_b32 s{60+k}, s{sWG+k}, s{sWU+k}')
            e.i(f's_mov_b32 s62, {D*F*2}')
            e.i('s_mov_b32 s63, 0x20000')
            e.i(f's_and_b32 s{sO2}, s2, 7')
            e.i(f's_mul_i32 s{sO2}, s{sO2}, 1152')
            for k in range(2):
                e.i(f'v_add_u32 v10, s{sOFF}, v{L}')
                if k: e.i('v_add_u32 v10, 64, v10')
                e.i('v_min_u32 v10, 5183, v10')
                e.i('v_mul_u32_u24 v11, 7282, v10')
                e.i('v_lshrrev_b32 v11, 16, v11')
                e.i('v_mul_u32_u24 v12, 9, v11')
                e.i('v_sub_u32 v12, v10, v12')
                e.i('v_mul_u32_u24 v11, 9216, v11')
                e.i('v_lshl_add_u32 v11, v12, 7, v11')
                e.i(f'buffer_load_dword v{vD1H}, v11, s[60:63], s{sO2} offen {pfmod}')
        stats()
        barrier_point(0, grp)
        emit(read_b(0))
        nxt = 0
        for i in range(dist(0)): rd_half(i, 0); rd_half(i, 1)
        nxt = dist(0)
        for t in range(NT):
            e.c(f'---- step {t}')
            stamp(t)
            if t and (t % BG == 0 or t in BARX): barrier_point(t, grp)
            fr = frags(t)
            mem = []
            if grp == 0:
                if t + P < NT: mem += a_dma(t + P)
                if t + PB < 18: mem += b_dma(t + PB)
            lds = []
            if t + 1 < 18: lds += read_b(t + 1)
            lds += [read_h(b) for b in HBLK.get(t, ())]
            lds += [read_h2(b) for b in HBLK2.get(t, ())]
            if grp == pgrp: mem += PDMA.get(t, [])
            if grp == 1 and t in FLOAD: mem += flag_load(FLOAD[t])
            if warm and grp == 1 and t in warm:
                kind = warm[t]
                lab = f'{name}_wm{t}'
                if kind[0] == 'D':
                    mem += [f's_lshr_b32 s{sOFF}, s2, 3', f's_mul_i32 s{sOFF}, s{sOFF}, {162*128}', f's_and_b32 s{sO2}, s2, 7',
                            f's_mul_i32 s{sO2}, s{sO2}, {576*1152}', f's_add_u32 s{sOFF}, s{sOFF}, s{sO2}',
                            f's_lshl_b32 s{sO2}, s{sMQ}, 13', f's_add_u32 s{sOFF}, s{sOFF}, s{sO2}', f'v_lshlrev_b32 v{vD1}, 7, v{L}',
                            f'buffer_load_dword v{vD1H}, v{vD1}, s[{sWD}:{sWD+3}], s{sOFF} offen {pfmod}']
                else:
                    mem += [f's_lshr_b32 s{sOFF}, s2, 3', f's_mul_i32 s{sOFF}, s{sOFF}, {18*9216}', f's_and_b32 s{sO2}, s2, 7',
                            f's_mul_i32 s{sO2}, s{sO2}, 1152', f's_add_u32 s{sOFF}, s{sOFF}, s{sO2}', f's_add_u32 s{sOFF}, s{sOFF}, 512',
                            f'v_min_u32 v{vD1}, 17, v{L}', f'v_mul_u32_u24 v{vD1}, 9216, v{vD1}',
                            f'buffer_load_dword v{vD1H}, v{vD1}, s[{sWG}:{sWG+3}], s{sOFF} offen',
                            f'buffer_load_dword v{vD1H}, v{vD1}, s[{sWU}:{sWU+3}], s{sOFF} offen']
            q = gfirst(grp, t) + list(fill[t]) + glast(grp, t)
            if grp == 1 and t == 89: q = q + hg_store_half()
            if t == setup_read_t: q = p2_read_setup() + q
            if t == 87 and NS > 8: q = [f'v_add_u32 v{vR2h[cc]}, {HI}, v{vR2[cc]}' for cc in range(4)] + q
            if grp == 0 and t == setup_full_t: q = p2_dma_full_setup() + q
            if grp == 0 and t == setup_half_t: q = p2_dma_half_setup() + q
            if grp == 1 and ppf is not None and t >= ppf[0] and (t - ppf[0]) % ppf[1] == 0 and (t - ppf[0]) // ppf[1] < 5:
                k = (t - ppf[0]) // ppf[1]
                pre = []
                if k == 0:
                    pre += [f's_mul_i32 s{sOFF}, s{sRB}, 147456', f's_mul_i32 s{sO2}, s{sMQ}, {288*128}', f's_add_u32 s{sOFF}, s{sOFF}, s{sO2}',
                            f'v_lshlrev_b32 v{vD1}, 7, v{L}']
                else: pre += [f's_add_u32 s{sOFF}, s{sOFF}, 8192']
                pre += [f'buffer_load_dword v{vBS}, v{vD1}, s[{sP}:{sP+3}], s{sOFF} offen']
                mem += pre
            nm = 2*len(fr)
            if dmaslot == 0: emit(mem); mem = []
            q = lds + q
            n = 0
            for a, f in enumerate(fr):
                i = fidx[(t, a)]
                need = list(rtag[i])
                bq = f['mf'][0][1]
                if t < 18: need += bread[t]
                if t >= 81: need += hread.get(f['blk'], [])
                e.wait(lg=need)
                ra = fset(i)
                for k, (acc, breg, zero) in enumerate(f['mf']):
                    c = '0' if zero else f'v[{acc}:{acc+3}]'
                    e.i(f'v_mfma_f32_16x16x32_bf16 v[{acc}:{acc+3}], v[{ra}:{ra+3}], v[{breg}:{breg+3}], {c}')
                    tgt = i + dist(min(i + 1, len(flist) - 1))
                    while nxt <= tgt and nxt < len(flist) and nxt < tgt:
                        rd_half(nxt, 0); rd_half(nxt, 1); nxt += 1
                    if nxt < len(flist) and nxt == tgt:
                        rd_half(nxt, k)
                        if k == 1: nxt += 1
                    lo, hi = n*len(q)//nm, (n+1)*len(q)//nm
                    emit(q[lo:hi]); n += 1
                    if mem and n == dmaslot: emit(mem); mem = []
            emit(mem)
            if grp == 1 and t in FCHK: emit(flag_check(FCHK[t]))
        e.nop(8)
        if not fuse:
            emit(tail_epilogue())
            e.i('s_waitcnt vmcnt(0)')
        else:
            fused_tail(grp)
        if diag:
            e.i(f's_memrealtime s[{sTS+2}:{sTS+3}]')
            e.i('s_waitcnt lgkmcnt(0)')
            srd(e, sHC, sPWS, sPWS+1, WS_TS + 2*0x10000, 0x10000)
            e.i(f's_lshl_b32 s{sT0}, s2, 3'); e.i(f's_add_u32 s{sT0}, s{sT0}, s{sw}'); e.i(f's_lshl_b32 s{sT0}, s{sT0}, 4')
            for k in range(4): e.i(f'v_mov_b32 v{k}, s{sTS+k}')
            e.i('v_mov_b32 v4, 0')
            e.i(f'buffer_store_dwordx4 v[0:3], v4, s[{sHC}:{sHC+3}], s{sT0} offen')
            if stamps:
                e.i(f's_memtime s[{sST+2*len(stamps)}:{sST+1+2*len(stamps)}]')
                e.i('s_waitcnt lgkmcnt(0)')
                srd(e, sHC, sPWS, sPWS+1, WS_TS + 4*0x10000, 0x40000)
                e.i(f's_lshl_b32 s{sT0}, s2, 3'); e.i(f's_add_u32 s{sT0}, s{sT0}, s{sw}'); e.i(f's_lshl_b32 s{sT0}, s{sT0}, 7')
                for k in range(len(stamps) + 1):
                    e.i(f'v_mov_b32 v0, s{sST+2*k}')
                    e.i(f'buffer_store_dword v0, v4, s[{sHC}:{sHC+3}], s{sT0} offen offset:{4*k}')
            e.i('s_waitcnt vmcnt(0)')
        e.i('s_endpgm')
    e.i(f's_cmp_ge_u32 s{sw}, 4')
    e.i(f's_cbranch_scc1 {name}_grpB')
    common_n = len(e.ins)
    save = (list(e.vmq), list(e.lgq))
    stream(0)
    nA = len(e.ins)
    e.i(f'{name}_grpB:')
    e.vmq, e.lgq = list(save[0]), list(save[1])
    stream(1)
    segs = [e.ins[:nA], e.ins[:common_n] + e.ins[nA:]]
    e.i(f'{name}_done:')
    e.i('s_endpgm')
    probs = sum((check(x, name) for x in segs), [])
    txt = '.p2align 8\n.type %s,@function\n' % name + e.text() + kernel_desc(name, 256, 100, 256)
    return txt, LDS, probs

if __name__ == '__main__':
    t, lds, pr = gen_k3()
    print(len(t), lds, len(pr))
    open('k3.s', 'w').write('.amdgcn_target "amdgcn-amd-amdhsa--gfx950"\n.text\n' + t)
```
